```python
import torch

def _softmax(x, axis=-1):
    return torch.softmax(x, dim=axis)

def _gelu(x):
    return torch.nn.functional.gelu(x, approximate='tanh')

def _silu(x):
    return torch.nn.functional.silu(x)

def _sigmoid(x):
    return torch.sigmoid(x)

def _layernorm(x, axis=-1, eps=1e-05):
    m = x.mean(dim=axis, keepdim=True)
    v = x.var(dim=axis, keepdim=True, unbiased=False)
    return (x - m) / torch.sqrt(v + eps)

def _scatter_add(tgt, idx, src, axis=0):
    return tgt.clone().index_add_(axis, idx, src)

def _segment_sum(src, seg, n):
    out = torch.zeros((n,) + src.shape[1:], dtype=src.dtype)
    return out.index_add_(0, seg, src)

def _pad(x, pw):
    flat = tuple((v for pair in reversed(pw) for v in pair))
    return torch.nn.functional.pad(x, flat)
kernel_name = 'adaLN_cond__mha_block_cached__dense_activation_silu__decode'

def setup_inputs():

    _w = lambda a: (lambda t: t.to(torch.bfloat16) if t.is_floating_point() else t)(torch.as_tensor(a))

    def _A_setup():
        B, Sq, D = (2, 1, 448)
        H, Sk, Dh = (16, 32768, 256)
        return {'x': _w((lambda *s: torch.randn(*s, dtype=torch.bfloat16) * 0.1)(B, Sq, D)), 'k_cache': _w((lambda *s: torch.randn(*s, dtype=torch.bfloat16) * 1.6)(B, H, Sk, Dh)), 'v_cache': _w((lambda *s: torch.randn(*s, dtype=torch.bfloat16) * 3.2)(B, H, Sk, Dh)), 'wq': _w((lambda *s: torch.randn(*s, dtype=torch.bfloat16) * 1.6)(D, H * Dh) * D ** (-0.5)), 'wo': _w((lambda *s: torch.randn(*s, dtype=torch.bfloat16) * 3.2)(H * Dh, D) * (H * Dh) ** (-0.5))}
    _A_in = _A_setup()

    def _B_setup():
        B, S, D, F = (2, 1, 448, 1792)
        return {'x': _w((lambda *s: torch.randn(*s, dtype=torch.bfloat16) * 0.1)(B, S, D)), 'w1': _w((lambda *s: torch.randn(*s, dtype=torch.bfloat16) * 3.2)(D, F) * D ** (-0.5)), 'w2': _w((lambda *s: torch.randn(*s, dtype=torch.bfloat16) * 3.2)(F, D) * F ** (-0.5))}
    _B_in = _B_setup()
    return {'A_x': _A_in['x'], 'A_k_cache': _A_in['k_cache'], 'A_v_cache': _A_in['v_cache'], 'A_wq': _A_in['wq'], 'A_wo': _A_in['wo'], 'B_x': _B_in['x'], 'B_w1': _B_in['w1'], 'B_w2': _B_in['w2'], 'c': _w((lambda *s: torch.randn(*s, dtype=torch.bfloat16) * 0.2)(2, 448) * 8.0), 'w_mod': _w((lambda *s: torch.randn(*s, dtype=torch.bfloat16) * 0.2)(448, 6 * 448) * 448 ** (-0.5) * 8.0)}

def reference(A_x, A_k_cache, A_v_cache, A_wq, A_wo, B_x, B_w1, B_w2, c, w_mod):

    def _A_ref(x, k_cache, v_cache, wq, wo):
        B, Sq, D = x.shape
        H, Dh = (16, 256)
        q = (lambda x, *d: x.permute(*d))((x @ wq).reshape(B, Sq, H, Dh), 0, 2, 1, 3)
        scores = torch.einsum('bhqd,bhkd->bhqk', q, k_cache) * Dh ** (-0.5)
        p = _softmax(scores, axis=-1)
        o = torch.einsum('bhqk,bhkd->bhqd', p, v_cache)
        return (lambda x, *d: x.permute(*d))(o, 0, 2, 1, 3).reshape(B, Sq, H * Dh) @ wo

    def _B_ref(x, w1, w2):
        h = torch.einsum('bsd,df->bsf', x, w1)
        h = _silu(h)
        out = torch.einsum('bsf,fd->bsd', h, w2)
        return out
    x = A_x
    mod = (_silu(c) @ w_mod).reshape(c.shape[0], 6, 1, -1)
    sa, ca, ga, sb, cb, gb = (mod[:, 0].clone(), mod[:, 1].clone(), mod[:, 2].clone(), mod[:, 3].clone(), mod[:, 4].clone(), mod[:, 5].clone())
    h = _layernorm(x, axis=-1) * (1 + ca) + sa
    x = x + ga * _A_ref(h, A_k_cache, A_v_cache, A_wq, A_wo)
    h = _layernorm(x, axis=-1) * (1 + cb) + sb
    x = x + gb * _B_ref(h, B_w1, B_w2)
    return x
```

```python
import struct
import sys

NAME = "adaLN_cond__mha_block_cached__dense_activation_silu__decode"

WS_EPOCH, WS_MOD, WS_Q, WS_ML, WS_OP, WS_Y, WS_HID, WS_SIZE = (
    0, 0x1000, 0x8000, 0x10000, 0x20000, 0x60000, 0x70000, 0x80000)
WS_STAMP = 0x80000
RING, NSLOT = 0, 16
SC, SC_STRIDE = 131072, 6144
STG, STG_STRIDE = 149504, 2560
PST_MOD, PST_WQ = 131072, 145408
MISC = 159744
FULL, FREE, QRDY, TAG, ML, QV, AIM, RED = (MISC, MISC + 256, MISC + 272, MISC + 276, MISC + 288,
                                           MISC + 512, MISC + 1024, MISC + 2816)
LDS_BYTES = 163840


STAMPS = [("ld start", 0, 0), ("S0 start", 4, 0), ("S0 wmod landed", 4, 1), ("S0 mod pub/wq landed", 4, 2),
          ("S0 mod gathered", 4, 3), ("S0 q pub", 4, 4), ("S0 q ready", 4, 5), ("C prepull done", 1, 0),
          ("C q seen", 1, 1), ("ld K issued", 0, 1), ("C K done", 1, 2), ("C softmax done", 1, 3),
          ("ld done", 0, 2), ("T0 barrier", 5, 0), ("o gathered+bar", 5, 1), ("y gathered", 5, 2),
          ("hid pub", 5, 3), ("hid gathered", 5, 4), ("S0 end", 4, 7)]


def f2u(x):
    return struct.unpack("<I", struct.pack("<f", x))[0]


LOG2E = 1.4426950408889634
C2 = f2u(LOG2E / 16.0)
DPPF = "row_mask:0xf bank_mask:0xf"


class Gen:
    def __init__(self, D=20, wpol="", stamps=False, prepull=5, kvpol="nt"):
        self.L = []
        self.n = 0
        self.D = D
        self.wpol = wpol
        self.kvpol = kvpol
        self.stamps = stamps
        self.prepull = prepull

    def e(self, s):
        for line in s.split("\n"):
            line = line.strip()
            if not line:
                continue
            self.L.append(line if line.endswith(":") or line.startswith(";") else "    " + line)

    def lab(self, p):
        self.n += 1
        return f"L_{p}_{self.n}"

    def srd(self, d, base, size):
        self.e(f"s_mov_b32 s{d}, s{base}\ns_mov_b32 s{d+1}, s{base+1}\n"
               f"s_mov_b32 s{d+2}, {size}\ns_mov_b32 s{d+3}, 0x20000")

    def stamp(self, k):
        if self.stamps:
            self.e(f"s_memrealtime s[{84+2*k}:{85+2*k}]\ns_waitcnt lgkmcnt(0)")

    def stamp_init(self):
        if self.stamps:
            for k in range(8):
                self.e(f"s_mov_b64 s[{84+2*k}:{85+2*k}], 0")

    def stamp_flush(self):
        if self.stamps:
            self.e("s_mov_b64 exec, -1")
            self.srd(80, 28, WS_STAMP + 0x20000)
            for k in range(8):
                self.e(f"v_mov_b32 v{8+k}, s{84+2*k}")
            self.e(f"s_lshl_b32 s30, s2, 3\ns_add_u32 s30, s30, s3\ns_lshl_b32 s30, s30, 5\n"
                   f"s_add_u32 s30, s30, {WS_STAMP}\nv_mov_b32 v1, s30\ns_mov_b64 exec, 1\n"
                   "buffer_store_dwordx4 v[8:11], v1, s[80:83], 0 offen\n"
                   "buffer_store_dwordx4 v[12:15], v1, s[80:83], 0 offen offset:16")

    def end(self):
        self.stamp_flush()
        self.e("s_endpgm")

    def budget(self):
        self.e("s_sub_u32 s31, s31, 1\ns_cbranch_scc1 L_end")

    def wave_reduce(self, op, regs):
        steps = ["quad_perm:[1,0,3,2] " + DPPF, "quad_perm:[2,3,0,1] " + DPPF, "row_half_mirror " + DPPF,
                 "row_mirror " + DPPF, "row_bcast:15 row_mask:0xa bank_mask:0xf",
                 "row_bcast:31 row_mask:0xc bank_mask:0xf"]
        for st in steps:
            pad = 3 - len(regs) if st is not steps[0] else 2
            if pad > 0:
                self.e(f"s_nop {pad-1}")
            for r in regs:
                self.e(f"{op}_dpp v{r}, v{r}, v{r} {st}")
        self.e("s_nop 0")

    def rbf_pairs(self, regs, tmp):
        for k in range(0, len(regs), 2):
            self.e(f"v_cvt_pk_bf16_f32 v{tmp[k//2]}, v{regs[k]}, v{regs[k+1]}")
        self.unpack(tmp[:len(regs)//2], regs)

    def unpack(self, packed, regs):
        for k, p in enumerate(packed):
            self.e(f"v_lshlrev_b32 v{regs[2*k]}, 16, v{p}\nv_and_b32 v{regs[2*k+1]}, 0xffff0000, v{p}")

    def rbf1(self, r):
        self.e(f"v_cvt_pk_bf16_f32 v{r}, v{r}, v{r}\nv_and_b32 v{r}, 0xffff0000, v{r}")

    def silu(self, regs, tmp):
        for r, t in zip(regs, tmp):
            self.e(f"v_mul_f32 v{t}, {hex(f2u(-LOG2E))}, v{r}")
        for t in tmp[:len(regs)]:
            self.e(f"v_exp_f32 v{t}, v{t}")
        self.e("s_nop 0")
        for t in tmp[:len(regs)]:
            self.e(f"v_add_f32 v{t}, 1.0, v{t}")
        for t in tmp[:len(regs)]:
            self.e(f"v_rcp_f32 v{t}, v{t}")
        self.e("s_nop 0")
        for r, t in zip(regs, tmp):
            self.e(f"v_mul_f32 v{r}, v{r}, v{t}")

    def layernorm(self, X, t):
        e = self.e
        e(f"v_add_f32 v{t[0]}, v{X[0]}, v{X[1]}\nv_mul_f32 v{t[1]}, v{X[0]}, v{X[0]}")
        e(f"v_fmac_f32 v{t[1]}, v{X[1]}, v{X[1]}")
        for k in range(2, 8):
            e(f"v_add_f32 v{t[0]}, v{t[0]}, v{X[k]}\nv_fmac_f32 v{t[1]}, v{X[k]}, v{X[k]}")
        self.wave_reduce("v_add_f32", [t[0], t[1]])
        e(f"v_readlane_b32 s60, v{t[0]}, 63\nv_readlane_b32 s61, v{t[1]}, 63")
        e(f"v_mov_b32 v{t[2]}, {hex(f2u(1.0/448))}")
        e(f"v_mul_f32 v{t[0]}, s60, v{t[2]}\nv_mul_f32 v{t[1]}, s61, v{t[2]}")
        e(f"v_fma_f32 v{t[1]}, -v{t[0]}, v{t[0]}, v{t[1]}\nv_max_f32 v{t[1]}, 0, v{t[1]}")
        e(f"v_cvt_pk_bf16_f32 v{t[2]}, v{t[0]}, v{t[1]}")
        e(f"v_lshlrev_b32 v{t[0]}, 16, v{t[2]}\nv_and_b32 v{t[1]}, 0xffff0000, v{t[2]}")
        e(f"v_add_f32 v{t[1]}, {hex(f2u(1e-5))}, v{t[1]}")
        self.rbf1(t[1])
        e(f"v_sqrt_f32 v{t[1]}, v{t[1]}")
        for k in range(8):
            e(f"v_sub_f32 v{X[k]}, v{X[k]}, v{t[0]}")
        self.rbf1(t[1])
        e(f"v_rcp_f32 v{t[1]}, v{t[1]}")
        self.rbf_pairs(X, t[2:6])
        for k in range(8):
            e(f"v_mul_f32 v{X[k]}, v{X[k]}, v{t[1]}")
        self.rbf_pairs(X, t[2:6])

    def modulate(self, X, OC, SH, out, t):
        for k in range(8):
            self.e(f"v_mul_f32 v{X[k]}, v{X[k]}, v{OC[k]}")
        self.rbf_pairs(X, t)
        for k in range(8):
            self.e(f"v_add_f32 v{X[k]}, v{X[k]}, v{SH[k]}")
        for k in range(4):
            self.e(f"v_cvt_pk_bf16_f32 v{out[k]}, v{X[2*k]}, v{X[2*k+1]}")

    def gather(self, loads, vtag, sel, active, sleep=0):
        e = self.e
        top, done = self.lab("gat"), self.lab("gdone")
        for k in range(len(loads)):
            e(f"s_mov_b64 s[{64+2*k}:{65+2*k}], 1")
        e(f"s_mov_b64 exec, {active}\n{top}:")
        for k, (nd, raw, clean, va, so, imm) in enumerate(loads):
            sk = self.lab("gs")
            dst = f"v{raw}" if nd == 1 else f"v[{raw}:{raw+nd-1}]"
            suf = "" if nd == 1 else f"x{nd}"
            if len(loads) > 1:
                e(f"s_cmp_eq_u64 s[{64+2*k}:{65+2*k}], 0\ns_cbranch_scc1 {sk}")
            e(f"buffer_load_dword{suf} {dst}, v{va}, s[32:35], {so} offen offset:{imm} sc1")
            e(f"{sk}:")
        e("s_waitcnt vmcnt(0)")
        for k, (nd, raw, clean, va, so, imm) in enumerate(loads):
            for j in range(nd):
                e(f"v_xor_b32 v{clean+j}, v{raw+j}, v{vtag}")
            if nd == 1:
                chk = clean
            elif nd == 2:
                chk = 1
                e(f"v_or_b32 v1, v{clean}, v{clean+1}")
            else:
                chk = 1
                e(f"v_or3_b32 v1, v{clean}, v{clean+1}, v{clean+2}\nv_or_b32 v1, v1, v{clean+3}")
            e(f"v_cmp_ne_u32_sdwa s[{64+2*k}:{65+2*k}], v{chk}, v2 src0_sel:{sel} src1_sel:DWORD")
        e("s_or_b64 s[62:63], s[64:65], s[64:65]")
        for k in range(1, len(loads)):
            e(f"s_or_b64 s[62:63], s[62:63], s[{64+2*k}:{65+2*k}]")
        e(f"s_cbranch_scc0 {done}")
        self.budget()
        if sleep:
            e(f"s_sleep {sleep}")
        e(f"s_branch {top}\n{done}:\ns_mov_b64 exec, -1")

    def lds_wait(self, vaddr, off, sreg, need, sleep):
        e = self.e
        top, go = self.lab("lw"), self.lab("lgo")
        e(f"s_cmp_ge_u32 s{sreg}, {need}\ns_cbranch_scc1 {go}\n{top}:")
        e(f"ds_read_b32 v1, v{vaddr} offset:{off}\ns_waitcnt lgkmcnt(0)\nv_readfirstlane_b32 s{sreg}, v1")
        e(f"s_cmp_ge_u32 s{sreg}, {need}\ns_cbranch_scc1 {go}")
        self.budget()
        e(f"s_sleep {sleep}\ns_branch {top}\n{go}:")

    def dma_step(self, vaddr, srd, lds_sreg_or_imm, pol):
        self.e(f"s_mov_b32 m0, {lds_sreg_or_imm}\ns_nop 0")
        self.e(f"buffer_load_dwordx4 v{vaddr}, s[{srd}:{srd+3}], s58 offen {pol} lds")

    def tr_reads(self, dst, vtr, off):
        self.e(f"ds_read_b64_tr_b16 v[{dst}:{dst+1}], v{vtr} offset:{off}")
        self.e(f"ds_read_b64_tr_b16 v[{dst+2}:{dst+3}], v{vtr} offset:{off+128}")

    def loader(self):
        e, D = self.e, self.D
        ng = D // 4
        e("L_loader:\ns_setprio 3")
        e(f"v_lshlrev_b32 v1, 4, v0\nv_lshlrev_b32 v2, 2, v0\nv_add_u32 v2, {FULL}, v2\nv_mov_b32 v3, {FREE}")
        e("v_mov_b32 v6, 0\nv_mov_b32 v7, 0\nv_mov_b32 v8, 0")
        e("s_lshl_b32 s30, s2, 21\ns_mov_b32 s31, 0x200000\ns_waitcnt lgkmcnt(0)")
        self.stamp(0)
        e("s_add_u32 s32, s6, s30\ns_addc_u32 s33, s7, 0\ns_mov_b32 s34, 0x200000\ns_mov_b32 s35, 0x20000")
        e("s_add_u32 s36, s8, s30\ns_addc_u32 s37, s9, 0\ns_mov_b32 s38, 0x200000\ns_mov_b32 s39, 0x20000")
        for n in range(ng):
            e(f"s_mov_b32 m0, {n*4096}\ns_mov_b32 s41, {n*4096}")
            for k in range(4):
                e(f"buffer_load_dwordx4 v1, s[32:35], s41 offen offset:{k*1024} {self.kvpol} lds")
        e(f"s_mov_b32 s40, 1\ns_mov_b32 s41, {ng*4096}\ns_mov_b32 s44, {2*NSLOT-ng+1}\ns_barrier")
        for ph, srd in enumerate((32, 36)):
            top, back, slow = f"L_ld{ph}", f"L_ldb{ph}", f"L_lds{ph}"
            e(f"{top}:\ns_cmp_lt_u32 s40, s44\ns_cbranch_scc0 {slow}\n{back}:")
            e(f"s_and_b32 s42, s41, {NSLOT*8192-1}\ns_mov_b32 m0, s42\nv_mov_b32 v4, s40")
            e(f"s_waitcnt vmcnt({D-4})")
            for k in range(4):
                e(f"buffer_load_dwordx4 v1, s[{srd}:{srd+3}], s41 offen offset:{k*1024} {self.kvpol} lds")
            e("ds_write_b32 v2, v4\ns_waitcnt lgkmcnt(1)\nv_min3_u32 v5, v6, v7, v8\nds_read_b96 v[6:8], v3")
            e(f"v_readfirstlane_b32 s44, v5\ns_add_u32 s40, s40, 1\ns_add_u32 s41, s41, 4096")
            e(f"s_lshl_b32 s44, s44, 1\ns_add_u32 s44, s44, {2*NSLOT-ng+1}")
            e(f"s_cmp_lt_u32 s41, 0x200000\ns_cbranch_scc1 {top}")
            if ph == 0:
                e("s_mov_b32 s41, 0")
                self.stamp(1)
        for k in range(ng - 1, -1, -1):
            e(f"v_mov_b32 v4, {1024-k}\ns_waitcnt vmcnt({4*k})\nds_write_b32 v2, v4")
        self.stamp(2)
        self.end()
        for ph in range(2):
            e(f"L_lds{ph}:\ns_sleep 1\nds_read_b96 v[6:8], v3\ns_waitcnt lgkmcnt(0)\nv_min3_u32 v5, v6, v7, v8")
            self.budget()
            if self.stamps:
                e("s_add_u32 s98, s98, 1")
            e(f"v_readfirstlane_b32 s44, v5\ns_lshl_b32 s44, s44, 1\ns_add_u32 s44, s44, {2*NSLOT-ng+1}")
            e(f"s_cmp_lt_u32 s40, s44\ns_cbranch_scc1 L_ldb{ph}\ns_branch L_lds{ph}")

    def consumer(self):
        e = self.e
        NP = self.prepull
        BUF = [96 + 32 * u for u in range(NP)]
        QB, DQ, O0, O1, AP, MK, P = 64, 16, 20, 24, 32, 28, 12
        vK, vV, vA, vM, vS, vSL = 3, 4, 5, 6, 7, 8

        def pull(buf, vbase, after=None):
            e("s_lshl_b32 s43, s40, 1\ns_add_u32 s43, s43, 2")
            self.lds_wait(vM, FULL - MISC, 42, "s43", 1)
            e(f"s_and_b32 s44, s40, {NSLOT-1}\ns_lshl_b32 s44, s44, 13\nv_add_u32 v{vA}, s44, v{vbase}")
            for k in range(8):
                e(f"ds_read_b128 v[{buf+4*k}:{buf+4*k+3}], v{vA} offset:{(k>>1)*2048+(k&1)*256}")

        def release():
            e(f"v_mov_b32 v1, s41\nds_write_b32 v9, v1")

        def qk(buf, counted):
            for k in range(8):
                if counted:
                    e(f"s_waitcnt lgkmcnt({7-k})")
                c = "0" if k == 0 else f"v[{DQ}:{DQ+3}]"
                e(f"v_mfma_f32_16x16x32_bf16 v[{DQ}:{DQ+3}], v[{buf+4*k}:{buf+4*k+3}], v[{QB+4*k}:{QB+4*k+3}], {c}")
            if counted:
                release()
                e("s_nop 5")
            else:
                e("s_nop 7")
            e(f"v_mov_b32_dpp v10, v{DQ} quad_perm:[0,0,0,0] {DPPF}")
            e(f"v_mov_b32_dpp v11, v{DQ+2} quad_perm:[2,2,2,2] {DPPF}\ns_nop 0")
            e(f"v_add_f32_dpp v10, v{DQ+1}, v10 quad_perm:[1,1,1,1] {DPPF}")
            e(f"v_add_f32_dpp v11, v{DQ+3}, v11 quad_perm:[3,3,3,3] {DPPF}")
            e("v_add_f32 v10, v10, v11")
            self.rbf1(10)

        e("L_consumer:\ns_sub_u32 s30, s3, 1\ns_mov_b32 s31, 0x200000\ns_mov_b32 s42, 0")
        e(f"v_mov_b32 v{vM}, {MISC}")
        e(f"s_cmp_lg_u32 s30, 0\ns_cbranch_scc1 L_noinit")
        e(f"v_lshl_add_u32 v1, v0, 3, v{vM}\nv_mov_b32 v10, 0\nv_mov_b32 v11, 0\nds_write_b64 v1, v[10:11]\nL_noinit:")
        e("v_lshrrev_b32 v13, 4, v0\nv_and_b32 v14, 15, v0\nv_bfe_u32 v15, v0, 2, 2\nv_and_b32 v2, 3, v0")
        e(f"v_lshlrev_b32 v{vK}, 6, v13\nv_lshl_add_u32 v{vK}, v2, 4, v{vK}\nv_mov_b32 v12, v{vK}")
        e(f"v_lshl_add_u32 v{vK}, v15, 9, v{vK}")
        e(f"v_lshlrev_b32 v{vV}, 9, v13\nv_lshl_add_u32 v{vV}, v14, 4, v{vV}")
        e(f"s_mul_i32 s45, s30, {SC_STRIDE}\ns_add_u32 s45, s45, {SC}")
        e(f"v_and_b32 v{vS}, 60, v0\nv_add_u32 v{vS}, s45, v{vS}")
        e(f"v_lshlrev_b32 v{vSL}, 4, v0\nv_add_u32 v{vSL}, s45, v{vSL}")
        e(f"s_lshl_b32 s46, s30, 2\ns_add_u32 s46, s46, {FREE}\nv_mov_b32 v9, s46")
        e("v_and_b32 v1, 1, v0\nv_mov_b32 v10, 0xffff\nv_lshlrev_b32 v1, 4, v1\nv_lshlrev_b32 v10, v1, v10")
        e("v_lshrrev_b32 v1, 1, v14")
        for r in range(4):
            e(f"v_cmp_eq_u32 vcc, {r}, v1\ns_nop 1\nv_cndmask_b32 v{MK+r}, 0, v10, vcc")
        for r in range(8):
            e(f"v_mov_b32 v{O0+r}, 0")
        e("s_waitcnt lgkmcnt(0)\ns_barrier")
        e("s_mov_b32 s40, s30")
        for u in range(NP):
            pull(BUF[u], vK)
            e("s_add_u32 s41, s40, 3\ns_waitcnt lgkmcnt(0)")
            release()
            e("s_mov_b32 s40, s41")
        e("s_mov_b32 s47, 0")
        self.stamp(0)
        self.lds_wait(vM, QRDY - MISC, 47, 1, 1)
        self.stamp(1)
        e(f"v_add_u32 v12, {QV}, v12")
        e(f"ds_read_b128 v[{AP}:{AP+3}], v12\nds_read_b128 v[{AP+4}:{AP+7}], v12 offset:256")
        for r in range(4):
            e(f"v_mov_b32 v{DQ+r}, 0xff800000")
        e(f"ds_write_b128 v{vSL}, v[{DQ}:{DQ+3}] offset:5120\ns_waitcnt lgkmcnt(0)")
        for t in range(4):
            e(f"v_cmp_eq_u32 vcc, {t}, v15\ns_nop 1")
            for k in range(8):
                e(f"v_cndmask_b32 v{QB+8*t+k}, 0, v{AP+k}, vcc")
        e("s_nop 1")
        qk(BUF[0], False)
        e(f"ds_write_b32 v{vS}, v10")
        e(f"v_add_u32 v2, {64*NP}, v{vS}\ns_add_u32 s48, s30, 256")
        e("L_kloop:")
        e("s_add_u32 s41, s40, 3\ns_cmp_lt_u32 s41, 256\ns_cselect_b32 s41, s41, s48")
        pull(BUF[0], vK)
        qk(BUF[0], True)
        e("ds_write_b32 v2, v10\nv_add_u32 v2, 64, v2")
        e("s_mov_b32 s40, s41\ns_cmp_lt_u32 s40, 256\ns_cbranch_scc1 L_kloop")
        for u in range(1, NP):
            qk(BUF[u], False)
            e(f"ds_write_b32 v{vS}, v10 offset:{64*u}")
        self.stamp(2)
        S = BUF[0]
        for k in range(6):
            e(f"ds_read_b128 v[{S+4*k}:{S+4*k+3}], v{vSL} offset:{1024*k}")
        e("s_waitcnt lgkmcnt(0)")
        e(f"v_max_f32 v10, v{S}, v{S+1}")
        for k in range(2, 24, 2):
            e(f"v_max3_f32 v10, v10, v{S+k}, v{S+k+1}")
        self.wave_reduce("v_max_f32", [10])
        e(f"v_readlane_b32 s50, v10, 63\ns_mov_b32 s51, {hex(C2)}\ns_nop 0")
        for k in range(24):
            e(f"v_subrev_f32 v{S+k}, s50, v{S+k}")
        for k in range(24):
            e(f"v_mul_f32 v{S+k}, s51, v{S+k}")
        for k in range(24):
            e(f"v_exp_f32 v{S+k}, v{S+k}")
        e(f"v_add_f32 v10, v{S}, v{S+1}")
        for k in range(2, 24):
            e(f"v_add_f32 v10, v10, v{S+k}")
        for k in range(24):
            e(f"v_cvt_pk_bf16_f32 v{S+k}, v{S+k}, v{S+k}")
        for k in range(6):
            e(f"ds_write_b128 v{vSL}, v[{S+4*k}:{S+4*k+3}] offset:{1024*k}")
        self.wave_reduce("v_add_f32", [10])
        e(f"v_readlane_b32 s52, v10, 63\nv_mov_b32 v{DQ}, s50\nv_mov_b32 v{DQ+2}, 1\nv_mov_b32 v{DQ+3}, 1")
        e(f"v_mov_b32 v{DQ+1}, s52\ns_lshl_b32 s46, s30, 4\ns_add_u32 s46, s46, {ML}\nv_mov_b32 v1, s46")
        e(f"ds_write_b128 v1, v[{DQ}:{DQ+3}]\nv_mov_b32 v2, v{vS}")
        self.stamp(3)
        e("L_vloop:")
        e(f"s_add_u32 s41, s40, 3\nds_read_b32 v{P}, v2\nv_add_u32 v2, 64, v2\ns_waitcnt lgkmcnt(0)")
        for t in range(4):
            for r in range(4):
                e(f"v_and_b32_dpp v{AP+4*t+r}, v{P}, v{MK+r} row_newbcast:{4*t} {DPPF}")
        pull(BUF[0], vV)
        for k in range(8):
            o = O0 if k % 2 == 0 else O1
            a = AP + 4 * (k >> 1)
            e(f"s_waitcnt lgkmcnt({7-k})")
            e(f"v_mfma_f32_16x16x32_bf16 v[{o}:{o+3}], v[{a}:{a+3}], v[{BUF[0]+4*k}:{BUF[0]+4*k+3}], v[{o}:{o+3}]")
        release()
        e("s_mov_b32 s40, s41\ns_cmp_lt_u32 s40, 512\ns_cbranch_scc1 L_vloop")
        e("v_lshlrev_b32 v1, 5, v14\nv_lshl_add_u32 v1, v13, 4, v1\nv_add_u32 v1, s45, v1")
        e("s_mov_b32 exec_hi, 0")
        e(f"ds_write_b128 v1, v[{O0}:{O0+3}]\nds_write_b128 v1, v[{O1}:{O1+3}] offset:512")
        e("s_waitcnt lgkmcnt(0)\ns_barrier")
        self.stamp(4)
        self.end()

    def unit_mfma_lds(self, B, A, vA, nsteps, D):
        for s in range(nsteps):
            self.e(f"ds_read_b128 v[{A+4*s}:{A+4*s+3}], v{vA} offset:{64*s}")
        for s in range(nsteps):
            self.e(f"s_waitcnt lgkmcnt({nsteps-1-s})")
            c = "0" if s == 0 else f"v[{D}:{D+3}]"
            self.e(f"v_mfma_f32_16x16x32_bf16 v[{D}:{D+3}], v[{A+4*s}:{A+4*s+3}], v[{B+4*s}:{B+4*s+3}], {c}")
        self.e("s_nop 7")

    def unit_mfma_dpp(self, B, src, A, D):
        def bc(s):
            for r in range(4):
                self.e(f"v_mov_b32_dpp v{A+4*(s%3)+r}, v{src+r} row_newbcast:{s} {DPPF}")
        self.e("s_nop 1")
        bc(0)
        for s in range(14):
            if s < 13:
                bc(s + 1)
            else:
                self.e("s_nop 0")
            a = A + 4 * (s % 3)
            c = "0" if s == 0 else f"v[{D}:{D+3}]"
            self.e(f"v_mfma_f32_16x16x32_bf16 v[{D}:{D+3}], v[{a}:{a+3}], v[{B+4*s}:{B+4*s+3}], {c}")
        self.e("s_nop 7")

    def unit_load(self, dst, nsteps, srd, stride):
        e = self.e
        e(f"v_mul_u32_u24 v1, {stride}, v6\nv_add_u32 v1, v1, v7")
        for s in range(0, nsteps, 2):
            self.dma_step(1, srd, "s57", self.wpol)
            e(f"s_add_u32 s58, s58, {32*stride}")
            self.dma_step(1, srd, "s59", self.wpol)
            e(f"s_add_u32 s58, s58, {32*stride}\ns_waitcnt vmcnt(0)")
            self.tr_reads(dst + 4 * s, 8, 0)
            self.tr_reads(dst + 4 * s + 4, 8, 1024)
            e("s_waitcnt lgkmcnt(0)")

    def service(self):
        e = self.e
        WO, W1, W2 = 32, 64, 120
        OCB, SB, GA, XP, GB, F = 176, 184, 192, 194, 196, 197
        RAW, AD, DD = 200, 232, 244
        vT8, vT16, vM = 10, 11, 12
        LM, HM = "s[50:51]", "s[52:53]"
        e("L_service:\ns_sub_u32 s30, s3, 4\ns_mov_b32 s31, 0x40000")
        e("s_and_b32 s48, s2, 7\ns_lshr_b32 s49, s2, 3")
        e("s_mov_b32 s50, 0x3fff3fff\ns_mov_b32 s51, 0x3fff3fff\ns_mov_b32 s52, 0x0fffffff\ns_mov_b32 s53, 0x0fffffff")
        e("v_mov_b32 v2, 0\nv_lshrrev_b32 v3, 4, v0\nv_and_b32 v4, 15, v0")
        e("v_lshlrev_b32 v5, 6, v4\nv_lshl_add_u32 v5, v3, 4, v5")
        e("v_lshrrev_b32 v6, 1, v0\nv_and_b32 v7, 1, v0\nv_lshlrev_b32 v7, 4, v7")
        e("v_lshlrev_b32 v8, 8, v3\nv_lshl_add_u32 v8, v4, 3, v8")
        e(f"v_mov_b32 v{vM}, {MISC}\ns_mov_b32 s47, 0\ns_waitcnt lgkmcnt(0)")
        self.srd(32, 28, WS_SIZE)
        e("s_cmp_eq_u32 s30, 0\ns_cbranch_scc1 L_pro")
        e("s_barrier")
        self.lds_wait(vM, QRDY - MISC, 47, 1, 8)
        e(f"ds_read_b32 v1, v{vM} offset:{TAG-MISC}\ns_waitcnt lgkmcnt(0)\nv_readfirstlane_b32 s56, v1")
        e(f"v_and_b32 v{vT8}, 0xff, v1\nv_and_b32 v{vT16}, 0xffff, v1\ns_branch L_bg")

        PB, PA, PRAW, PN, PC, PX = 64, 120, 176, 208, 224, 232
        e("L_pro:")
        self.stamp(0)
        e("s_load_dword s56, s[28:29], 0")
        self.srd(36, 20, 1792)
        self.srd(40, 4, 1792)
        for k in range(16):
            e(f"v_mov_b32 v{PC+k}, 0")
        e(f"s_mov_b64 exec, {LM}")
        e(f"buffer_load_dwordx4 v[{PC}:{PC+3}], v5, s[36:39], 0 offen")
        e(f"buffer_load_dwordx4 v[{PC+4}:{PC+7}], v5, s[36:39], 0 offen offset:896")
        e(f"buffer_load_dwordx4 v[{PX}:{PX+3}], v5, s[40:43], 0 offen")
        e(f"buffer_load_dwordx4 v[{PX+4}:{PX+7}], v5, s[40:43], 0 offen offset:896")
        e("s_mov_b64 exec, -1")
        self.srd(36, 22, 448 * 5376)
        self.srd(40, 10, 448 * 8192)
        e("s_lshr_b32 s54, s49, 2\ns_lshl_b32 s54, s54, 3\ns_add_u32 s54, s54, s48")
        e("s_and_b32 s55, s49, 3\ns_lshl_b32 s46, s54, 2\ns_add_u32 s55, s55, s46")
        e("s_cmp_ge_u32 s54, 42\ns_cbranch_scc1 L_nomod1")
        e("v_mul_u32_u24 v1, 5376, v6\nv_add_u32 v1, v1, v7\ns_lshl_b32 s58, s55, 5")
        for s in range(14):
            self.dma_step(1, 36, PST_MOD + 1024 * s, self.wpol)
            e(f"s_add_u32 s58, s58, {32*5376}")
        e("L_nomod1:")
        e("s_lshl_b32 s46, s48, 5\ns_add_u32 s46, s46, s49")
        e("v_lshl_add_u32 v1, v6, 13, v7\ns_lshl_b32 s58, s46, 5")
        for s in range(14):
            self.dma_step(1, 40, PST_WQ + 1024 * s, self.wpol)
            e(f"s_add_u32 s58, s58, {32*8192}")
        e("s_barrier")
        e(f"v_add_u32 v13, {AIM}, v5")
        e(f"v_bfe_u32 v1, v0, 2, 1\nv_mul_u32_u24 v14, 896, v1\nv_lshl_add_u32 v14, v3, 4, v14\nv_add_u32 v14, {AIM}, v14")
        e(f"v_add_u32 v15, {PST_MOD}, v8")
        e("s_waitcnt lgkmcnt(0)\ns_add_u32 s56, s56, 1")
        e(f"s_and_b32 s60, s56, 0xff\nv_mov_b32 v{vT8}, s60\ns_and_b32 s60, s56, 0xffff\nv_mov_b32 v{vT16}, s60")
        e("s_cmp_ge_u32 s54, 42\ns_cbranch_scc1 L_nomod2")
        e("s_waitcnt vmcnt(30)")
        X = list(range(PRAW, PRAW + 16))
        self.unpack(list(range(PC, PC + 8)), X)
        self.silu(X, list(range(PRAW + 16, PRAW + 32)))
        for k in range(8):
            e(f"v_cvt_pk_bf16_f32 v{PC+k}, v{X[2*k]}, v{X[2*k+1]}")
        e(f"s_mov_b64 exec, {LM}\nds_write_b128 v13, v[{PC}:{PC+3}]\nds_write_b128 v13, v[{PC+4}:{PC+7}] offset:896")
        e("s_mov_b64 exec, -1\ns_waitcnt vmcnt(14)")
        self.stamp(1)
        for s in range(14):
            self.tr_reads(PB + 4 * s, 15, 1024 * s)
        e("s_waitcnt lgkmcnt(0)")
        self.unit_mfma_lds(PB, PA, 14, 14, DD)
        self.rbf1(DD)
        e(f"v_or_b32 v{DD}, v{DD}, v{vT16}")
        e(f"v_mul_u32_u24 v1, {2688*4}, v3\nv_lshl_add_u32 v1, v4, 2, v1\ns_lshl_b32 s58, s55, 6\ns_add_u32 s58, s58, {WS_MOD}")
        e(f"s_mov_b32 exec_hi, 0\nbuffer_store_dword v{DD}, v1, s[32:35], s58 offen sc1\ns_mov_b64 exec, -1")
        e("s_waitcnt vmcnt(1)\ns_branch L_mod3\nL_nomod2:\ns_waitcnt vmcnt(0)\nL_mod3:")
        self.stamp(2)
        for s in range(14):
            self.tr_reads(PB + 4 * s, 15, PST_WQ - PST_MOD + 1024 * s)
        self.unpack(list(range(PX, PX + 8)), list(range(PN, PN + 16)))
        for b in range(2):
            self.layernorm(list(range(PN + 8 * b, PN + 8 * b + 8)), list(range(16, 22)))
        e(f"v_lshlrev_b32 v9, 1, v5\ns_mov_b32 s58, {WS_MOD}\ns_mov_b32 s59, {WS_MOD+2688*4}")
        PCL = PA
        loads = []
        for b in range(2):
            for m in range(2):
                for hf in range(2):
                    k = (b * 2 + m) * 2 + hf
                    loads.append((4, PRAW + 4 * k, PCL + 4 * k, 9, f"s{58+b}", m * 448 * 4 + hf * 16))
        self.gather(loads, vT16, "WORD_0", LM)
        self.stamp(3)
        for b in range(2):
            SA = list(range(PCL + 16 * b, PCL + 16 * b + 8))
            CA = list(range(PCL + 16 * b + 8, PCL + 16 * b + 16))
            for r in CA:
                e(f"v_add_f32 v{r}, 1.0, v{r}")
            self.rbf_pairs(CA, list(range(16, 20)))
            self.modulate(list(range(PN + 8 * b, PN + 8 * b + 8)), CA, SA,
                          list(range(PC + 4 * b, PC + 4 * b + 4)), list(range(16, 20)))
        e(f"s_mov_b64 exec, {LM}\nds_write_b128 v13, v[{PC}:{PC+3}]\nds_write_b128 v13, v[{PC+4}:{PC+7}] offset:896")
        e("s_mov_b64 exec, -1\ns_waitcnt lgkmcnt(0)")
        self.unit_mfma_lds(PB, PA, 14, 14, DD)
        self.rbf1(DD)
        e(f"v_or_b32 v{DD}, v{DD}, v{vT16}")
        e(f"v_lshlrev_b32 v1, 14, v3\nv_lshl_add_u32 v1, v4, 2, v1\ns_lshl_b32 s58, s46, 6\ns_add_u32 s58, s58, {WS_Q}")
        e(f"s_mov_b32 exec_hi, 0\nbuffer_store_dword v{DD}, v1, s[32:35], s58 offen sc1\ns_mov_b64 exec, -1")
        self.stamp(4)
        e(f"v_lshlrev_b32 v9, 4, v0\ns_lshl_b32 s58, s49, 10\ns_add_u32 s58, s58, {WS_Q}")
        self.gather([(4, PRAW, PRAW + 4, 9, "s58", 0)], vT16, "WORD_0", "-1")
        e("s_mov_b32 s60, 0x07060302")
        e(f"v_perm_b32 v16, v{PRAW+1}, v{PRAW}, s60\nv_perm_b32 v17, v{PRAW+3}, v{PRAW+2}, s60")
        e(f"v_lshl_add_u32 v1, v0, 3, v{vM}\nds_write_b64 v1, v[16:17] offset:{QV-MISC}")
        e(f"v_mov_b32 v16, 1\nv_mov_b32 v17, s56\nds_write_b64 v{vM}, v[16:17] offset:{QRDY-MISC}")
        self.stamp(5)

        e("L_bg:")
        e(f"s_mul_i32 s57, s30, {STG_STRIDE}\ns_add_u32 s57, s57, {STG}\ns_add_u32 s59, s57, 1024\nv_add_u32 v8, s57, v8")
        e("s_cmp_eq_u32 s48, 7\ns_cbranch_scc1 L_bgdone")
        self.srd(36, 12, 4096 * 896)
        e(f"s_and_b32 s58, s49, 15\ns_mul_i32 s58, s58, {256*896}\ns_lshl_b32 s60, s48, 7\ns_add_u32 s58, s58, s60")
        e("s_lshl_b32 s60, s30, 5\ns_add_u32 s58, s58, s60")
        self.unit_load(WO, 8, 36, 896)
        e("s_cmp_lt_u32 s49, 24\ns_cbranch_scc1 L_bgdone")
        e("s_bfe_u32 s54, s49, 0x10002\ns_and_b32 s55, s49, 3\ns_lshl_b32 s60, s48, 2\ns_add_u32 s55, s55, s60")
        self.srd(36, 16, 448 * 3584)
        e("s_lshl_b32 s58, s55, 7\ns_lshl_b32 s60, s30, 5\ns_add_u32 s58, s58, s60")
        self.unit_load(W1, 14, 36, 3584)
        self.srd(36, 18, 1792 * 896)
        e(f"s_mul_i32 s58, s30, {448*896}\ns_lshl_b32 s60, s55, 5\ns_add_u32 s58, s58, s60")
        self.unit_load(W2, 14, 36, 896)
        e("v_and_b32 v1, 31, v0\nv_lshlrev_b32 v13, 2, v1\nv_lshrrev_b32 v1, 5, v0\nv_lshl_add_u32 v13, v1, 1, v13")
        e("s_mul_i32 s60, s30, 112\nv_add_u32 v13, s60, v13")
        self.srd(36, 4, 1792)
        e(f"v_lshlrev_b32 v14, 1, v13\ns_mul_i32 s58, s54, 896\nbuffer_load_dword v{XP}, v14, s[36:39], s58 offen")
        e(f"s_mul_i32 s58, s54, {2688*4}\ns_add_u32 s58, s58, {WS_MOD+896*4}\nv_lshlrev_b32 v9, 2, v13")
        self.gather([(2, RAW, GA, 9, "s58", 0)], vT16, "WORD_0", HM, sleep=8)
        e(f"v_and_b32 v{XP+1}, 0xffff0000, v{XP}\nv_lshlrev_b32 v{XP}, 16, v{XP}")
        e("v_lshlrev_b32 v9, 1, v5")
        self.gather([(4, RAW, SB, 9, "s58", 448 * 4), (4, RAW + 4, SB + 4, 9, "s58", 448 * 4 + 16),
                     (4, RAW + 8, OCB, 9, "s58", 896 * 4), (4, RAW + 12, OCB + 4, 9, "s58", 896 * 4 + 16)],
                    vT16, "WORD_0", LM, sleep=8)
        e(f"s_lshl_b32 s60, s55, 6\ns_add_u32 s58, s58, s60\ns_add_u32 s58, s58, {1344*4}\nv_lshlrev_b32 v9, 2, v4")
        self.gather([(1, RAW, GB, 9, "s58", 0)], vT16, "WORD_0", "-1", sleep=8)
        for k in range(8):
            e(f"v_add_f32 v{OCB+k}, 1.0, v{OCB+k}")
        self.rbf_pairs(list(range(OCB, OCB + 8)), list(range(16, 20)))
        e("L_bgdone:")
        e("s_cmp_lg_u32 s30, 0\ns_cbranch_scc1 L_tail0")

        top, go = self.lab("ml"), self.lab("mlgo")
        e(f"{top}:")
        for i in range(3):
            e(f"ds_read_b128 v[{16+4*i}:{19+4*i}], v{vM} offset:{ML-MISC+16*i}")
        e("s_waitcnt lgkmcnt(0)\nv_min3_u32 v1, v18, v22, v26\ns_nop 0\nv_readfirstlane_b32 s60, v1")
        e(f"s_cmp_lg_u32 s60, 0\ns_cbranch_scc1 {go}")
        self.budget()
        e(f"s_sleep 32\ns_branch {top}\n{go}:")
        e(f"s_mov_b32 s61, {hex(C2)}\nv_max3_f32 v28, v16, v20, v24")
        for i in range(3):
            e(f"v_sub_f32 v{18+4*i}, v{16+4*i}, v28\nv_mul_f32 v{18+4*i}, s61, v{18+4*i}\nv_exp_f32 v{18+4*i}, v{18+4*i}")
        e("s_nop 0\nv_mul_f32 v29, v17, v18\nv_fmac_f32 v29, v21, v22\nv_fmac_f32 v29, v25, v26")
        e(f"v_or_b32 v{RAW}, v28, v{vT16}\nv_and_b32 v1, 0xffff0000, v29\nv_or_b32 v{RAW+1}, v1, v{vT16}")
        e(f"v_lshlrev_b32 v1, 16, v29\nv_or_b32 v{RAW+2}, v1, v{vT16}\nv_mov_b32 v{RAW+3}, v{vT16}")
        e(f"s_lshl_b32 s58, s49, 8\ns_add_u32 s58, s58, {WS_ML}\ns_lshl_b32 s60, s48, 4\nv_mov_b32 v1, s60")
        e(f"s_mov_b64 exec, 1\nbuffer_store_dwordx4 v[{RAW}:{RAW+3}], v1, s[32:35], s58 offen sc1\ns_mov_b64 exec, -1")
        e("s_mov_b32 s47, 0")
        self.lds_wait(vM, FULL - MISC, 47, 640, 32)
        e("v_and_b32 v9, 7, v0\nv_lshlrev_b32 v9, 4, v9")
        self.gather([(4, RAW + 4, RAW + 8, 9, "s58", 0)], vT16, "WORD_0", "-1", sleep=16)
        m, l = RAW + 8, RAW + 9
        e(f"v_lshrrev_b32 v{l+1}, 16, v{l+1}\nv_or_b32 v{l}, v{l}, v{l+1}\nv_mov_b32 v28, v{m}")
        oct_steps = ["quad_perm:[1,0,3,2]", "quad_perm:[2,3,0,1]", "row_half_mirror"]
        for st in oct_steps:
            e(f"s_nop 1\nv_max_f32_dpp v28, v28, v28 {st} {DPPF}")
        e(f"v_sub_f32 v{m}, v{m}, v28\nv_mul_f32 v{m}, s61, v{m}\nv_exp_f32 v{m}, v{m}\ns_nop 0\nv_mul_f32 v29, v{m}, v{l}")
        for st in oct_steps:
            e(f"s_nop 1\nv_add_f32_dpp v29, v29, v29 {st} {DPPF}")
        e("v_rcp_f32 v29, v29")
        for i in range(3):
            e(f"v_sub_f32 v{F+i}, v{16+4*i}, v28\nv_mul_f32 v{F+i}, s61, v{F+i}\nv_exp_f32 v{F+i}, v{F+i}\ns_nop 0")
            e(f"v_mul_f32 v{F+i}, v{F+i}, v29")
        e(f"v_lshlrev_b32 v9, 4, v0\nv_add_u32 v14, {SC}, v9\ns_lshl_b32 s58, s2, 10\ns_add_u32 s58, s58, {WS_OP}")
        e("s_mov_b32 s60, 0xffffff00\ns_barrier")
        if self.stamps:
            self.stamp(6)
        for i in range(3):
            e(f"ds_read_b128 v[{16+4*i}:{19+4*i}], v14 offset:{SC_STRIDE*i}")
        e("s_waitcnt lgkmcnt(2)")
        for k in range(4):
            e(f"v_mul_f32 v{16+k}, v{16+k}, v{F}")
        for i in (1, 2):
            e(f"s_waitcnt lgkmcnt({2-i})")
            for k in range(4):
                e(f"v_fmac_f32 v{16+k}, v{16+4*i+k}, v{F+i}")
        for k in range(4):
            e(f"v_and_or_b32 v{16+k}, v{16+k}, s60, v{vT8}")
        e("buffer_store_dwordx4 v[16:19], v9, s[32:35], s58 offen sc1\ns_branch L_tail1")
        e("L_tail0:\ns_barrier")
        if self.stamps:
            self.stamp(0)
        e("L_tail1:\ns_cmp_eq_u32 s48, 7\ns_cbranch_scc1 L_fin")

        e(f"s_lshl_b32 s58, s49, 13\ns_lshl_b32 s60, s30, 8\ns_add_u32 s58, s58, s60\ns_add_u32 s58, s58, {WS_OP}")
        e("s_add_u32 s59, s58, 4096\nv_lshlrev_b32 v9, 2, v0")
        e(f"s_lshl_b32 s60, s30, 7\ns_add_u32 s60, s60, {QV}\nv_lshl_add_u32 v14, v0, 1, s60")
        e(f"v_lshlrev_b32 v15, 4, v3\nv_add_u32 v15, {QV}, v15")
        self.gather([(1, RAW + k, 20 + k, 9, f"s{58+(k>>2)}", (k & 3) * 1024) for k in range(8)],
                    vT8, "BYTE_0", "-1")
        e("v_add_f32 v20, v20, v21\nv_add_f32 v22, v22, v23\nv_add_f32 v24, v24, v25\nv_add_f32 v26, v26, v27")
        e("v_add_f32 v20, v20, v22\nv_add_f32 v24, v24, v26\nv_add_f32 v20, v20, v24")
        e("v_cvt_pk_bf16_f32 v20, v20, v20\nds_write_b16 v14, v20\ns_waitcnt lgkmcnt(0)\ns_barrier")
        if self.stamps:
            e("s_cmp_eq_u32 s30, 0\ns_cbranch_scc1 L_st1")
            self.stamp(1)
            e("L_st1:")
        e(f"s_mul_i32 s58, s49, {448*4}\ns_lshl_b32 s60, s48, 8\ns_add_u32 s58, s58, s60")
        e(f"s_lshl_b32 s60, s30, 6\ns_add_u32 s58, s58, s60\ns_add_u32 s58, s58, {WS_Y}\ns_mov_b32 s60, 0xffffff00")
        self.unit_mfma_lds(WO, RAW, 15, 8, DD)
        e(f"v_and_or_b32 v{DD}, v{DD}, s60, v{vT8}")
        e(f"s_mov_b64 exec, 0xffff\nbuffer_store_dword v{DD}, v9, s[32:35], s58 offen sc1\ns_mov_b64 exec, -1")
        e("s_cmp_lt_u32 s49, 24\ns_cbranch_scc1 L_fin")

        e(f"v_lshrrev_b32 v1, 5, v0\nv_mul_u32_u24 v1, {8*448*4-8}, v1\nv_lshl_add_u32 v9, v13, 2, v1")
        e(f"s_mul_i32 s58, s54, {16*448*4}\ns_add_u32 s40, s58, {WS_Y}")
        for k in range(1, 4):
            e(f"s_add_u32 s{40+k}, s40, {k*2*448*4}")
        e(f"v_lshl_add_u32 v14, v13, 1, v{vM}\nv_add_u32 v15, v5, v{vM}")
        e(f"s_lshl_b32 s60, s55, 5\ns_add_u32 s60, s60, {AIM}\nv_lshl_add_u32 v30, v4, 1, s60")
        for k in range(4):
            e(f"v_mov_b32 v{248+k}, 0")
        CL = WO
        self.gather([(4, RAW + 4 * k, CL + 4 * k, 9, f"s{40+(k>>1)}", (k & 1) * 448 * 4) for k in range(8)],
                    vT8, "BYTE_0", HM)
        if self.stamps:
            e("s_cmp_eq_u32 s30, 0\ns_cbranch_scc1 L_st2")
            self.stamp(2)
            e("L_st2:")
        for st in (16, 8, 4):
            for k in range(0, st, 2):
                e(f"v_pk_add_f32 v[{CL+k}:{CL+k+1}], v[{CL+k}:{CL+k+1}], v[{CL+st+k}:{CL+st+k+1}]")
        e(f"s_nop 1\nv_permlane32_swap_b32 v{CL}, v{CL+2}\nv_permlane32_swap_b32 v{CL+1}, v{CL+3}")
        e(f"v_add_f32 v{CL}, v{CL}, v{CL+2}\nv_add_f32 v{CL+1}, v{CL+1}, v{CL+3}")
        self.rbf_pairs([CL, CL + 1], [16])
        e(f"v_mul_f32 v{CL}, v{CL}, v{GA}\nv_mul_f32 v{CL+1}, v{CL+1}, v{GA+1}")
        self.rbf_pairs([CL, CL + 1], [16])
        e(f"v_add_f32 v{CL}, v{CL}, v{XP}\nv_add_f32 v{CL+1}, v{CL+1}, v{XP+1}")
        e(f"v_cvt_pk_bf16_f32 v16, v{CL}, v{CL+1}")
        e(f"s_mov_b64 exec, {HM}\nds_write_b32 v14, v16 offset:{AIM-MISC}\ns_mov_b64 exec, {LM}")
        e("s_waitcnt lgkmcnt(0)\ns_barrier")
        e(f"ds_read_b128 v[248:251], v15 offset:{AIM-MISC}\ns_mov_b64 exec, -1\nds_read_u16 v31, v30\ns_waitcnt lgkmcnt(1)")
        X = list(range(CL, CL + 8))
        self.unpack([248, 249, 250, 251], X)
        self.layernorm(X, list(range(16, 22)))
        self.modulate(X, list(range(OCB, OCB + 8)), list(range(SB, SB + 8)), [248, 249, 250, 251], list(range(16, 20)))
        e(f"s_mul_i32 s58, s54, {1792*4}\ns_add_u32 s59, s58, {WS_HID}\ns_lshl_b32 s60, s55, 8\ns_add_u32 s58, s59, s60")
        e("s_lshl_b32 s60, s30, 6\ns_add_u32 s58, s58, s60\nv_lshlrev_b32 v9, 2, v0")
        self.unit_mfma_dpp(W1, 248, AD, DD)
        self.rbf1(DD)
        self.silu([DD], [16])
        self.rbf1(DD)
        e(f"v_or_b32 v{DD}, v{DD}, v{vT16}")
        e(f"s_mov_b64 exec, 0xffff\nbuffer_store_dword v{DD}, v9, s[32:35], s58 offen sc1\ns_mov_b64 exec, -1")
        if self.stamps:
            e("s_cmp_eq_u32 s30, 0\ns_cbranch_scc1 L_st3")
            self.stamp(3)
            e("L_st3:")

        e(f"s_mul_i32 s60, s30, {448*4}\ns_add_u32 s58, s59, s60\nv_lshlrev_b32 v9, 1, v5")
        e(f"s_lshl_b32 s60, s30, 2\ns_add_u32 s60, s60, {RED}\nv_lshl_add_u32 v14, v4, 4, s60\ns_mov_b32 s61, 0x07060302")
        self.gather([(4, RAW, CL, 9, "s58", 0), (4, RAW + 4, CL + 4, 9, "s58", 16)], vT16, "WORD_0", LM)
        if self.stamps:
            e("s_cmp_eq_u32 s30, 0\ns_cbranch_scc1 L_st4")
            self.stamp(4)
            e("L_st4:")
        for k in range(4):
            e(f"v_perm_b32 v{248+k}, v{RAW+2*k+1}, v{RAW+2*k}, s61")
        self.unit_mfma_dpp(W2, 248, AD, DD)
        e(f"ds_write_b32 v14, v{DD}\ns_waitcnt lgkmcnt(0)\ns_barrier")
        e("s_cmp_lg_u32 s30, 0\ns_cbranch_scc1 L_fin")
        e("ds_read_b128 v[16:19], v14")
        self.srd(36, 24, 1792)
        e("s_mul_i32 s58, s54, 896\ns_lshl_b32 s60, s55, 5\ns_add_u32 s58, s58, s60")
        e("v_lshlrev_b32 v9, 1, v0\nv_lshlrev_b32 v31, 16, v31\ns_waitcnt lgkmcnt(0)")
        e("v_add_f32 v16, v16, v17\nv_add_f32 v18, v18, v19\nv_add_f32 v16, v16, v18")
        self.rbf1(16)
        e(f"v_mul_f32 v16, v16, v{GB}")
        self.rbf1(16)
        e("v_add_f32 v16, v16, v31\nv_cvt_pk_bf16_f32 v16, v16, v16")
        e("s_mov_b64 exec, 0xffff\nbuffer_store_short v16, v9, s[36:39], s58 offen")
        e(f"s_cmp_lg_u32 s2, 192\ns_cbranch_scc1 L_fin")
        e(f"v_mov_b32 v16, s56\ns_mov_b64 exec, 1\nbuffer_store_dword v16, v2, s[32:35], 0 offen sc1")
        e("L_fin:")
        self.stamp(7)
        self.end()

    def build(self, header):
        e = self.e
        K = NAME + "_kernel"
        self.L.append(header.rstrip("\n"))
        self.L.append(f"; @launch grid=(256,1,1) block=(512,1,1) lds={LDS_BYTES}")
        self.L.append('.amdgcn_target "amdgcn-amd-amdhsa--gfx950"\n.text')
        self.L.append(f".globl {K}\n.p2align 8\n.type {K},@function\n{K}:")
        e("s_cmp_ge_u32 s2, 256\ns_cbranch_scc1 L_end")
        e("s_load_dwordx16 s[4:19], s[0:1], 0\ns_load_dwordx8 s[20:27], s[0:1], 64\ns_load_dwordx2 s[28:29], s[0:1], 96")
        e("v_lshrrev_b32 v1, 6, v0\nv_and_b32 v0, 63, v0\nv_readfirstlane_b32 s3, v1")
        self.stamp_init()
        e("s_cmp_ge_u32 s3, 4\ns_cbranch_scc1 L_service\ns_cmp_lg_u32 s3, 0\ns_cbranch_scc1 L_consumer")
        self.loader()
        e("L_end:\ns_endpgm")
        self.consumer()
        self.service()
        self.L.append(f""".section .rodata,"a"
.p2align 6
.amdhsa_kernel {K}
  .amdhsa_next_free_vgpr 256
  .amdhsa_next_free_sgpr 102
  .amdhsa_accum_offset 256
  .amdhsa_group_segment_fixed_size 0
  .amdhsa_kernarg_size 104
  .amdhsa_user_sgpr_count 2
  .amdhsa_user_sgpr_kernarg_segment_ptr 1
  .amdhsa_system_sgpr_workgroup_id_x 1
  .amdhsa_float_denorm_mode_32 3
.end_amdhsa_kernel""")
        return "\n".join(self.L) + "\n"


HEADER = """; Fused adaLN-conditioned block: cached multi-head attention (decode) + SiLU MLP, gfx950.
"""


def generate(**kw):
    return Gen(**kw).build(HEADER)


if __name__ == "__main__":
    import json
    kw = json.loads(sys.argv[2]) if len(sys.argv) > 2 else {}
    open(sys.argv[1], "w").write(generate(**kw))
```

```python
import struct
import sys

NAME = "adaLN_cond__mha_block_cached__dense_activation_silu__decode"

WS_EPOCH, WS_MOD, WS_Q, WS_OP, WS_Y, WS_ML, WS_Z, WS_CTR, WS_SIZE = (
    0, 0x1000, 0x10000, 0x20000, 0x60000, 0x6E000, 0x70000, 0x90000, 0xB0000)
WS_STAMP = 0xB0000
RING, NSLOT = 0, 16
SC, SC_STRIDE = 131072, 6144
STG = 149504
PST = 131072
MISC = 159744
FULL, FREE, QRDY, TAG, BAR, ML, QV, AIM, RED = (MISC, MISC + 256, MISC + 272, MISC + 276, MISC + 280,
                                                MISC + 288, MISC + 512, MISC + 1024, MISC + 2816)
LDS_BYTES = 163840


STAMPS = [("ld start", 0, 0), ("S0 start", 4, 0), ("S0 weights landed", 4, 1), ("S0 frags read", 4, 2),
          ("S0 mod gathered", 4, 3), ("S0 unit pub", 4, 4), ("S0 q ready", 4, 5), ("C prepull done", 1, 0),
          ("C q seen", 1, 1), ("ld K issued", 0, 1), ("C K done", 1, 2), ("C softmax done", 1, 3),
          ("ld done", 0, 2), ("T0 barrier", 5, 0), ("o gathered+bar", 5, 1), ("y gathered", 5, 2),
          ("hid barrier", 5, 3), ("z pub", 5, 4), ("bg done", 5, 5), ("S0 end", 4, 7)]


def f2u(x):
    return struct.unpack("<I", struct.pack("<f", x))[0]


LOG2E = 1.4426950408889634
C2 = f2u(LOG2E / 16.0)
DPPF = "row_mask:0xf bank_mask:0xf"


class Gen:
    def __init__(self, D=20, wpol="nt", stamps=False, prepull=5, kvpol="nt", qsleep=0, lev=None, period=32, pwait=11, nsh=4, cstart=96):
        self.L = []
        self.n = 0
        self.D = D
        self.wpol = wpol
        self.kvpol = kvpol
        self.stamps = stamps
        self.prepull = prepull
        self.qsleep = qsleep
        self.cstart = cstart
        assert cstart >= 64 and cstart % period == 0
        self.lev, self.period, self.pwait, self.nsh = lev, period, pwait, nsh

    def e(self, s):
        for line in s.split("\n"):
            line = line.strip()
            if not line:
                continue
            self.L.append(line if line.endswith(":") or line.startswith(";") else "    " + line)

    def lab(self, p):
        self.n += 1
        return f"L_{p}_{self.n}"

    def srd(self, d, base, size):
        self.e(f"s_mov_b32 s{d}, s{base}\ns_mov_b32 s{d+1}, s{base+1}\n"
               f"s_mov_b32 s{d+2}, {size}\ns_mov_b32 s{d+3}, 0x20000")

    def stamp(self, k):
        if self.stamps:
            self.e(f"s_memrealtime s[{84+2*k}:{85+2*k}]\ns_waitcnt lgkmcnt(0)")

    def stamp_init(self):
        if self.stamps:
            for k in range(8):
                self.e(f"s_mov_b64 s[{84+2*k}:{85+2*k}], 0")

    def stamp_flush(self):
        if self.stamps:
            self.e("s_mov_b64 exec, -1")
            self.srd(80, 28, WS_STAMP + 0x20000)
            for k in range(8):
                self.e(f"v_mov_b32 v{8+k}, s{84+2*k}")
            self.e(f"s_lshl_b32 s30, s2, 3\ns_add_u32 s30, s30, s3\ns_lshl_b32 s30, s30, 5\n"
                   f"s_add_u32 s30, s30, {WS_STAMP}\nv_mov_b32 v1, s30\ns_mov_b64 exec, 1\n"
                   "buffer_store_dwordx4 v[8:11], v1, s[80:83], 0 offen\n"
                   "buffer_store_dwordx4 v[12:15], v1, s[80:83], 0 offen offset:16")

    def end(self):
        self.stamp_flush()
        self.e("s_endpgm")

    def budget(self):
        self.e("s_sub_u32 s31, s31, 1\ns_cbranch_scc1 L_end")

    def wave_reduce(self, op, regs, nsteps=6):
        steps = ["quad_perm:[1,0,3,2] " + DPPF, "quad_perm:[2,3,0,1] " + DPPF, "row_half_mirror " + DPPF,
                 "row_mirror " + DPPF, "row_bcast:15 row_mask:0xa bank_mask:0xf",
                 "row_bcast:31 row_mask:0xc bank_mask:0xf"]
        for st in steps[:nsteps]:
            pad = 3 - len(regs) if st is not steps[0] else 2
            if pad > 0:
                self.e(f"s_nop {pad-1}")
            for r in regs:
                self.e(f"{op}_dpp v{r}, v{r}, v{r} {st}")
        self.e("s_nop 0")

    def rbf_pairs(self, regs, tmp):
        for k in range(0, len(regs), 2):
            self.e(f"v_cvt_pk_bf16_f32 v{tmp[k//2]}, v{regs[k]}, v{regs[k+1]}")
        self.unpack(tmp[:len(regs)//2], regs)

    def unpack(self, packed, regs):
        for k, p in enumerate(packed):
            self.e(f"v_lshlrev_b32 v{regs[2*k]}, 16, v{p}\nv_and_b32 v{regs[2*k+1]}, 0xffff0000, v{p}")

    def rbf1(self, r):
        self.e(f"v_cvt_pk_bf16_f32 v{r}, v{r}, v{r}\nv_and_b32 v{r}, 0xffff0000, v{r}")

    def silu(self, regs, tmp):
        for r, t in zip(regs, tmp):
            self.e(f"v_mul_f32 v{t}, {hex(f2u(-LOG2E))}, v{r}")
        for t in tmp[:len(regs)]:
            self.e(f"v_exp_f32 v{t}, v{t}")
        self.e("s_nop 0")
        for t in tmp[:len(regs)]:
            self.e(f"v_add_f32 v{t}, 1.0, v{t}")
        for t in tmp[:len(regs)]:
            self.e(f"v_rcp_f32 v{t}, v{t}")
        self.e("s_nop 0")
        for r, t in zip(regs, tmp):
            self.e(f"v_mul_f32 v{r}, v{r}, v{t}")

    def layernorm(self, X, t, extra=None):
        e = self.e
        S = X + (extra or [])
        e(f"v_add_f32 v{t[0]}, v{S[0]}, v{S[1]}\nv_mul_f32 v{t[1]}, v{S[0]}, v{S[0]}")
        e(f"v_fmac_f32 v{t[1]}, v{S[1]}, v{S[1]}")
        for r in S[2:]:
            e(f"v_add_f32 v{t[0]}, v{t[0]}, v{r}\nv_fmac_f32 v{t[1]}, v{r}, v{r}")
        if extra is None:
            self.wave_reduce("v_add_f32", [t[0], t[1]])
            e(f"v_readlane_b32 s60, v{t[0]}, 63\nv_readlane_b32 s61, v{t[1]}, 63")
            e(f"v_mov_b32 v{t[2]}, {hex(f2u(1.0/448))}")
            e(f"v_mul_f32 v{t[0]}, s60, v{t[2]}\nv_mul_f32 v{t[1]}, s61, v{t[2]}")
        else:
            self.wave_reduce("v_add_f32", [t[0], t[1]], nsteps=4)
            e(f"v_mov_b32 v{t[2]}, v{t[0]}\nv_mov_b32 v{t[3]}, v{t[1]}\ns_nop 1")
            e(f"v_permlane16_swap_b32 v{t[0]}, v{t[2]}\nv_permlane16_swap_b32 v{t[1]}, v{t[3]}")
            e(f"v_add_f32 v{t[0]}, v{t[0]}, v{t[2]}\nv_add_f32 v{t[1]}, v{t[1]}, v{t[3]}")
            e(f"v_mul_f32 v{t[0]}, {hex(f2u(1.0/448))}, v{t[0]}\nv_mul_f32 v{t[1]}, {hex(f2u(1.0/448))}, v{t[1]}")
        e(f"v_fma_f32 v{t[1]}, -v{t[0]}, v{t[0]}, v{t[1]}\nv_max_f32 v{t[1]}, 0, v{t[1]}")
        e(f"v_cvt_pk_bf16_f32 v{t[2]}, v{t[0]}, v{t[1]}")
        e(f"v_lshlrev_b32 v{t[0]}, 16, v{t[2]}\nv_and_b32 v{t[1]}, 0xffff0000, v{t[2]}")
        e(f"v_add_f32 v{t[1]}, {hex(f2u(1e-5))}, v{t[1]}")
        self.rbf1(t[1])
        e(f"v_sqrt_f32 v{t[1]}, v{t[1]}")
        for k in range(8):
            e(f"v_sub_f32 v{X[k]}, v{X[k]}, v{t[0]}")
        self.rbf1(t[1])
        e(f"v_rcp_f32 v{t[1]}, v{t[1]}")
        self.rbf_pairs(X, t[2:6])
        for k in range(8):
            e(f"v_mul_f32 v{X[k]}, v{X[k]}, v{t[1]}")
        self.rbf_pairs(X, t[2:6])

    def modulate(self, X, OC, SH, out, t):
        for k in range(8):
            self.e(f"v_mul_f32 v{X[k]}, v{X[k]}, v{OC[k]}")
        self.rbf_pairs(X, t)
        for k in range(8):
            self.e(f"v_add_f32 v{X[k]}, v{X[k]}, v{SH[k]}")
        for k in range(4):
            self.e(f"v_cvt_pk_bf16_f32 v{out[k]}, v{X[2*k]}, v{X[2*k+1]}")

    def gather(self, loads, vtag, sel, active, sleep=0):
        e = self.e
        top, done = self.lab("gat"), self.lab("gdone")
        for k in range(len(loads)):
            e(f"s_mov_b64 s[{64+2*k}:{65+2*k}], 1")
        e(f"s_mov_b64 exec, {active}\n{top}:")
        for k, (nd, raw, clean, va, so, imm) in enumerate(loads):
            sk = self.lab("gs")
            dst = f"v{raw}" if nd == 1 else f"v[{raw}:{raw+nd-1}]"
            suf = "" if nd == 1 else f"x{nd}"
            if len(loads) > 1:
                e(f"s_cmp_eq_u64 s[{64+2*k}:{65+2*k}], 0\ns_cbranch_scc1 {sk}")
            e(f"buffer_load_dword{suf} {dst}, v{va}, s[32:35], {so} offen offset:{imm} sc1")
            e(f"{sk}:")
        e("s_waitcnt vmcnt(0)")
        for k, (nd, raw, clean, va, so, imm) in enumerate(loads):
            for j in range(nd):
                e(f"v_xor_b32 v{clean+j}, v{raw+j}, v{vtag}")
            if nd == 1:
                chk = clean
            elif nd == 2:
                chk = 1
                e(f"v_or_b32 v1, v{clean}, v{clean+1}")
            else:
                chk = 1
                e(f"v_or3_b32 v1, v{clean}, v{clean+1}, v{clean+2}\nv_or_b32 v1, v1, v{clean+3}")
            e(f"v_cmp_ne_u32_sdwa s[{64+2*k}:{65+2*k}], v{chk}, v2 src0_sel:{sel} src1_sel:DWORD")
        e("s_or_b64 s[62:63], s[64:65], s[64:65]")
        for k in range(1, len(loads)):
            e(f"s_or_b64 s[62:63], s[62:63], s[{64+2*k}:{65+2*k}]")
        e(f"s_cbranch_scc0 {done}")
        self.budget()
        if sleep:
            e(f"s_sleep {sleep}")
        e(f"s_branch {top}\n{done}:\ns_mov_b64 exec, -1")

    def lds_wait(self, vaddr, off, sreg, need, sleep):
        e = self.e
        top, go = self.lab("lw"), self.lab("lgo")
        e(f"s_cmp_ge_u32 s{sreg}, {need}\ns_cbranch_scc1 {go}\n{top}:")
        e(f"ds_read_b32 v1, v{vaddr} offset:{off}\ns_waitcnt lgkmcnt(0)\nv_readfirstlane_b32 s{sreg}, v1")
        e(f"s_cmp_ge_u32 s{sreg}, {need}\ns_cbranch_scc1 {go}")
        self.budget()
        e(f"s_sleep {sleep}\ns_branch {top}\n{go}:")

    def dma_step(self, vaddr, srd, lds_sreg_or_imm, pol):
        self.e(f"s_mov_b32 m0, {lds_sreg_or_imm}\ns_nop 0")
        self.e(f"buffer_load_dwordx4 v{vaddr}, s[{srd}:{srd+3}], s58 offen {pol} lds")

    def tr_reads(self, dst, vtr, off):
        self.e(f"ds_read_b64_tr_b16 v[{dst}:{dst+1}], v{vtr} offset:{off}")
        self.e(f"ds_read_b64_tr_b16 v[{dst+2}:{dst+3}], v{vtr} offset:{off+512}")

    def loader(self):
        e, D = self.e, self.D
        lev = self.lev or [D]
        ctl = self.lev is not None
        P, PW = self.period, self.pwait
        ng = D // 4
        e("L_loader:\ns_setprio 3")
        e(f"v_lshlrev_b32 v1, 4, v0\nv_lshlrev_b32 v2, 2, v0\nv_add_u32 v2, {FULL}, v2\nv_mov_b32 v3, {FREE}")
        e("v_mov_b32 v6, 0\nv_mov_b32 v7, 0\nv_mov_b32 v8, 0")
        e("s_lshl_b32 s30, s2, 21\ns_mov_b32 s31, 0x200000\ns_waitcnt lgkmcnt(0)")
        self.stamp(0)
        e("s_add_u32 s32, s6, s30\ns_addc_u32 s33, s7, 0\ns_mov_b32 s34, 0x200000\ns_mov_b32 s35, 0x20000")
        e("s_add_u32 s36, s8, s30\ns_addc_u32 s37, s9, 0\ns_mov_b32 s38, 0x200000\ns_mov_b32 s39, 0x20000")
        for n in range(ng):
            e(f"s_mov_b32 m0, {n*4096}\ns_mov_b32 s41, {n*4096}")
            for k in range(4):
                e(f"buffer_load_dwordx4 v1, s[32:35], s41 offen offset:{k*1024} {self.kvpol} lds")
        e(f"s_mov_b32 s40, {ng}\ns_mov_b32 s41, {ng*4096}\ns_mov_b32 s44, {2*NSLOT}\ns_mov_b32 s45, {lev.index(D)}")
        if ctl:
            e(f"s_lshr_b32 s48, s2, 3\ns_and_b32 s48, s48, {self.nsh-1}\ns_lshl_b32 s48, s48, 8\ns_add_u32 s48, s48, {WS_CTR}")
        e("s_barrier")
        for ph, srd in enumerate((32, 36)):
            top, back, slow, go, cont, spec = (f"L_ld{x}{ph}" for x in ("", "b", "s", "g", "c", "x"))
            e(f"{top}:\ns_cmp_lt_u32 s40, s44\ns_cbranch_scc0 {slow}\n{back}:")
            e(f"s_and_b32 s42, s41, {NSLOT*8192-1}\ns_mov_b32 m0, s42")
            for q in range(len(lev) - 1, -1, -1):
                if q == len(lev) - 1 or lev[q] != lev[q + 1]:
                    e(f"s_sub_u32 s43, s40, {lev[q]//4-1}\ns_waitcnt vmcnt({lev[q]-4})")
                if q and lev[q] != lev[q - 1]:
                    e(f"s_cmp_ge_u32 s45, {q}\ns_cbranch_scc1 {go}")
            e(f"{go}:")
            for k in range(4):
                e(f"buffer_load_dwordx4 v1, s[{srd}:{srd+3}], s41 offen offset:{k*1024} {self.kvpol} lds")
            e("v_mov_b32 v4, s43\nds_write_b32 v2, v4")
            if ctl:
                e(f"s_and_b32 s46, s40, {P-1}\ns_cmp_le_u32 s46, {PW}\ns_cbranch_scc1 {spec}")
            e(f"L_ldr{ph}:\ns_waitcnt lgkmcnt(1)\nv_min3_u32 v5, v6, v7, v8\nds_read_b96 v[6:8], v3")
            e(f"v_readfirstlane_b32 s44, v5\ns_lshl_b32 s44, s44, 1\ns_add_u32 s44, s44, {2*NSLOT}")
            e(f"{cont}:\ns_add_u32 s40, s40, 1\ns_add_u32 s41, s41, 4096")
            e(f"s_cmp_lt_u32 s41, 0x200000\ns_cbranch_scc1 {top}")
            if ph == 0:
                e("s_mov_b32 s41, 0")
                self.stamp(1)
        for k in range(max(lev) // 4 - 1, -1, -1):
            e(f"s_max_u32 s43, s43, {1024-k}\nv_mov_b32 v4, s43\ns_waitcnt vmcnt({4*k})\nds_write_b32 v2, v4")
        self.stamp(2)
        self.end()
        for ph in range(2):
            e(f"L_lds{ph}:\ns_sleep 1\nds_read_b96 v[6:8], v3\ns_waitcnt lgkmcnt(0)\nv_min3_u32 v5, v6, v7, v8")
            self.budget()
            if self.stamps:
                e("s_add_u32 s98, s98, 1")
            e(f"v_readfirstlane_b32 s44, v5\ns_lshl_b32 s44, s44, 1\ns_add_u32 s44, s44, {2*NSLOT}")
            e(f"s_cmp_lt_u32 s40, s44\ns_cbranch_scc1 L_ldb{ph}\ns_branch L_lds{ph}")
            if ctl:
                e(f"L_ldx{ph}:\ns_cmp_lt_u32 s40, {self.cstart}\ns_cbranch_scc1 L_ldr{ph}")
                e(f"s_cmp_lg_u32 s46, 0\ns_cbranch_scc1 L_ldy{ph}")
                e(f"s_mov_b32 s47, 1\ns_atomic_add s47, s[28:29], s48 glc\ns_branch L_ldc{ph}")
                e(f"L_ldy{ph}:\ns_cmp_lg_u32 s46, {PW}\ns_cbranch_scc1 L_ldc{ph}")
                sh = (256 // self.nsh // len(lev)).bit_length() - 1
                e(f"s_waitcnt lgkmcnt(0)\ns_lshr_b32 s45, s47, {sh}\ns_add_u32 s48, s48, {256*self.nsh}")
                if self.stamps:
                    e("s_add_u32 s96, s96, s45")
                e(f"s_branch L_ldc{ph}")

    def consumer(self):
        e = self.e
        NP = self.prepull
        BUF = [96 + 32 * u for u in range(NP)]
        QB, DQ, O0, O1, AP, MK, P = 64, 16, 20, 24, 32, 28, 12
        vK, vV, vA, vM, vS, vSL = 3, 4, 5, 6, 7, 8

        def pull(buf, vbase, after=None):
            e("s_lshl_b32 s43, s40, 1\ns_add_u32 s43, s43, 2")
            self.lds_wait(vM, FULL - MISC, 42, "s43", 1)
            e(f"s_and_b32 s44, s40, {NSLOT-1}\ns_lshl_b32 s44, s44, 13\nv_add_u32 v{vA}, s44, v{vbase}")
            for k in range(8):
                e(f"ds_read_b128 v[{buf+4*k}:{buf+4*k+3}], v{vA} offset:{(k>>1)*2048+(k&1)*256}")

        def release():
            e(f"v_mov_b32 v1, s41\nds_write_b32 v9, v1")

        def qk(buf, counted):
            for k in range(8):
                if counted:
                    e(f"s_waitcnt lgkmcnt({7-k})")
                c = "0" if k == 0 else f"v[{DQ}:{DQ+3}]"
                e(f"v_mfma_f32_16x16x32_bf16 v[{DQ}:{DQ+3}], v[{buf+4*k}:{buf+4*k+3}], v[{QB+4*k}:{QB+4*k+3}], {c}")
            if counted:
                release()
                e("s_nop 5")
            else:
                e("s_nop 7")
            e(f"v_mov_b32_dpp v10, v{DQ} quad_perm:[0,0,0,0] {DPPF}")
            e(f"v_mov_b32_dpp v11, v{DQ+2} quad_perm:[2,2,2,2] {DPPF}\ns_nop 0")
            e(f"v_add_f32_dpp v10, v{DQ+1}, v10 quad_perm:[1,1,1,1] {DPPF}")
            e(f"v_add_f32_dpp v11, v{DQ+3}, v11 quad_perm:[3,3,3,3] {DPPF}")
            e("v_add_f32 v10, v10, v11")
            self.rbf1(10)

        e("L_consumer:\ns_sub_u32 s30, s3, 1\ns_mov_b32 s31, 0x200000\ns_mov_b32 s42, 0")
        e(f"v_mov_b32 v{vM}, {MISC}")
        e(f"s_cmp_lg_u32 s30, 0\ns_cbranch_scc1 L_noinit")
        e(f"v_lshl_add_u32 v1, v0, 3, v{vM}\nv_mov_b32 v10, 0\nv_mov_b32 v11, 0\nds_write_b64 v1, v[10:11]\nL_noinit:")
        e("v_lshrrev_b32 v13, 4, v0\nv_and_b32 v14, 15, v0\nv_bfe_u32 v15, v0, 2, 2\nv_and_b32 v2, 3, v0")
        e(f"v_lshlrev_b32 v{vK}, 6, v13\nv_lshl_add_u32 v{vK}, v2, 4, v{vK}\nv_mov_b32 v12, v{vK}")
        e(f"v_lshl_add_u32 v{vK}, v15, 9, v{vK}")
        e(f"v_lshlrev_b32 v{vV}, 9, v13\nv_lshl_add_u32 v{vV}, v14, 4, v{vV}")
        e(f"s_mul_i32 s45, s30, {SC_STRIDE}\ns_add_u32 s45, s45, {SC}")
        e(f"v_and_b32 v{vS}, 60, v0\nv_add_u32 v{vS}, s45, v{vS}")
        e(f"v_lshlrev_b32 v{vSL}, 4, v0\nv_add_u32 v{vSL}, s45, v{vSL}")
        e(f"s_lshl_b32 s46, s30, 2\ns_add_u32 s46, s46, {FREE}\nv_mov_b32 v9, s46")
        e("v_and_b32 v1, 1, v0\nv_mov_b32 v10, 0xffff\nv_lshlrev_b32 v1, 4, v1\nv_lshlrev_b32 v10, v1, v10")
        e("v_lshrrev_b32 v1, 1, v14")
        for r in range(4):
            e(f"v_cmp_eq_u32 vcc, {r}, v1\ns_nop 1\nv_cndmask_b32 v{MK+r}, 0, v10, vcc")
        for r in range(8):
            e(f"v_mov_b32 v{O0+r}, 0")
        e("s_waitcnt lgkmcnt(0)\ns_barrier")
        e("s_mov_b32 s40, s30")
        for u in range(NP):
            pull(BUF[u], vK)
            e("s_add_u32 s41, s40, 3\ns_waitcnt lgkmcnt(0)")
            release()
            e("s_mov_b32 s40, s41")
        e("s_mov_b32 s47, 0")
        self.stamp(0)
        self.lds_wait(vM, QRDY - MISC, 47, 1, 1)
        self.stamp(1)
        e(f"v_add_u32 v12, {QV}, v12")
        e(f"ds_read_b128 v[{AP}:{AP+3}], v12\nds_read_b128 v[{AP+4}:{AP+7}], v12 offset:256")
        for r in range(4):
            e(f"v_mov_b32 v{DQ+r}, 0xff800000")
        e(f"ds_write_b128 v{vSL}, v[{DQ}:{DQ+3}] offset:5120\ns_waitcnt lgkmcnt(0)")
        for t in range(4):
            e(f"v_cmp_eq_u32 vcc, {t}, v15\ns_nop 1")
            for k in range(8):
                e(f"v_cndmask_b32 v{QB+8*t+k}, 0, v{AP+k}, vcc")
        e("s_nop 1")
        qk(BUF[0], False)
        e(f"ds_write_b32 v{vS}, v10")
        e(f"v_add_u32 v2, {64*NP}, v{vS}\ns_add_u32 s48, s30, 256")
        e("L_kloop:")
        e("s_add_u32 s41, s40, 3\ns_cmp_lt_u32 s41, 256\ns_cselect_b32 s41, s41, s48")
        pull(BUF[0], vK)
        qk(BUF[0], True)
        e("ds_write_b32 v2, v10\nv_add_u32 v2, 64, v2")
        e("s_mov_b32 s40, s41\ns_cmp_lt_u32 s40, 256\ns_cbranch_scc1 L_kloop")
        for u in range(1, NP):
            qk(BUF[u], False)
            e(f"ds_write_b32 v{vS}, v10 offset:{64*u}")
        self.stamp(2)
        S = BUF[0]
        for k in range(6):
            e(f"ds_read_b128 v[{S+4*k}:{S+4*k+3}], v{vSL} offset:{1024*k}")
        e("s_waitcnt lgkmcnt(0)")
        e(f"v_max_f32 v10, v{S}, v{S+1}")
        for k in range(2, 24, 2):
            e(f"v_max3_f32 v10, v10, v{S+k}, v{S+k+1}")
        self.wave_reduce("v_max_f32", [10])
        e(f"v_readlane_b32 s50, v10, 63\ns_mov_b32 s51, {hex(C2)}\ns_nop 0")
        for k in range(24):
            e(f"v_subrev_f32 v{S+k}, s50, v{S+k}")
        for k in range(24):
            e(f"v_mul_f32 v{S+k}, s51, v{S+k}")
        for k in range(24):
            e(f"v_exp_f32 v{S+k}, v{S+k}")
        e(f"v_add_f32 v10, v{S}, v{S+1}")
        for k in range(2, 24):
            e(f"v_add_f32 v10, v10, v{S+k}")
        for k in range(24):
            e(f"v_cvt_pk_bf16_f32 v{S+k}, v{S+k}, v{S+k}")
        for k in range(6):
            e(f"ds_write_b128 v{vSL}, v[{S+4*k}:{S+4*k+3}] offset:{1024*k}")
        self.wave_reduce("v_add_f32", [10])
        e(f"v_readlane_b32 s52, v10, 63\nv_mov_b32 v{DQ}, s50\nv_mov_b32 v{DQ+2}, 1\nv_mov_b32 v{DQ+3}, 1")
        e(f"v_mov_b32 v{DQ+1}, s52\ns_lshl_b32 s46, s30, 4\ns_add_u32 s46, s46, {ML}\nv_mov_b32 v1, s46")
        e(f"ds_write_b128 v1, v[{DQ}:{DQ+3}]\nv_mov_b32 v2, v{vS}")
        self.stamp(3)
        e("L_vloop:")
        e(f"s_add_u32 s41, s40, 3\nds_read_b32 v{P}, v2\nv_add_u32 v2, 64, v2\ns_waitcnt lgkmcnt(0)")
        for t in range(4):
            for r in range(4):
                e(f"v_and_b32_dpp v{AP+4*t+r}, v{P}, v{MK+r} row_newbcast:{4*t} {DPPF}")
        pull(BUF[0], vV)
        for k in range(8):
            o = O0 if k % 2 == 0 else O1
            a = AP + 4 * (k >> 1)
            e(f"s_waitcnt lgkmcnt({7-k})")
            e(f"v_mfma_f32_16x16x32_bf16 v[{o}:{o+3}], v[{a}:{a+3}], v[{BUF[0]+4*k}:{BUF[0]+4*k+3}], v[{o}:{o+3}]")
        release()
        e("s_mov_b32 s40, s41\ns_cmp_lt_u32 s40, 512\ns_cbranch_scc1 L_vloop")
        e("v_lshlrev_b32 v1, 5, v14\nv_lshl_add_u32 v1, v13, 4, v1\nv_add_u32 v1, s45, v1")
        e("s_mov_b32 exec_hi, 0")
        e(f"ds_write_b128 v1, v[{O0}:{O0+3}]\nds_write_b128 v1, v[{O1}:{O1+3}] offset:512")
        e("s_waitcnt lgkmcnt(0)\ns_barrier")
        self.stamp(4)
        self.end()

    def unit_mfma_lds(self, B, A, vA, nsteps, D):
        for s in range(nsteps):
            self.e(f"ds_read_b128 v[{A+4*s}:{A+4*s+3}], v{vA} offset:{64*s}")
        for s in range(nsteps):
            self.e(f"s_waitcnt lgkmcnt({nsteps-1-s})")
            c = "0" if s == 0 else f"v[{D}:{D+3}]"
            self.e(f"v_mfma_f32_16x16x32_bf16 v[{D}:{D+3}], v[{A+4*s}:{A+4*s+3}], v[{B+4*s}:{B+4*s+3}], {c}")
        self.e("s_nop 7")

    def unit_mfma_dpp(self, B, src, A, D):
        def bc(s):
            for r in range(4):
                self.e(f"v_mov_b32_dpp v{A+4*(s%3)+r}, v{src+r} row_newbcast:{s} {DPPF}")
        self.e("s_nop 1")
        bc(0)
        for s in range(14):
            if s < 13:
                bc(s + 1)
            else:
                self.e("s_nop 0")
            a = A + 4 * (s % 3)
            c = "0" if s == 0 else f"v[{D}:{D+3}]"
            self.e(f"v_mfma_f32_16x16x32_bf16 v[{D}:{D+3}], v[{a}:{a+3}], v[{B+4*s}:{B+4*s+3}], {c}")
        self.e("s_nop 7")

    def soft_barrier(self, vM):
        self.e(f"s_add_u32 s45, s45, 4\nv_mov_b32 v1, 1\ns_mov_b64 exec, 1\n"
               f"ds_add_u32 v{vM}, v1 offset:{BAR-MISC}\ns_mov_b64 exec, -1")
        self.lds_wait(vM, BAR - MISC, 44, "s45", 2)

    def unit_load(self, dst, rounds, srd, stride, advance, vM):
        e = self.e
        e(f"s_lshl_b32 s60, s30, 4\nv_add_u32 v9, s60, v6\nv_mul_u32_u24 v9, {stride}, v9\nv_add_u32 v9, v9, v7")
        e(f"v_add_u32 v14, {8*stride}, v9")
        for rd in range(rounds):
            self.dma_step(9, srd, "s57", self.wpol)
            self.dma_step(14, srd, "s59", self.wpol)
            e(f"s_add_u32 s58, s58, {advance}\ns_waitcnt vmcnt(0)")
            self.soft_barrier(vM)
            self.tr_reads(dst + 8 * rd, 8, 0)
            self.tr_reads(dst + 8 * rd + 4, 8, 4096)
            e("s_waitcnt lgkmcnt(0)")
            self.soft_barrier(vM)

    def sum_round(self, a, b, n, tmp):
        for k in range(n):
            self.e(f"v_add_f32 v{a+k}, v{a+k}, v{b+k}")
        if n == 1:
            self.rbf1(a)
        else:
            self.rbf_pairs(list(range(a, a + n)), tmp)

    def service(self):
        e = self.e
        WO, W1, W2 = 32, 64, 120
        OCB, SB, GA, XP, GB, F = 176, 184, 192, 194, 196, 197
        RAW, AD, DD = 200, 232, 244
        vT8, vT16, vM = 10, 11, 12
        LM, HM = "s[50:51]", "s[52:53]"
        e("L_service:\ns_sub_u32 s30, s3, 4\ns_mov_b32 s31, 0x80000")
        e("s_and_b32 s48, s2, 7\ns_lshr_b32 s49, s2, 3")
        e("s_mov_b32 s50, 0x3fff3fff\ns_mov_b32 s51, 0x3fff3fff\ns_mov_b32 s52, 0x0fffffff\ns_mov_b32 s53, 0x0fffffff")
        e("v_mov_b32 v2, 0\nv_lshrrev_b32 v3, 4, v0\nv_and_b32 v4, 15, v0")
        e("v_lshlrev_b32 v5, 6, v4\nv_lshl_add_u32 v5, v3, 4, v5")
        e("v_lshrrev_b32 v6, 3, v0\nv_and_b32 v7, 7, v0\nv_lshlrev_b32 v7, 4, v7")
        e("v_lshlrev_b32 v8, 10, v3\nv_bfe_u32 v1, v0, 2, 2\nv_lshl_add_u32 v8, v1, 7, v8")
        e("v_and_b32 v1, 3, v0\nv_lshl_add_u32 v8, v1, 3, v8")
        e(f"v_mov_b32 v{vM}, {MISC}\ns_mov_b32 s47, 0\ns_waitcnt lgkmcnt(0)")
        self.srd(32, 28, WS_SIZE)
        e("s_cmp_eq_u32 s30, 0\ns_cbranch_scc1 L_pro")
        e("s_barrier")
        self.lds_wait(vM, QRDY - MISC, 47, 1, 8)
        e(f"ds_read_b32 v1, v{vM} offset:{TAG-MISC}\ns_waitcnt lgkmcnt(0)\nv_readfirstlane_b32 s56, v1")
        e(f"v_and_b32 v{vT8}, 0xff, v1\nv_and_b32 v{vT16}, 0xffff, v1\ns_branch L_bg")

        PB, PA, PRAW, PCL, PN, PC, PD = 32, 144, 144, 176, 208, 224, 232
        e("L_pro:")
        self.stamp(0)
        e("s_load_dword s56, s[28:29], 0")
        e("s_and_b32 s54, s2, 1\ns_bfe_u32 s55, s2, 0x60001")
        e("s_cmp_ge_u32 s2, 128")
        e("s_cselect_b32 s36, s4, s20\ns_cselect_b32 s37, s5, s21\ns_mov_b32 s38, 1792\ns_mov_b32 s39, 0x20000")
        e("s_cselect_b32 s40, s10, s22\ns_cselect_b32 s41, s11, s23\ns_mov_b32 s43, 0x20000")
        e(f"s_mov_b32 s46, 5376\ns_cselect_b32 s46, 8192, s46\ns_mul_i32 s42, s46, 448")
        e("s_cbranch_scc1 L_unit\ns_cmp_lt_u32 s2, 84\ns_cbranch_scc1 L_unit")
        e("s_barrier\ns_waitcnt lgkmcnt(0)\ns_add_u32 s56, s56, 1")
        e(f"s_and_b32 s60, s56, 0xff\nv_mov_b32 v{vT8}, s60\ns_and_b32 s60, s56, 0xffff\nv_mov_b32 v{vT16}, s60")
        e("s_branch L_getq")
        e("L_unit:")
        for k in range(8):
            e(f"v_mov_b32 v{PC+k}, 0")
        if self.lev:
            per = -(-((1024 - 64) // self.period * self.nsh) // 28)
            assert per <= 16 and per * 28 * 256 <= WS_SIZE - WS_CTR
            e(f"s_cmp_ge_u32 s2, 28\ns_cbranch_scc1 L_noz\ns_mul_i32 s58, s2, {per*256}\ns_add_u32 s58, s58, {WS_CTR}")
            e("v_lshrrev_b32 v1, 2, v0\nv_and_b32 v9, 3, v0\nv_lshlrev_b32 v9, 4, v9\nv_lshl_add_u32 v9, v1, 8, v9")
            e(f"v_cmp_gt_u32 vcc, {per}, v1\ns_and_saveexec_b64 s[62:63], vcc")
            e(f"buffer_store_dwordx4 v[{PC}:{PC+3}], v9, s[32:35], s58 offen sc1\ns_mov_b64 exec, -1\nL_noz:")
        e("v_lshrrev_b32 v1, 5, v0\nv_and_b32 v15, 31, v0\nv_mul_u32_u24 v13, 896, v1\nv_lshl_add_u32 v13, v15, 4, v13")
        e("s_mul_i32 s58, s54, 448\ns_sub_u32 s59, 448, s58")
        e(f"s_mov_b64 exec, {HM}")
        e(f"buffer_load_dwordx4 v[{PC}:{PC+3}], v13, s[36:39], s58 offen")
        e(f"buffer_load_dwordx4 v[{PC+4}:{PC+7}], v13, s[36:39], s59 offen")
        e("s_mov_b64 exec, -1")
        e("v_mul_u32_u24 v9, s46, v6\nv_add_u32 v9, v9, v7")
        e("s_mul_i32 s58, s54, 224\ns_mul_i32 s58, s58, s46\ns_lshl_b32 s60, s55, 7\ns_add_u32 s58, s58, s60\ns_lshl_b32 s59, s46, 3")
        for n in range(28):
            self.dma_step(9, 40, PST + 1024 * n, self.wpol)
            e("s_add_u32 s58, s58, s59")
        e("s_barrier")
        e(f"v_mul_u32_u24 v9, {2688*4}, v1\nv_lshl_add_u32 v9, v15, 5, v9")
        e(f"v_mul_u32_u24 v13, 448, v1\nv_lshl_add_u32 v13, v15, 4, v13\nv_add_u32 v13, {AIM}, v13")
        e(f"v_bfe_u32 v1, v0, 2, 1\nv_mul_u32_u24 v14, 448, v1\nv_lshl_add_u32 v14, v3, 4, v14\nv_add_u32 v14, {AIM}, v14")
        e(f"v_add_u32 v15, {PST}, v8")
        e("s_waitcnt lgkmcnt(0)\ns_add_u32 s56, s56, 1")
        e(f"s_and_b32 s60, s56, 0xff\nv_mov_b32 v{vT8}, s60\ns_and_b32 s60, s56, 0xffff\nv_mov_b32 v{vT16}, s60")
        e("s_waitcnt vmcnt(28)")
        X = list(range(PN, PN + 8))
        self.unpack(list(range(PC, PC + 8)), list(range(PN, PN + 16)))
        e("s_cmp_ge_u32 s2, 128\ns_cbranch_scc1 L_ln1")
        self.silu(X, list(range(PN + 8, PN + 16)))
        for k in range(4):
            e(f"v_cvt_pk_bf16_f32 v{PC+k}, v{X[2*k]}, v{X[2*k+1]}")
        e("s_branch L_frag\nL_ln1:")
        self.layernorm(X, list(range(16, 22)), extra=list(range(PN + 8, PN + 16)))
        e("L_frag:\ns_waitcnt vmcnt(0)")
        self.stamp(1)
        for st in range(7):
            for u in range(4):
                self.tr_reads(PB + 16 * st + 4 * u, 15, 4096 * st + 32 * u)
        self.stamp(2)
        e("s_cmp_lt_u32 s2, 128\ns_cbranch_scc1 L_mm")
        e(f"s_mul_i32 s58, s54, 896\ns_add_u32 s58, s58, {WS_MOD}\ns_add_u32 s59, s58, {2*2688*4}")
        loads = []
        for p in range(2):
            for m in range(2):
                for hf in range(2):
                    k = (p * 2 + m) * 2 + hf
                    loads.append((4, PRAW + 4 * k, PCL + 4 * k, 9, f"s{58+p}", m * 448 * 4 + hf * 16))
        self.gather(loads, vT8, "BYTE_0", HM)
        self.stamp(3)
        self.sum_round(PCL, PCL + 16, 16, list(range(16, 24)))
        CA = list(range(PCL + 8, PCL + 16))
        for r in CA:
            e(f"v_add_f32 v{r}, 1.0, v{r}")
        self.rbf_pairs(CA, list(range(16, 20)))
        self.modulate(X, CA, list(range(PCL, PCL + 8)), list(range(PC, PC + 4)), list(range(16, 20)))
        e("L_mm:")
        e(f"s_mov_b64 exec, {HM}\nds_write_b128 v13, v[{PC}:{PC+3}]\ns_mov_b64 exec, -1\ns_waitcnt lgkmcnt(0)")
        for st in range(7):
            e(f"ds_read_b128 v[{PA+4*st}:{PA+4*st+3}], v14 offset:{64*st}")
        e("s_lshl_b32 s46, s46, 1\nv_and_b32 v1, 1, v3\nv_mul_u32_u24 v9, s46, v1\nv_lshrrev_b32 v1, 5, v0")
        e("v_lshl_add_u32 v9, v1, 6, v9\nv_lshl_add_u32 v9, v4, 2, v9")
        e(f"s_mul_i32 s58, s54, s46\ns_lshl_b32 s58, s58, 1\ns_lshl_b32 s60, s55, 8\ns_add_u32 s58, s58, s60")
        e(f"s_mov_b32 s60, {WS_MOD}\ns_cmp_ge_u32 s2, 128\ns_cselect_b32 s60, {WS_Q}, s60\ns_add_u32 s58, s58, s60")
        e("s_mov_b32 s60, 0xffffff00")
        for st in range(7):
            e(f"s_waitcnt lgkmcnt({6-st})")
            for u in range(4):
                d, b = PD + 4 * u, PB + 16 * st + 4 * u
                c = "0" if st == 0 else f"v[{d}:{d+3}]"
                e(f"v_mfma_f32_16x16x32_bf16 v[{d}:{d+3}], v[{PA+4*st}:{PA+4*st+3}], v[{b}:{b+3}], {c}")
        e("s_nop 7")
        for v in range(2):
            e(f"v_mov_b32_dpp v{PD+8*v}, v{PD+8*v+4} quad_perm:[0,1,2,3] row_mask:0xc bank_mask:0xf")
        for v in range(2):
            e(f"v_and_or_b32 v{PD+8*v}, v{PD+8*v}, s60, v{vT8}")
            e(f"buffer_store_dword v{PD+8*v}, v9, s[32:35], s58 offen offset:{128*v} sc1")
        self.stamp(4)
        e("L_getq:")
        e(f"v_lshlrev_b32 v9, 4, v0\ns_lshl_b32 s58, s49, 10\ns_add_u32 s58, s58, {WS_Q}\ns_add_u32 s59, s58, 0x8000")
        self.gather([(4, PRAW, PCL, 9, "s58", 0), (4, PRAW + 4, PCL + 4, 9, "s59", 0)], vT8, "BYTE_0", "-1",
                    sleep=self.qsleep)
        for k in range(4):
            e(f"v_add_f32 v{PCL+k}, v{PCL+k}, v{PCL+4+k}")
        e(f"v_cvt_pk_bf16_f32 v16, v{PCL}, v{PCL+1}\nv_cvt_pk_bf16_f32 v17, v{PCL+2}, v{PCL+3}")
        e(f"v_lshl_add_u32 v1, v0, 3, v{vM}\nds_write_b64 v1, v[16:17] offset:{QV-MISC}")
        e(f"v_mov_b32 v18, 1\nv_mov_b32 v19, s56\nds_write_b64 v{vM}, v[18:19] offset:{QRDY-MISC}")
        self.stamp(5)

        e("L_bg:")
        e(f"s_lshl_b32 s57, s30, 11\ns_add_u32 s57, s57, {STG}\ns_add_u32 s59, s57, 1024")
        e(f"s_lshl_b32 s60, s30, 5\ns_add_u32 s60, s60, {STG}\nv_add_u32 v8, s60, v8\ns_mov_b32 s44, 0\ns_mov_b32 s45, 0")
        e("s_cmp_eq_u32 s48, 7\ns_cbranch_scc1 L_bgdone")
        self.srd(36, 12, 4096 * 896)
        e(f"s_and_b32 s58, s49, 15\ns_mul_i32 s58, s58, {256*896}\ns_lshl_b32 s60, s48, 7\ns_add_u32 s58, s58, s60")
        self.unit_load(WO, 4, 36, 896, 64 * 896, vM)
        e("s_lshr_b32 s60, s49, 3\ns_cmp_lg_u32 s60, 1\ns_cbranch_scc1 L_bgdone")
        e("s_bfe_u32 s54, s49, 0x10002\ns_and_b32 s55, s49, 3\ns_lshl_b32 s60, s48, 2\ns_add_u32 s55, s55, s60")
        self.srd(36, 16, 448 * 3584)
        e("s_lshl_b32 s58, s55, 7")
        self.unit_load(W1, 7, 36, 3584, 64 * 3584, vM)
        self.srd(36, 18, 1792 * 896)
        e(f"s_mul_i32 s58, s55, {64*896}")
        self.unit_load(W2, 7, 36, 896, 128, vM)
        e("v_and_b32 v1, 31, v0\nv_lshlrev_b32 v13, 2, v1\nv_lshrrev_b32 v1, 5, v0\nv_lshl_add_u32 v13, v1, 1, v13")
        e("s_mul_i32 s60, s30, 112\nv_add_u32 v13, s60, v13")
        self.srd(36, 4, 1792)
        e(f"v_lshlrev_b32 v14, 1, v13\ns_mul_i32 s58, s54, 896\nbuffer_load_dword v{XP}, v14, s[36:39], s58 offen")
        e(f"s_mul_i32 s58, s54, {2688*4}\ns_add_u32 s58, s58, {WS_MOD+896*4}\ns_add_u32 s59, s58, {2*2688*4}\nv_lshlrev_b32 v9, 2, v13")
        self.gather([(2, RAW, GA, 9, "s58", 0), (2, RAW + 2, 16, 9, "s59", 0)], vT8, "BYTE_0", HM, sleep=8)
        self.sum_round(GA, 16, 2, [18])
        e(f"v_and_b32 v{XP+1}, 0xffff0000, v{XP}\nv_lshlrev_b32 v{XP}, 16, v{XP}")
        e("v_lshlrev_b32 v9, 1, v5")
        loads = []
        for p in range(2):
            for m, dst in enumerate((SB, OCB)):
                for hf in range(2):
                    k = (p * 2 + m) * 2 + hf
                    cl = dst + 4 * hf if p == 0 else AD + 8 * (1 - m) + 4 * hf
                    loads.append((4, RAW + 4 * k, cl, 9, f"s{58+p}", (m + 1) * 448 * 4 + hf * 16))
        self.gather(loads, vT8, "BYTE_0", LM, sleep=8)
        self.sum_round(OCB, AD, 16, list(range(16, 24)))
        e(f"s_lshl_b32 s60, s55, 6\ns_add_u32 s58, s58, s60\ns_add_u32 s58, s58, {1344*4}\ns_add_u32 s59, s58, {2*2688*4}")
        e("v_lshlrev_b32 v9, 2, v4")
        self.gather([(1, RAW, GB, 9, "s58", 0), (1, RAW + 1, 16, 9, "s59", 0)], vT8, "BYTE_0", "-1", sleep=8)
        self.sum_round(GB, 16, 1, None)
        for k in range(8):
            e(f"v_add_f32 v{OCB+k}, 1.0, v{OCB+k}")
        self.rbf_pairs(list(range(OCB, OCB + 8)), list(range(16, 20)))
        e("L_bgdone:")
        e("s_cmp_lg_u32 s30, 0\ns_cbranch_scc1 L_tail0")

        top, go = self.lab("ml"), self.lab("mlgo")
        e(f"{top}:")
        for i in range(3):
            e(f"ds_read_b128 v[{16+4*i}:{19+4*i}], v{vM} offset:{ML-MISC+16*i}")
        e("s_waitcnt lgkmcnt(0)\nv_min3_u32 v1, v18, v22, v26\ns_nop 0\nv_readfirstlane_b32 s60, v1")
        e(f"s_cmp_lg_u32 s60, 0\ns_cbranch_scc1 {go}")
        self.budget()
        e(f"s_sleep 32\ns_branch {top}\n{go}:")
        e(f"s_mov_b32 s61, {hex(C2)}\nv_max3_f32 v28, v16, v20, v24")
        for i in range(3):
            e(f"v_sub_f32 v{18+4*i}, v{16+4*i}, v28\nv_mul_f32 v{18+4*i}, s61, v{18+4*i}\nv_exp_f32 v{18+4*i}, v{18+4*i}")
        e("s_nop 0\nv_mul_f32 v29, v17, v18\nv_fmac_f32 v29, v21, v22\nv_fmac_f32 v29, v25, v26")
        e(f"v_or_b32 v{RAW}, v28, v{vT16}\nv_and_b32 v1, 0xffff0000, v29\nv_or_b32 v{RAW+1}, v1, v{vT16}")
        e(f"v_lshlrev_b32 v1, 16, v29\nv_or_b32 v{RAW+2}, v1, v{vT16}\nv_mov_b32 v{RAW+3}, v{vT16}")
        e(f"s_lshl_b32 s58, s49, 8\ns_add_u32 s58, s58, {WS_ML}\ns_lshl_b32 s60, s48, 4\nv_mov_b32 v1, s60")
        e(f"s_mov_b64 exec, 1\nbuffer_store_dwordx4 v[{RAW}:{RAW+3}], v1, s[32:35], s58 offen sc1\ns_mov_b64 exec, -1")
        e("s_mov_b32 s47, 0")
        self.lds_wait(vM, FULL - MISC, 47, 640, 32)
        e("v_and_b32 v9, 7, v0\nv_lshlrev_b32 v9, 4, v9")
        self.gather([(4, RAW + 4, RAW + 8, 9, "s58", 0)], vT16, "WORD_0", "-1", sleep=16)
        m, l = RAW + 8, RAW + 9
        e(f"v_lshrrev_b32 v{l+1}, 16, v{l+1}\nv_or_b32 v{l}, v{l}, v{l+1}\nv_mov_b32 v28, v{m}")
        oct_steps = ["quad_perm:[1,0,3,2]", "quad_perm:[2,3,0,1]", "row_half_mirror"]
        for st in oct_steps:
            e(f"s_nop 1\nv_max_f32_dpp v28, v28, v28 {st} {DPPF}")
        e(f"v_sub_f32 v{m}, v{m}, v28\nv_mul_f32 v{m}, s61, v{m}\nv_exp_f32 v{m}, v{m}\ns_nop 0\nv_mul_f32 v29, v{m}, v{l}")
        for st in oct_steps:
            e(f"s_nop 1\nv_add_f32_dpp v29, v29, v29 {st} {DPPF}")
        e("v_rcp_f32 v29, v29")
        for i in range(3):
            e(f"v_sub_f32 v{F+i}, v{16+4*i}, v28\nv_mul_f32 v{F+i}, s61, v{F+i}\nv_exp_f32 v{F+i}, v{F+i}\ns_nop 0")
            e(f"v_mul_f32 v{F+i}, v{F+i}, v29")
        e(f"v_lshlrev_b32 v9, 4, v0\nv_add_u32 v14, {SC}, v9\ns_lshl_b32 s58, s2, 10\ns_add_u32 s58, s58, {WS_OP}")
        e("s_mov_b32 s60, 0xffffff00\ns_barrier")
        if self.stamps:
            self.stamp(6)
        for i in range(3):
            e(f"ds_read_b128 v[{16+4*i}:{19+4*i}], v14 offset:{SC_STRIDE*i}")
        e("s_waitcnt lgkmcnt(2)")
        for k in range(4):
            e(f"v_mul_f32 v{16+k}, v{16+k}, v{F}")
        for i in (1, 2):
            e(f"s_waitcnt lgkmcnt({2-i})")
            for k in range(4):
                e(f"v_fmac_f32 v{16+k}, v{16+4*i+k}, v{F+i}")
        for k in range(4):
            e(f"v_and_or_b32 v{16+k}, v{16+k}, s60, v{vT8}")
        e("buffer_store_dwordx4 v[16:19], v9, s[32:35], s58 offen sc1\ns_branch L_tail1")
        e("L_tail0:")
        self.stamp(5)
        e("s_barrier")
        if self.stamps:
            self.stamp(0)
        e("L_tail1:\ns_cmp_eq_u32 s48, 7\ns_cbranch_scc1 L_fin")

        e(f"s_lshl_b32 s58, s49, 13\ns_lshl_b32 s60, s30, 8\ns_add_u32 s58, s58, s60\ns_add_u32 s58, s58, {WS_OP}")
        e("s_add_u32 s59, s58, 4096\nv_lshlrev_b32 v9, 2, v0")
        e(f"s_lshl_b32 s60, s30, 7\ns_add_u32 s60, s60, {QV}\nv_lshl_add_u32 v14, v0, 1, s60")
        e(f"v_lshlrev_b32 v15, 4, v3\nv_add_u32 v15, {QV}, v15")
        self.gather([(1, RAW + k, 20 + k, 9, f"s{58+(k>>2)}", (k & 3) * 1024) for k in range(8)],
                    vT8, "BYTE_0", "-1")
        e("v_add_f32 v20, v20, v21\nv_add_f32 v22, v22, v23\nv_add_f32 v24, v24, v25\nv_add_f32 v26, v26, v27")
        e("v_add_f32 v20, v20, v22\nv_add_f32 v24, v24, v26\nv_add_f32 v20, v20, v24")
        e("v_cvt_pk_bf16_f32 v20, v20, v20\nds_write_b16 v14, v20\ns_waitcnt lgkmcnt(0)\ns_barrier")
        if self.stamps:
            e("s_cmp_eq_u32 s30, 0\ns_cbranch_scc1 L_st1")
            self.stamp(1)
            e("L_st1:")
        e(f"s_mul_i32 s58, s49, {448*4}\ns_lshl_b32 s60, s48, 8\ns_add_u32 s58, s58, s60")
        e(f"s_lshl_b32 s60, s30, 6\ns_add_u32 s58, s58, s60\ns_add_u32 s58, s58, {WS_Y}\ns_mov_b32 s60, 0xffffff00")
        self.unit_mfma_lds(WO, RAW, 15, 8, DD)
        e(f"v_and_or_b32 v{DD}, v{DD}, s60, v{vT8}")
        e(f"s_mov_b64 exec, 0xffff\nbuffer_store_dword v{DD}, v9, s[32:35], s58 offen sc1\ns_mov_b64 exec, -1")
        e("s_lshr_b32 s60, s49, 3\ns_cmp_lg_u32 s60, 1\ns_cbranch_scc1 L_fin")

        e(f"v_lshrrev_b32 v1, 5, v0\nv_mul_u32_u24 v1, {8*448*4-8}, v1\nv_lshl_add_u32 v9, v13, 2, v1")
        e(f"s_mul_i32 s58, s54, {16*448*4}\ns_add_u32 s40, s58, {WS_Y}")
        for k in range(1, 4):
            e(f"s_add_u32 s{40+k}, s40, {k*2*448*4}")
        e(f"v_lshl_add_u32 v14, v13, 1, v{vM}\nv_add_u32 v15, v5, v{vM}")
        e(f"s_lshl_b32 s60, s55, 5\ns_add_u32 s60, s60, {AIM}\nv_lshl_add_u32 v30, v4, 1, s60")
        for k in range(4):
            e(f"v_mov_b32 v{248+k}, 0")
        CL = WO
        self.gather([(4, RAW + 4 * k, CL + 4 * k, 9, f"s{40+(k>>1)}", (k & 1) * 448 * 4) for k in range(8)],
                    vT8, "BYTE_0", HM)
        if self.stamps:
            e("s_cmp_eq_u32 s30, 0\ns_cbranch_scc1 L_st2")
            self.stamp(2)
            e("L_st2:")
        for st in (16, 8, 4):
            for k in range(0, st, 2):
                e(f"v_pk_add_f32 v[{CL+k}:{CL+k+1}], v[{CL+k}:{CL+k+1}], v[{CL+st+k}:{CL+st+k+1}]")
        e(f"s_nop 1\nv_permlane32_swap_b32 v{CL}, v{CL+2}\nv_permlane32_swap_b32 v{CL+1}, v{CL+3}")
        e(f"v_add_f32 v{CL}, v{CL}, v{CL+2}\nv_add_f32 v{CL+1}, v{CL+1}, v{CL+3}")
        self.rbf_pairs([CL, CL + 1], [16])
        e(f"v_mul_f32 v{CL}, v{CL}, v{GA}\nv_mul_f32 v{CL+1}, v{CL+1}, v{GA+1}")
        self.rbf_pairs([CL, CL + 1], [16])
        e(f"v_add_f32 v{CL}, v{CL}, v{XP}\nv_add_f32 v{CL+1}, v{CL+1}, v{XP+1}")
        e(f"v_cvt_pk_bf16_f32 v16, v{CL}, v{CL+1}")
        e(f"s_mov_b64 exec, {HM}\nds_write_b32 v14, v16 offset:{AIM-MISC}\ns_mov_b64 exec, {LM}")
        e("s_waitcnt lgkmcnt(0)\ns_barrier")
        e(f"ds_read_b128 v[248:251], v15 offset:{AIM-MISC}\ns_mov_b64 exec, -1\nds_read_u16 v31, v30\ns_waitcnt lgkmcnt(1)")
        X = list(range(CL, CL + 8))
        self.unpack([248, 249, 250, 251], X)
        self.layernorm(X, list(range(16, 22)))
        self.modulate(X, list(range(OCB, OCB + 8)), list(range(SB, SB + 8)), [248, 249, 250, 251], list(range(16, 20)))
        e(f"s_lshl_b32 s60, s30, 5\ns_add_u32 s60, s60, {RED}\nv_lshl_add_u32 v14, v4, 1, s60")
        e(f"v_lshl_add_u32 v15, v3, 4, v{vM}")
        self.unit_mfma_dpp(W1, 248, AD, DD)
        self.rbf1(DD)
        self.silu([DD], [16])
        e(f"v_cvt_pk_bf16_f32 v{DD}, v{DD}, v{DD}\nds_write_b16 v14, v{DD}\ns_waitcnt lgkmcnt(0)\ns_barrier")
        e(f"ds_read_b128 v[{AD}:{AD+3}], v15 offset:{RED-MISC}\nds_read_b128 v[{AD+4}:{AD+7}], v15 offset:{RED-MISC+64}")
        if self.stamps:
            e("s_cmp_eq_u32 s30, 0\ns_cbranch_scc1 L_st3")
            self.stamp(3)
            e("L_st3:")
        e(f"s_mul_i32 s40, s54, {28*1792}\ns_add_u32 s40, s40, {WS_Z}")
        e(f"s_mul_i32 s58, s30, 1792\ns_lshl_b32 s60, s55, 6\ns_add_u32 s58, s58, s60\ns_add_u32 s58, s58, s40")
        e(f"s_add_u32 s59, s58, {16*1792}\nv_mul_u32_u24 v9, {4*1792}, v3\nv_lshl_add_u32 v9, v4, 2, v9\ns_mov_b32 s60, 0xffffff00")
        for st in range(2):
            e(f"s_waitcnt lgkmcnt({1-st})")
            for rho in range(7):
                d, b = RAW + 4 * rho, W2 + 8 * rho + 4 * st
                c = "0" if st == 0 else f"v[{d}:{d+3}]"
                e(f"v_mfma_f32_16x16x32_bf16 v[{d}:{d+3}], v[{AD+4*st}:{AD+4*st+3}], v[{b}:{b+3}], {c}")
        e("s_nop 4")
        for g in (1, 2, 3):
            e(f"v_mov_b32_dpp v{RAW}, v{RAW+4*g} quad_perm:[0,1,2,3] row_mask:{hex(1<<g)} bank_mask:0xf\ns_nop 1")
        e(f"v_and_or_b32 v{RAW}, v{RAW}, s60, v{vT8}")
        e(f"v_mov_b32_dpp v{RAW+16}, v{RAW+20} quad_perm:[0,1,2,3] row_mask:0x2 bank_mask:0xf")
        e(f"buffer_store_dword v{RAW}, v9, s[32:35], s58 offen sc1\ns_nop 0")
        e(f"v_mov_b32_dpp v{RAW+16}, v{RAW+24} quad_perm:[0,1,2,3] row_mask:0x4 bank_mask:0xf")
        e(f"v_and_or_b32 v{RAW+16}, v{RAW+16}, s60, v{vT8}\ns_mov_b32 exec_hi, 0xffff")
        e(f"buffer_store_dword v{RAW+16}, v9, s[32:35], s59 offen sc1\ns_mov_b64 exec, -1")
        if self.stamps:
            e("s_cmp_eq_u32 s30, 0\ns_cbranch_scc1 L_st4")
            self.stamp(4)
            e("L_st4:")
        e("s_cmp_lg_u32 s30, 0\ns_cbranch_scc1 L_fin")
        e("s_mul_i32 s58, s55, 1792\ns_add_u32 s58, s58, s40\nv_lshlrev_b32 v9, 2, v0")
        self.srd(36, 24, 1792)
        e("s_mul_i32 s41, s54, 896\ns_lshl_b32 s60, s55, 5\ns_add_u32 s41, s41, s60")
        e("v_lshlrev_b32 v14, 1, v0\nv_lshlrev_b32 v31, 16, v31")
        self.gather([(1, CL + k, 16 + k, 9, "s58", 256 * k) for k in range(7)], vT8, "BYTE_0", "-1")
        e("v_add_f32 v16, v16, v17\nv_add_f32 v18, v18, v19\nv_add_f32 v20, v20, v21\nv_add_f32 v16, v16, v22")
        e("v_add_f32 v18, v18, v20\nv_add_f32 v16, v16, v18")
        for sw in ("v_permlane16_swap_b32", "v_permlane32_swap_b32"):
            e(f"v_mov_b32 v17, v16\ns_nop 1\n{sw} v16, v17\nv_add_f32 v16, v16, v17")
        self.rbf1(16)
        e(f"v_mul_f32 v16, v16, v{GB}")
        self.rbf1(16)
        e("v_add_f32 v16, v16, v31\nv_cvt_pk_bf16_f32 v16, v16, v16")
        e("s_mov_b64 exec, 0xffff\nbuffer_store_short v16, v14, s[36:39], s41 offen")
        e(f"s_cmp_lg_u32 s2, 64\ns_cbranch_scc1 L_fin")
        e(f"v_mov_b32 v16, s56\ns_mov_b64 exec, 1\nbuffer_store_dword v16, v2, s[32:35], 0 offen sc1")
        e("L_fin:")
        self.stamp(7)
        self.end()

    def build(self, header):
        e = self.e
        K = NAME + "_kernel"
        self.L.append(header.rstrip("\n"))
        self.L.append(f"; @launch grid=(256,1,1) block=(512,1,1) lds={LDS_BYTES}")
        self.L.append('.amdgcn_target "amdgcn-amd-amdhsa--gfx950"\n.text')
        self.L.append(f".globl {K}\n.p2align 8\n.type {K},@function\n{K}:")
        e("s_cmp_ge_u32 s2, 256\ns_cbranch_scc1 L_end")
        e("s_load_dwordx16 s[4:19], s[0:1], 0\ns_load_dwordx8 s[20:27], s[0:1], 64\ns_load_dwordx2 s[28:29], s[0:1], 96")
        e("v_lshrrev_b32 v1, 6, v0\nv_and_b32 v0, 63, v0\nv_readfirstlane_b32 s3, v1")
        self.stamp_init()
        e("s_cmp_ge_u32 s3, 4\ns_cbranch_scc1 L_service\ns_cmp_lg_u32 s3, 0\ns_cbranch_scc1 L_consumer")
        self.loader()
        e("L_end:\ns_endpgm")
        self.consumer()
        self.service()
        self.L.append(f""".section .rodata,"a"
.p2align 6
.amdhsa_kernel {K}
  .amdhsa_next_free_vgpr 256
  .amdhsa_next_free_sgpr 102
  .amdhsa_accum_offset 256
  .amdhsa_group_segment_fixed_size 0
  .amdhsa_kernarg_size 104
  .amdhsa_user_sgpr_count 2
  .amdhsa_user_sgpr_kernarg_segment_ptr 1
  .amdhsa_system_sgpr_workgroup_id_x 1
  .amdhsa_float_denorm_mode_32 3
.end_amdhsa_kernel""")
        return "\n".join(self.L) + "\n"


HEADER = """; Fused adaLN-conditioned block: cached multi-head attention (decode) + SiLU MLP, gfx950.
"""


def generate(**kw):
    return Gen(**kw).build(HEADER)


if __name__ == "__main__":
    import json
    kw = json.loads(sys.argv[2]) if len(sys.argv) > 2 else {}
    open(sys.argv[1], "w").write(generate(**kw))
```

```python
import struct
import sys

NAME = "adaLN_cond__mha_block_cached__dense_activation_silu__decode"

WS_EPOCH, WS_MOD, WS_Q, WS_OP, WS_Y, WS_ML, WS_Z, WS_CTR, WS_SIZE = (
    0, 0x1000, 0x10000, 0x20000, 0x60000, 0x6E000, 0x70000, 0x90000, 0xB0000)
WS_STAMP = 0xB0000
RING, NSLOT = 0, 16
SC, SC_STRIDE = 131072, 6144
STG = 149504
PST = 131072
MISC = 159744
FULL, FREE, QRDY, TAG, BAR, ML, QV, AIM, RED = (MISC, MISC + 256, MISC + 272, MISC + 276, MISC + 280,
                                                MISC + 288, MISC + 512, MISC + 1024, MISC + 2816)
LDS_BYTES = 163840


STAMPS = [("ld start", 0, 0), ("S0 start", 4, 0), ("S0 weights landed", 4, 1), ("S0 frags read", 4, 2),
          ("S0 mod gathered", 4, 3), ("S0 unit pub", 4, 4), ("S0 q ready", 4, 5), ("C prepull done", 1, 0),
          ("C q seen", 1, 1), ("ld K issued", 0, 1), ("C K done", 1, 2), ("C softmax done", 1, 3),
          ("ld done", 0, 2), ("T0 barrier", 5, 0), ("o gathered+bar", 5, 1), ("y gathered", 5, 2),
          ("hid barrier", 5, 3), ("z pub", 5, 4), ("bg done", 5, 5), ("S0 end", 4, 7)]


def f2u(x):
    return struct.unpack("<I", struct.pack("<f", x))[0]


LOG2E = 1.4426950408889634
C2 = f2u(LOG2E / 16.0)
DPPF = "row_mask:0xf bank_mask:0xf"


class Gen:
    def __init__(self, D=20, wpol="nt", stamps=False, prepull=5, kvpol="nt", qsleep=0, lev=None, period=32, pwait=11, nsh=4, cstart=96, diag_total=0):
        self.L = []
        self.n = 0
        self.D = D
        self.wpol = wpol
        self.kvpol = kvpol
        self.stamps = stamps
        self.prepull = prepull
        self.qsleep = qsleep
        self.diag_total = diag_total
        self.cstart = cstart
        assert cstart >= 64 and cstart % period == 0
        self.lev, self.period, self.pwait, self.nsh = lev, period, pwait, nsh

    def e(self, s):
        for line in s.split("\n"):
            line = line.strip()
            if not line:
                continue
            self.L.append(line if line.endswith(":") or line.startswith(";") else "    " + line)

    def lab(self, p):
        self.n += 1
        return f"L_{p}_{self.n}"

    def srd(self, d, base, size):
        self.e(f"s_mov_b32 s{d}, s{base}\ns_mov_b32 s{d+1}, s{base+1}\n"
               f"s_mov_b32 s{d+2}, {size}\ns_mov_b32 s{d+3}, 0x20000")

    def stamp(self, k):
        if self.stamps:
            self.e(f"s_memrealtime s[{84+2*k}:{85+2*k}]\ns_waitcnt lgkmcnt(0)")

    def stamp_init(self):
        if self.stamps:
            for k in range(8):
                self.e(f"s_mov_b64 s[{84+2*k}:{85+2*k}], 0")

    def stamp_flush(self):
        if self.stamps:
            self.e("s_mov_b64 exec, -1")
            self.srd(80, 28, WS_STAMP + 0x20000)
            for k in range(8):
                self.e(f"v_mov_b32 v{8+k}, s{84+2*k}")
            self.e(f"s_lshl_b32 s30, s2, 3\ns_add_u32 s30, s30, s3\ns_lshl_b32 s30, s30, 5\n"
                   f"s_add_u32 s30, s30, {WS_STAMP}\nv_mov_b32 v1, s30\ns_mov_b64 exec, 1\n"
                   "buffer_store_dwordx4 v[8:11], v1, s[80:83], 0 offen\n"
                   "buffer_store_dwordx4 v[12:15], v1, s[80:83], 0 offen offset:16")

    def end(self):
        self.stamp_flush()
        self.e("s_endpgm")

    def budget(self):
        self.e("s_sub_u32 s31, s31, 1\ns_cbranch_scc1 L_end")

    def wave_reduce(self, op, regs, nsteps=6):
        steps = ["quad_perm:[1,0,3,2] " + DPPF, "quad_perm:[2,3,0,1] " + DPPF, "row_half_mirror " + DPPF,
                 "row_mirror " + DPPF, "row_bcast:15 row_mask:0xa bank_mask:0xf",
                 "row_bcast:31 row_mask:0xc bank_mask:0xf"]
        for st in steps[:nsteps]:
            pad = 3 - len(regs) if st is not steps[0] else 2
            if pad > 0:
                self.e(f"s_nop {pad-1}")
            for r in regs:
                self.e(f"{op}_dpp v{r}, v{r}, v{r} {st}")
        self.e("s_nop 0")

    def rbf_pairs(self, regs, tmp):
        for k in range(0, len(regs), 2):
            self.e(f"v_cvt_pk_bf16_f32 v{tmp[k//2]}, v{regs[k]}, v{regs[k+1]}")
        self.unpack(tmp[:len(regs)//2], regs)

    def unpack(self, packed, regs):
        for k, p in enumerate(packed):
            self.e(f"v_lshlrev_b32 v{regs[2*k]}, 16, v{p}\nv_and_b32 v{regs[2*k+1]}, 0xffff0000, v{p}")

    def rbf1(self, r):
        self.e(f"v_cvt_pk_bf16_f32 v{r}, v{r}, v{r}\nv_and_b32 v{r}, 0xffff0000, v{r}")

    def silu(self, regs, tmp):
        for r, t in zip(regs, tmp):
            self.e(f"v_mul_f32 v{t}, {hex(f2u(-LOG2E))}, v{r}")
        for t in tmp[:len(regs)]:
            self.e(f"v_exp_f32 v{t}, v{t}")
        self.e("s_nop 0")
        for t in tmp[:len(regs)]:
            self.e(f"v_add_f32 v{t}, 1.0, v{t}")
        for t in tmp[:len(regs)]:
            self.e(f"v_rcp_f32 v{t}, v{t}")
        self.e("s_nop 0")
        for r, t in zip(regs, tmp):
            self.e(f"v_mul_f32 v{r}, v{r}, v{t}")

    def layernorm(self, X, t, extra=None):
        e = self.e
        S = X + (extra or [])
        e(f"v_add_f32 v{t[0]}, v{S[0]}, v{S[1]}\nv_mul_f32 v{t[1]}, v{S[0]}, v{S[0]}")
        e(f"v_fmac_f32 v{t[1]}, v{S[1]}, v{S[1]}")
        for r in S[2:]:
            e(f"v_add_f32 v{t[0]}, v{t[0]}, v{r}\nv_fmac_f32 v{t[1]}, v{r}, v{r}")
        if extra is None:
            self.wave_reduce("v_add_f32", [t[0], t[1]])
            e(f"v_readlane_b32 s60, v{t[0]}, 63\nv_readlane_b32 s61, v{t[1]}, 63")
            e(f"v_mov_b32 v{t[2]}, {hex(f2u(1.0/448))}")
            e(f"v_mul_f32 v{t[0]}, s60, v{t[2]}\nv_mul_f32 v{t[1]}, s61, v{t[2]}")
        else:
            self.wave_reduce("v_add_f32", [t[0], t[1]], nsteps=4)
            e(f"v_mov_b32 v{t[2]}, v{t[0]}\nv_mov_b32 v{t[3]}, v{t[1]}\ns_nop 1")
            e(f"v_permlane16_swap_b32 v{t[0]}, v{t[2]}\nv_permlane16_swap_b32 v{t[1]}, v{t[3]}")
            e(f"v_add_f32 v{t[0]}, v{t[0]}, v{t[2]}\nv_add_f32 v{t[1]}, v{t[1]}, v{t[3]}")
            e(f"v_mul_f32 v{t[0]}, {hex(f2u(1.0/448))}, v{t[0]}\nv_mul_f32 v{t[1]}, {hex(f2u(1.0/448))}, v{t[1]}")
        e(f"v_fma_f32 v{t[1]}, -v{t[0]}, v{t[0]}, v{t[1]}\nv_max_f32 v{t[1]}, 0, v{t[1]}")
        e(f"v_cvt_pk_bf16_f32 v{t[2]}, v{t[0]}, v{t[1]}")
        e(f"v_lshlrev_b32 v{t[0]}, 16, v{t[2]}\nv_and_b32 v{t[1]}, 0xffff0000, v{t[2]}")
        e(f"v_add_f32 v{t[1]}, {hex(f2u(1e-5))}, v{t[1]}")
        self.rbf1(t[1])
        e(f"v_sqrt_f32 v{t[1]}, v{t[1]}")
        for k in range(8):
            e(f"v_sub_f32 v{X[k]}, v{X[k]}, v{t[0]}")
        self.rbf1(t[1])
        e(f"v_rcp_f32 v{t[1]}, v{t[1]}")
        self.rbf_pairs(X, t[2:6])
        for k in range(8):
            e(f"v_mul_f32 v{X[k]}, v{X[k]}, v{t[1]}")
        self.rbf_pairs(X, t[2:6])

    def modulate(self, X, OC, SH, out, t):
        for k in range(8):
            self.e(f"v_mul_f32 v{X[k]}, v{X[k]}, v{OC[k]}")
        self.rbf_pairs(X, t)
        for k in range(8):
            self.e(f"v_add_f32 v{X[k]}, v{X[k]}, v{SH[k]}")
        for k in range(4):
            self.e(f"v_cvt_pk_bf16_f32 v{out[k]}, v{X[2*k]}, v{X[2*k+1]}")

    def gather(self, loads, vtag, sel, active, sleep=0):
        e = self.e
        top, done = self.lab("gat"), self.lab("gdone")
        for k in range(len(loads)):
            e(f"s_mov_b64 s[{64+2*k}:{65+2*k}], 1")
        e(f"s_mov_b64 exec, {active}\n{top}:")
        for k, (nd, raw, clean, va, so, imm) in enumerate(loads):
            sk = self.lab("gs")
            dst = f"v{raw}" if nd == 1 else f"v[{raw}:{raw+nd-1}]"
            suf = "" if nd == 1 else f"x{nd}"
            if len(loads) > 1:
                e(f"s_cmp_eq_u64 s[{64+2*k}:{65+2*k}], 0\ns_cbranch_scc1 {sk}")
            e(f"buffer_load_dword{suf} {dst}, v{va}, s[32:35], {so} offen offset:{imm} sc1")
            e(f"{sk}:")
        e("s_waitcnt vmcnt(0)")
        for k, (nd, raw, clean, va, so, imm) in enumerate(loads):
            for j in range(nd):
                e(f"v_xor_b32 v{clean+j}, v{raw+j}, v{vtag}")
            if nd == 1:
                chk = clean
            elif nd == 2:
                chk = 1
                e(f"v_or_b32 v1, v{clean}, v{clean+1}")
            else:
                chk = 1
                e(f"v_or3_b32 v1, v{clean}, v{clean+1}, v{clean+2}\nv_or_b32 v1, v1, v{clean+3}")
            e(f"v_cmp_ne_u32_sdwa s[{64+2*k}:{65+2*k}], v{chk}, v2 src0_sel:{sel} src1_sel:DWORD")
        e("s_or_b64 s[62:63], s[64:65], s[64:65]")
        for k in range(1, len(loads)):
            e(f"s_or_b64 s[62:63], s[62:63], s[{64+2*k}:{65+2*k}]")
        e(f"s_cbranch_scc0 {done}")
        self.budget()
        if sleep:
            e(f"s_sleep {sleep}")
        e(f"s_branch {top}\n{done}:\ns_mov_b64 exec, -1")

    def lds_wait(self, vaddr, off, sreg, need, sleep):
        e = self.e
        top, go = self.lab("lw"), self.lab("lgo")
        e(f"s_cmp_ge_u32 s{sreg}, {need}\ns_cbranch_scc1 {go}\n{top}:")
        e(f"ds_read_b32 v1, v{vaddr} offset:{off}\ns_waitcnt lgkmcnt(0)\nv_readfirstlane_b32 s{sreg}, v1")
        e(f"s_cmp_ge_u32 s{sreg}, {need}\ns_cbranch_scc1 {go}")
        self.budget()
        e(f"s_sleep {sleep}\ns_branch {top}\n{go}:")

    def dma_step(self, vaddr, srd, lds_sreg_or_imm, pol):
        self.e(f"s_mov_b32 m0, {lds_sreg_or_imm}\ns_nop 0")
        self.e(f"buffer_load_dwordx4 v{vaddr}, s[{srd}:{srd+3}], s58 offen {pol} lds")

    def tr_reads(self, dst, vtr, off):
        self.e(f"ds_read_b64_tr_b16 v[{dst}:{dst+1}], v{vtr} offset:{off}")
        self.e(f"ds_read_b64_tr_b16 v[{dst+2}:{dst+3}], v{vtr} offset:{off+512}")

    def loader(self):
        e, D = self.e, self.D
        lev = self.lev or [D]
        ctl = self.lev is not None
        P, PW = self.period, self.pwait
        ng = D // 4
        e("L_loader:\ns_setprio 3")
        e(f"v_lshlrev_b32 v1, 4, v0\nv_lshlrev_b32 v2, 2, v0\nv_add_u32 v2, {FULL}, v2\nv_mov_b32 v3, {FREE}")
        e("v_mov_b32 v6, 0\nv_mov_b32 v7, 0\nv_mov_b32 v8, 0")
        e("s_lshl_b32 s30, s2, 21\ns_mov_b32 s31, 0x200000\ns_waitcnt lgkmcnt(0)")
        self.stamp(0)
        e("s_add_u32 s32, s6, s30\ns_addc_u32 s33, s7, 0\ns_mov_b32 s34, 0x200000\ns_mov_b32 s35, 0x20000")
        e("s_add_u32 s36, s8, s30\ns_addc_u32 s37, s9, 0\ns_mov_b32 s38, 0x200000\ns_mov_b32 s39, 0x20000")
        for n in range(ng):
            e(f"s_mov_b32 m0, {n*4096}\ns_mov_b32 s41, {n*4096}")
            for k in range(4):
                e(f"buffer_load_dwordx4 v1, s[32:35], s41 offen offset:{k*1024} {self.kvpol} lds")
        e(f"s_mov_b32 s40, {ng}\ns_mov_b32 s41, {ng*4096}\ns_mov_b32 s44, {2*NSLOT}\ns_mov_b32 s45, {lev.index(D)}")
        if ctl:
            e(f"s_lshr_b32 s48, s2, 3\ns_and_b32 s48, s48, {self.nsh-1}\ns_lshl_b32 s48, s48, 8\ns_add_u32 s48, s48, {WS_CTR}")
        e("s_barrier")
        for ph, srd in enumerate((32, 36)):
            top, back, slow, go, cont, spec = (f"L_ld{x}{ph}" for x in ("", "b", "s", "g", "c", "x"))
            e(f"{top}:\ns_cmp_lt_u32 s40, s44\ns_cbranch_scc0 {slow}\n{back}:")
            e(f"s_and_b32 s42, s41, {NSLOT*8192-1}\ns_mov_b32 m0, s42")
            for q in range(len(lev) - 1, -1, -1):
                if q == len(lev) - 1 or lev[q] != lev[q + 1]:
                    e(f"s_sub_u32 s43, s40, {lev[q]//4-1}\ns_waitcnt vmcnt({lev[q]-4})")
                if q and lev[q] != lev[q - 1]:
                    e(f"s_cmp_ge_u32 s45, {q}\ns_cbranch_scc1 {go}")
            e(f"{go}:")
            for k in range(4):
                e(f"buffer_load_dwordx4 v1, s[{srd}:{srd+3}], s41 offen offset:{k*1024} {self.kvpol} lds")
            e("v_mov_b32 v4, s43\nds_write_b32 v2, v4")
            if ctl:
                e(f"s_and_b32 s46, s40, {P-1}\ns_cmp_le_u32 s46, {PW}\ns_cbranch_scc1 {spec}")
            e(f"L_ldr{ph}:\ns_waitcnt lgkmcnt(1)\nv_min3_u32 v5, v6, v7, v8\nds_read_b96 v[6:8], v3")
            e(f"v_readfirstlane_b32 s44, v5\ns_lshl_b32 s44, s44, 1\ns_add_u32 s44, s44, {2*NSLOT}")
            e(f"{cont}:\ns_add_u32 s40, s40, 1\ns_add_u32 s41, s41, 4096")
            e(f"s_cmp_lt_u32 s41, 0x200000\ns_cbranch_scc1 {top}")
            if ph == 0:
                e("s_mov_b32 s41, 0")
                self.stamp(1)
        for k in range(max(lev) // 4 - 1, -1, -1):
            e(f"s_max_u32 s43, s43, {1024-k}\nv_mov_b32 v4, s43\ns_waitcnt vmcnt({4*k})\nds_write_b32 v2, v4")
        self.stamp(2)
        self.end()
        for ph in range(2):
            e(f"L_lds{ph}:\ns_sleep 1\nds_read_b96 v[6:8], v3\ns_waitcnt lgkmcnt(0)\nv_min3_u32 v5, v6, v7, v8")
            self.budget()
            if self.stamps:
                e("s_add_u32 s98, s98, 1")
            e(f"v_readfirstlane_b32 s44, v5\ns_lshl_b32 s44, s44, 1\ns_add_u32 s44, s44, {2*NSLOT}")
            e(f"s_cmp_lt_u32 s40, s44\ns_cbranch_scc1 L_ldb{ph}\ns_branch L_lds{ph}")
            if ctl:
                e(f"L_ldx{ph}:\ns_cmp_lt_u32 s40, {self.cstart}\ns_cbranch_scc1 L_ldr{ph}")
                e(f"s_cmp_lg_u32 s46, 0\ns_cbranch_scc1 L_ldy{ph}")
                e(f"s_mov_b32 s47, 1\ns_atomic_add s47, s[28:29], s48 glc\ns_branch L_ldc{ph}")
                e(f"L_ldy{ph}:\ns_cmp_lg_u32 s46, {PW}\ns_cbranch_scc1 L_ldc{ph}")
                sh = (256 // self.nsh // len(lev)).bit_length() - 1
                e(f"s_waitcnt lgkmcnt(0)\ns_lshr_b32 s45, s47, {sh}\ns_add_u32 s48, s48, {256*self.nsh}")
                if self.stamps:
                    e("s_add_u32 s96, s96, s45")
                e(f"s_branch L_ldc{ph}")

    def consumer(self):
        e = self.e
        NP = self.prepull
        BUF = [96 + 32 * u for u in range(NP)]
        QB, DQ, O0, O1, AP, MK, P = 64, 16, 20, 24, 32, 28, 12
        vK, vV, vA, vM, vS, vSL = 3, 4, 5, 6, 7, 8

        def pull(buf, vbase, after=None):
            e("s_lshl_b32 s43, s40, 1\ns_add_u32 s43, s43, 2")
            self.lds_wait(vM, FULL - MISC, 42, "s43", 1)
            e(f"s_and_b32 s44, s40, {NSLOT-1}\ns_lshl_b32 s44, s44, 13\nv_add_u32 v{vA}, s44, v{vbase}")
            for k in range(8):
                e(f"ds_read_b128 v[{buf+4*k}:{buf+4*k+3}], v{vA} offset:{(k>>1)*2048+(k&1)*256}")

        def release():
            e(f"v_mov_b32 v1, s41\nds_write_b32 v9, v1")

        def qk(buf, counted):
            for k in range(8):
                if counted:
                    e(f"s_waitcnt lgkmcnt({7-k})")
                c = "0" if k == 0 else f"v[{DQ}:{DQ+3}]"
                e(f"v_mfma_f32_16x16x32_bf16 v[{DQ}:{DQ+3}], v[{buf+4*k}:{buf+4*k+3}], v[{QB+4*k}:{QB+4*k+3}], {c}")
            if counted:
                release()
                e("s_nop 5")
            else:
                e("s_nop 7")
            e(f"v_mov_b32_dpp v10, v{DQ} quad_perm:[0,0,0,0] {DPPF}")
            e(f"v_mov_b32_dpp v11, v{DQ+2} quad_perm:[2,2,2,2] {DPPF}\ns_nop 0")
            e(f"v_add_f32_dpp v10, v{DQ+1}, v10 quad_perm:[1,1,1,1] {DPPF}")
            e(f"v_add_f32_dpp v11, v{DQ+3}, v11 quad_perm:[3,3,3,3] {DPPF}")
            e("v_add_f32 v10, v10, v11")
            self.rbf1(10)

        e("L_consumer:\ns_sub_u32 s30, s3, 1\ns_mov_b32 s31, 0x200000\ns_mov_b32 s42, 0")
        e(f"v_mov_b32 v{vM}, {MISC}")
        e(f"s_cmp_lg_u32 s30, 0\ns_cbranch_scc1 L_noinit")
        e(f"v_lshl_add_u32 v1, v0, 3, v{vM}\nv_mov_b32 v10, 0\nv_mov_b32 v11, 0\nds_write_b64 v1, v[10:11]\nL_noinit:")
        e("v_lshrrev_b32 v13, 4, v0\nv_and_b32 v14, 15, v0\nv_bfe_u32 v15, v0, 2, 2\nv_and_b32 v2, 3, v0")
        e(f"v_lshlrev_b32 v{vK}, 6, v13\nv_lshl_add_u32 v{vK}, v2, 4, v{vK}\nv_mov_b32 v12, v{vK}")
        e(f"v_lshl_add_u32 v{vK}, v15, 9, v{vK}")
        e(f"v_lshlrev_b32 v{vV}, 9, v13\nv_lshl_add_u32 v{vV}, v14, 4, v{vV}")
        e(f"s_mul_i32 s45, s30, {SC_STRIDE}\ns_add_u32 s45, s45, {SC}")
        e(f"v_and_b32 v{vS}, 60, v0\nv_add_u32 v{vS}, s45, v{vS}")
        e(f"v_lshlrev_b32 v{vSL}, 4, v0\nv_add_u32 v{vSL}, s45, v{vSL}")
        e(f"s_lshl_b32 s46, s30, 2\ns_add_u32 s46, s46, {FREE}\nv_mov_b32 v9, s46")
        e("v_and_b32 v1, 1, v0\nv_mov_b32 v10, 0xffff\nv_lshlrev_b32 v1, 4, v1\nv_lshlrev_b32 v10, v1, v10")
        e("v_lshrrev_b32 v1, 1, v14")
        for r in range(4):
            e(f"v_cmp_eq_u32 vcc, {r}, v1\ns_nop 1\nv_cndmask_b32 v{MK+r}, 0, v10, vcc")
        for r in range(8):
            e(f"v_mov_b32 v{O0+r}, 0")
        e("s_waitcnt lgkmcnt(0)\ns_barrier")
        e("s_mov_b32 s40, s30")
        for u in range(NP):
            pull(BUF[u], vK)
            e("s_add_u32 s41, s40, 3\ns_waitcnt lgkmcnt(0)")
            release()
            e("s_mov_b32 s40, s41")
        e("s_mov_b32 s47, 0")
        self.stamp(0)
        self.lds_wait(vM, QRDY - MISC, 47, 1, 1)
        self.stamp(1)
        e(f"v_add_u32 v12, {QV}, v12")
        e(f"ds_read_b128 v[{AP}:{AP+3}], v12\nds_read_b128 v[{AP+4}:{AP+7}], v12 offset:256")
        for r in range(4):
            e(f"v_mov_b32 v{DQ+r}, 0xff800000")
        e(f"ds_write_b128 v{vSL}, v[{DQ}:{DQ+3}] offset:5120\ns_waitcnt lgkmcnt(0)")
        for t in range(4):
            e(f"v_cmp_eq_u32 vcc, {t}, v15\ns_nop 1")
            for k in range(8):
                e(f"v_cndmask_b32 v{QB+8*t+k}, 0, v{AP+k}, vcc")
        e("s_nop 1")
        qk(BUF[0], False)
        e(f"ds_write_b32 v{vS}, v10")
        e(f"v_add_u32 v2, {64*NP}, v{vS}\ns_add_u32 s48, s30, 256")
        e("L_kloop:")
        e("s_add_u32 s41, s40, 3\ns_cmp_lt_u32 s41, 256\ns_cselect_b32 s41, s41, s48")
        pull(BUF[0], vK)
        qk(BUF[0], True)
        e("ds_write_b32 v2, v10\nv_add_u32 v2, 64, v2")
        e("s_mov_b32 s40, s41\ns_cmp_lt_u32 s40, 256\ns_cbranch_scc1 L_kloop")
        for u in range(1, NP):
            qk(BUF[u], False)
            e(f"ds_write_b32 v{vS}, v10 offset:{64*u}")
        self.stamp(2)
        S = BUF[0]
        for k in range(6):
            e(f"ds_read_b128 v[{S+4*k}:{S+4*k+3}], v{vSL} offset:{1024*k}")
        e("s_waitcnt lgkmcnt(0)")
        e(f"v_max_f32 v10, v{S}, v{S+1}")
        for k in range(2, 24, 2):
            e(f"v_max3_f32 v10, v10, v{S+k}, v{S+k+1}")
        self.wave_reduce("v_max_f32", [10])
        e(f"v_readlane_b32 s50, v10, 63\ns_mov_b32 s51, {hex(C2)}\ns_nop 0")
        for k in range(24):
            e(f"v_subrev_f32 v{S+k}, s50, v{S+k}")
        for k in range(24):
            e(f"v_mul_f32 v{S+k}, s51, v{S+k}")
        for k in range(24):
            e(f"v_exp_f32 v{S+k}, v{S+k}")
        e(f"v_add_f32 v10, v{S}, v{S+1}")
        for k in range(2, 24):
            e(f"v_add_f32 v10, v10, v{S+k}")
        for k in range(24):
            e(f"v_cvt_pk_bf16_f32 v{S+k}, v{S+k}, v{S+k}")
        for k in range(6):
            e(f"ds_write_b128 v{vSL}, v[{S+4*k}:{S+4*k+3}] offset:{1024*k}")
        self.wave_reduce("v_add_f32", [10])
        e(f"v_readlane_b32 s52, v10, 63\nv_mov_b32 v{DQ}, s50\nv_mov_b32 v{DQ+2}, 1\nv_mov_b32 v{DQ+3}, 1")
        e(f"v_mov_b32 v{DQ+1}, s52\ns_lshl_b32 s46, s30, 4\ns_add_u32 s46, s46, {ML}\nv_mov_b32 v1, s46")
        e(f"ds_write_b128 v1, v[{DQ}:{DQ+3}]\nv_mov_b32 v2, v{vS}")
        self.stamp(3)
        e("L_vloop:")
        e(f"s_add_u32 s41, s40, 3\nds_read_b32 v{P}, v2\nv_add_u32 v2, 64, v2\ns_waitcnt lgkmcnt(0)")
        for t in range(4):
            for r in range(4):
                e(f"v_and_b32_dpp v{AP+4*t+r}, v{P}, v{MK+r} row_newbcast:{4*t} {DPPF}")
        pull(BUF[0], vV)
        for k in range(8):
            o = O0 if k % 2 == 0 else O1
            a = AP + 4 * (k >> 1)
            e(f"s_waitcnt lgkmcnt({7-k})")
            e(f"v_mfma_f32_16x16x32_bf16 v[{o}:{o+3}], v[{a}:{a+3}], v[{BUF[0]+4*k}:{BUF[0]+4*k+3}], v[{o}:{o+3}]")
        release()
        e("s_mov_b32 s40, s41\ns_cmp_lt_u32 s40, 512\ns_cbranch_scc1 L_vloop")
        e("v_lshlrev_b32 v1, 5, v14\nv_lshl_add_u32 v1, v13, 4, v1\nv_add_u32 v1, s45, v1")
        e("s_mov_b32 exec_hi, 0")
        e(f"ds_write_b128 v1, v[{O0}:{O0+3}]\nds_write_b128 v1, v[{O1}:{O1+3}] offset:512")
        e("s_waitcnt lgkmcnt(0)\ns_barrier")
        self.stamp(4)
        self.end()

    def unit_mfma_lds(self, B, A, vA, nsteps, D):
        for s in range(nsteps):
            self.e(f"ds_read_b128 v[{A+4*s}:{A+4*s+3}], v{vA} offset:{64*s}")
        for s in range(nsteps):
            self.e(f"s_waitcnt lgkmcnt({nsteps-1-s})")
            c = "0" if s == 0 else f"v[{D}:{D+3}]"
            self.e(f"v_mfma_f32_16x16x32_bf16 v[{D}:{D+3}], v[{A+4*s}:{A+4*s+3}], v[{B+4*s}:{B+4*s+3}], {c}")
        self.e("s_nop 7")

    def unit_mfma_dpp(self, B, src, A, D):
        def bc(s):
            for r in range(4):
                self.e(f"v_mov_b32_dpp v{A+4*(s%3)+r}, v{src+r} row_newbcast:{s} {DPPF}")
        self.e("s_nop 1")
        bc(0)
        for s in range(14):
            if s < 13:
                bc(s + 1)
            else:
                self.e("s_nop 0")
            a = A + 4 * (s % 3)
            c = "0" if s == 0 else f"v[{D}:{D+3}]"
            self.e(f"v_mfma_f32_16x16x32_bf16 v[{D}:{D+3}], v[{a}:{a+3}], v[{B+4*s}:{B+4*s+3}], {c}")
        self.e("s_nop 7")

    def soft_barrier(self, vM):
        self.e(f"s_add_u32 s45, s45, 4\nv_mov_b32 v1, 1\ns_mov_b64 exec, 1\n"
               f"ds_add_u32 v{vM}, v1 offset:{BAR-MISC}\ns_mov_b64 exec, -1")
        self.lds_wait(vM, BAR - MISC, 44, "s45", 2)

    def unit_load(self, dst, rounds, srd, stride, advance, vM):
        e = self.e
        e(f"s_lshl_b32 s60, s30, 4\nv_add_u32 v9, s60, v6\nv_mul_u32_u24 v9, {stride}, v9\nv_add_u32 v9, v9, v7")
        e(f"v_add_u32 v14, {8*stride}, v9")
        for rd in range(rounds):
            self.dma_step(9, srd, "s57", self.wpol)
            self.dma_step(14, srd, "s59", self.wpol)
            e(f"s_add_u32 s58, s58, {advance}\ns_waitcnt vmcnt(0)")
            self.soft_barrier(vM)
            self.tr_reads(dst + 8 * rd, 8, 0)
            self.tr_reads(dst + 8 * rd + 4, 8, 4096)
            e("s_waitcnt lgkmcnt(0)")
            self.soft_barrier(vM)

    def sum_round(self, a, b, n, tmp):
        for k in range(n):
            self.e(f"v_add_f32 v{a+k}, v{a+k}, v{b+k}")
        if n == 1:
            self.rbf1(a)
        else:
            self.rbf_pairs(list(range(a, a + n)), tmp)

    def service(self):
        e = self.e
        WO, W1, W2 = 32, 64, 120
        OCB, SB, GA, XP, GB, F = 176, 184, 192, 194, 196, 197
        RAW, AD, DD = 200, 232, 244
        vT8, vT16, vM = 10, 11, 12
        LM, HM = "s[50:51]", "s[52:53]"
        e("L_service:\ns_sub_u32 s30, s3, 4\ns_mov_b32 s31, 0x80000")
        e("s_and_b32 s48, s2, 7\ns_lshr_b32 s49, s2, 3")
        e("s_mov_b32 s50, 0x3fff3fff\ns_mov_b32 s51, 0x3fff3fff\ns_mov_b32 s52, 0x0fffffff\ns_mov_b32 s53, 0x0fffffff")
        e("v_mov_b32 v2, 0\nv_lshrrev_b32 v3, 4, v0\nv_and_b32 v4, 15, v0")
        e("v_lshlrev_b32 v5, 6, v4\nv_lshl_add_u32 v5, v3, 4, v5")
        e("v_lshrrev_b32 v6, 3, v0\nv_and_b32 v7, 7, v0\nv_lshlrev_b32 v7, 4, v7")
        e("v_lshlrev_b32 v8, 10, v3\nv_bfe_u32 v1, v0, 2, 2\nv_lshl_add_u32 v8, v1, 7, v8")
        e("v_and_b32 v1, 3, v0\nv_lshl_add_u32 v8, v1, 3, v8")
        e(f"v_mov_b32 v{vM}, {MISC}\ns_mov_b32 s47, 0\ns_waitcnt lgkmcnt(0)")
        self.srd(32, 28, WS_SIZE)
        e("s_cmp_eq_u32 s30, 0\ns_cbranch_scc1 L_pro")
        e("s_barrier")
        self.lds_wait(vM, QRDY - MISC, 47, 1, 8)
        e(f"ds_read_b32 v1, v{vM} offset:{TAG-MISC}\ns_waitcnt lgkmcnt(0)\nv_readfirstlane_b32 s56, v1")
        e(f"v_and_b32 v{vT8}, 0xff, v1\nv_and_b32 v{vT16}, 0xffff, v1\ns_branch L_bg")

        PB, PA, PRAW, PCL, PN, PC, PD = 32, 144, 144, 176, 208, 224, 232
        e("L_pro:")
        if self.diag_total:
            e("s_memrealtime s[100:101]")
        self.stamp(0)
        e("s_load_dword s56, s[28:29], 0")
        e("s_and_b32 s54, s2, 1\ns_bfe_u32 s55, s2, 0x60001")
        e("s_cmp_ge_u32 s2, 128")
        e("s_cselect_b32 s36, s4, s20\ns_cselect_b32 s37, s5, s21\ns_mov_b32 s38, 1792\ns_mov_b32 s39, 0x20000")
        e("s_cselect_b32 s40, s10, s22\ns_cselect_b32 s41, s11, s23\ns_mov_b32 s43, 0x20000")
        e(f"s_mov_b32 s46, 5376\ns_cselect_b32 s46, 8192, s46\ns_mul_i32 s42, s46, 448")
        e("s_cbranch_scc1 L_unit\ns_cmp_lt_u32 s2, 84\ns_cbranch_scc1 L_unit")
        e("s_barrier\ns_waitcnt lgkmcnt(0)\ns_add_u32 s56, s56, 1")
        e(f"s_and_b32 s60, s56, 0xff\nv_mov_b32 v{vT8}, s60\ns_and_b32 s60, s56, 0xffff\nv_mov_b32 v{vT16}, s60")
        e("s_branch L_getq")
        e("L_unit:")
        for k in range(8):
            e(f"v_mov_b32 v{PC+k}, 0")
        if self.lev:
            per = -(-((1024 - 64) // self.period * self.nsh) // 28)
            assert per <= 16 and per * 28 * 256 <= WS_SIZE - WS_CTR
            e(f"s_cmp_ge_u32 s2, 28\ns_cbranch_scc1 L_noz\ns_mul_i32 s58, s2, {per*256}\ns_add_u32 s58, s58, {WS_CTR}")
            e("v_lshrrev_b32 v1, 2, v0\nv_and_b32 v9, 3, v0\nv_lshlrev_b32 v9, 4, v9\nv_lshl_add_u32 v9, v1, 8, v9")
            e(f"v_cmp_gt_u32 vcc, {per}, v1\ns_and_saveexec_b64 s[62:63], vcc")
            e(f"buffer_store_dwordx4 v[{PC}:{PC+3}], v9, s[32:35], s58 offen sc1\ns_mov_b64 exec, -1\nL_noz:")
        e("v_lshrrev_b32 v1, 5, v0\nv_and_b32 v15, 31, v0\nv_mul_u32_u24 v13, 896, v1\nv_lshl_add_u32 v13, v15, 4, v13")
        e("s_mul_i32 s58, s54, 448\ns_sub_u32 s59, 448, s58")
        e(f"s_mov_b64 exec, {HM}")
        e(f"buffer_load_dwordx4 v[{PC}:{PC+3}], v13, s[36:39], s58 offen")
        e(f"buffer_load_dwordx4 v[{PC+4}:{PC+7}], v13, s[36:39], s59 offen")
        e("s_mov_b64 exec, -1")
        e("v_mul_u32_u24 v9, s46, v6\nv_add_u32 v9, v9, v7")
        e("s_mul_i32 s58, s54, 224\ns_mul_i32 s58, s58, s46\ns_lshl_b32 s60, s55, 7\ns_add_u32 s58, s58, s60\ns_lshl_b32 s59, s46, 3")
        for n in range(28):
            self.dma_step(9, 40, PST + 1024 * n, self.wpol)
            e("s_add_u32 s58, s58, s59")
        e("s_barrier")
        e(f"v_mul_u32_u24 v9, {2688*4}, v1\nv_lshl_add_u32 v9, v15, 5, v9")
        e(f"v_mul_u32_u24 v13, 448, v1\nv_lshl_add_u32 v13, v15, 4, v13\nv_add_u32 v13, {AIM}, v13")
        e(f"v_bfe_u32 v1, v0, 2, 1\nv_mul_u32_u24 v14, 448, v1\nv_lshl_add_u32 v14, v3, 4, v14\nv_add_u32 v14, {AIM}, v14")
        e(f"v_add_u32 v15, {PST}, v8")
        e("s_waitcnt lgkmcnt(0)\ns_add_u32 s56, s56, 1")
        e(f"s_and_b32 s60, s56, 0xff\nv_mov_b32 v{vT8}, s60\ns_and_b32 s60, s56, 0xffff\nv_mov_b32 v{vT16}, s60")
        e("s_waitcnt vmcnt(28)")
        X = list(range(PN, PN + 8))
        self.unpack(list(range(PC, PC + 8)), list(range(PN, PN + 16)))
        e("s_cmp_ge_u32 s2, 128\ns_cbranch_scc1 L_ln1")
        self.silu(X, list(range(PN + 8, PN + 16)))
        for k in range(4):
            e(f"v_cvt_pk_bf16_f32 v{PC+k}, v{X[2*k]}, v{X[2*k+1]}")
        e("s_branch L_frag\nL_ln1:")
        self.layernorm(X, list(range(16, 22)), extra=list(range(PN + 8, PN + 16)))
        e("L_frag:\ns_waitcnt vmcnt(0)")
        self.stamp(1)
        for st in range(7):
            for u in range(4):
                self.tr_reads(PB + 16 * st + 4 * u, 15, 4096 * st + 32 * u)
        self.stamp(2)
        e("s_cmp_lt_u32 s2, 128\ns_cbranch_scc1 L_mm")
        e(f"s_mul_i32 s58, s54, 896\ns_add_u32 s58, s58, {WS_MOD}\ns_add_u32 s59, s58, {2*2688*4}")
        loads = []
        for p in range(2):
            for m in range(2):
                for hf in range(2):
                    k = (p * 2 + m) * 2 + hf
                    loads.append((4, PRAW + 4 * k, PCL + 4 * k, 9, f"s{58+p}", m * 448 * 4 + hf * 16))
        self.gather(loads, vT8, "BYTE_0", HM)
        self.stamp(3)
        self.sum_round(PCL, PCL + 16, 16, list(range(16, 24)))
        CA = list(range(PCL + 8, PCL + 16))
        for r in CA:
            e(f"v_add_f32 v{r}, 1.0, v{r}")
        self.rbf_pairs(CA, list(range(16, 20)))
        self.modulate(X, CA, list(range(PCL, PCL + 8)), list(range(PC, PC + 4)), list(range(16, 20)))
        e("L_mm:")
        e(f"s_mov_b64 exec, {HM}\nds_write_b128 v13, v[{PC}:{PC+3}]\ns_mov_b64 exec, -1\ns_waitcnt lgkmcnt(0)")
        for st in range(7):
            e(f"ds_read_b128 v[{PA+4*st}:{PA+4*st+3}], v14 offset:{64*st}")
        e("s_lshl_b32 s46, s46, 1\nv_and_b32 v1, 1, v3\nv_mul_u32_u24 v9, s46, v1\nv_lshrrev_b32 v1, 5, v0")
        e("v_lshl_add_u32 v9, v1, 6, v9\nv_lshl_add_u32 v9, v4, 2, v9")
        e(f"s_mul_i32 s58, s54, s46\ns_lshl_b32 s58, s58, 1\ns_lshl_b32 s60, s55, 8\ns_add_u32 s58, s58, s60")
        e(f"s_mov_b32 s60, {WS_MOD}\ns_cmp_ge_u32 s2, 128\ns_cselect_b32 s60, {WS_Q}, s60\ns_add_u32 s58, s58, s60")
        e("s_mov_b32 s60, 0xffffff00")
        for st in range(7):
            e(f"s_waitcnt lgkmcnt({6-st})")
            for u in range(4):
                d, b = PD + 4 * u, PB + 16 * st + 4 * u
                c = "0" if st == 0 else f"v[{d}:{d+3}]"
                e(f"v_mfma_f32_16x16x32_bf16 v[{d}:{d+3}], v[{PA+4*st}:{PA+4*st+3}], v[{b}:{b+3}], {c}")
        e("s_nop 7")
        for v in range(2):
            e(f"v_mov_b32_dpp v{PD+8*v}, v{PD+8*v+4} quad_perm:[0,1,2,3] row_mask:0xc bank_mask:0xf")
        for v in range(2):
            e(f"v_and_or_b32 v{PD+8*v}, v{PD+8*v}, s60, v{vT8}")
            e(f"buffer_store_dword v{PD+8*v}, v9, s[32:35], s58 offen offset:{128*v} sc1")
        self.stamp(4)
        e("L_getq:")
        e(f"v_lshlrev_b32 v9, 4, v0\ns_lshl_b32 s58, s49, 10\ns_add_u32 s58, s58, {WS_Q}\ns_add_u32 s59, s58, 0x8000")
        self.gather([(4, PRAW, PCL, 9, "s58", 0), (4, PRAW + 4, PCL + 4, 9, "s59", 0)], vT8, "BYTE_0", "-1",
                    sleep=self.qsleep)
        for k in range(4):
            e(f"v_add_f32 v{PCL+k}, v{PCL+k}, v{PCL+4+k}")
        e(f"v_cvt_pk_bf16_f32 v16, v{PCL}, v{PCL+1}\nv_cvt_pk_bf16_f32 v17, v{PCL+2}, v{PCL+3}")
        e(f"v_lshl_add_u32 v1, v0, 3, v{vM}\nds_write_b64 v1, v[16:17] offset:{QV-MISC}")
        e(f"v_mov_b32 v18, 1\nv_mov_b32 v19, s56\nds_write_b64 v{vM}, v[18:19] offset:{QRDY-MISC}")
        self.stamp(5)

        e("L_bg:")
        e(f"s_lshl_b32 s57, s30, 11\ns_add_u32 s57, s57, {STG}\ns_add_u32 s59, s57, 1024")
        e(f"s_lshl_b32 s60, s30, 5\ns_add_u32 s60, s60, {STG}\nv_add_u32 v8, s60, v8\ns_mov_b32 s44, 0\ns_mov_b32 s45, 0")
        e("s_cmp_eq_u32 s48, 7\ns_cbranch_scc1 L_bgdone")
        self.srd(36, 12, 4096 * 896)
        e(f"s_and_b32 s58, s49, 15\ns_mul_i32 s58, s58, {256*896}\ns_lshl_b32 s60, s48, 7\ns_add_u32 s58, s58, s60")
        self.unit_load(WO, 4, 36, 896, 64 * 896, vM)
        e("s_lshr_b32 s60, s49, 3\ns_cmp_lg_u32 s60, 1\ns_cbranch_scc1 L_bgdone")
        e("s_bfe_u32 s54, s49, 0x10002\ns_and_b32 s55, s49, 3\ns_lshl_b32 s60, s48, 2\ns_add_u32 s55, s55, s60")
        self.srd(36, 16, 448 * 3584)
        e("s_lshl_b32 s58, s55, 7")
        self.unit_load(W1, 7, 36, 3584, 64 * 3584, vM)
        self.srd(36, 18, 1792 * 896)
        e(f"s_mul_i32 s58, s55, {64*896}")
        self.unit_load(W2, 7, 36, 896, 128, vM)
        e("v_and_b32 v1, 31, v0\nv_lshlrev_b32 v13, 2, v1\nv_lshrrev_b32 v1, 5, v0\nv_lshl_add_u32 v13, v1, 1, v13")
        e("s_mul_i32 s60, s30, 112\nv_add_u32 v13, s60, v13")
        self.srd(36, 4, 1792)
        e(f"v_lshlrev_b32 v14, 1, v13\ns_mul_i32 s58, s54, 896\nbuffer_load_dword v{XP}, v14, s[36:39], s58 offen")
        e(f"s_mul_i32 s58, s54, {2688*4}\ns_add_u32 s58, s58, {WS_MOD+896*4}\ns_add_u32 s59, s58, {2*2688*4}\nv_lshlrev_b32 v9, 2, v13")
        self.gather([(2, RAW, GA, 9, "s58", 0), (2, RAW + 2, 16, 9, "s59", 0)], vT8, "BYTE_0", HM, sleep=8)
        self.sum_round(GA, 16, 2, [18])
        e(f"v_and_b32 v{XP+1}, 0xffff0000, v{XP}\nv_lshlrev_b32 v{XP}, 16, v{XP}")
        e("v_lshlrev_b32 v9, 1, v5")
        loads = []
        for p in range(2):
            for m, dst in enumerate((SB, OCB)):
                for hf in range(2):
                    k = (p * 2 + m) * 2 + hf
                    cl = dst + 4 * hf if p == 0 else AD + 8 * (1 - m) + 4 * hf
                    loads.append((4, RAW + 4 * k, cl, 9, f"s{58+p}", (m + 1) * 448 * 4 + hf * 16))
        self.gather(loads, vT8, "BYTE_0", LM, sleep=8)
        self.sum_round(OCB, AD, 16, list(range(16, 24)))
        e(f"s_lshl_b32 s60, s55, 6\ns_add_u32 s58, s58, s60\ns_add_u32 s58, s58, {1344*4}\ns_add_u32 s59, s58, {2*2688*4}")
        e("v_lshlrev_b32 v9, 2, v4")
        self.gather([(1, RAW, GB, 9, "s58", 0), (1, RAW + 1, 16, 9, "s59", 0)], vT8, "BYTE_0", "-1", sleep=8)
        self.sum_round(GB, 16, 1, None)
        for k in range(8):
            e(f"v_add_f32 v{OCB+k}, 1.0, v{OCB+k}")
        self.rbf_pairs(list(range(OCB, OCB + 8)), list(range(16, 20)))
        e("L_bgdone:")
        e("s_cmp_lg_u32 s30, 0\ns_cbranch_scc1 L_tail0")

        top, go = self.lab("ml"), self.lab("mlgo")
        e(f"{top}:")
        for i in range(3):
            e(f"ds_read_b128 v[{16+4*i}:{19+4*i}], v{vM} offset:{ML-MISC+16*i}")
        e("s_waitcnt lgkmcnt(0)\nv_min3_u32 v1, v18, v22, v26\ns_nop 0\nv_readfirstlane_b32 s60, v1")
        e(f"s_cmp_lg_u32 s60, 0\ns_cbranch_scc1 {go}")
        self.budget()
        e(f"s_sleep 32\ns_branch {top}\n{go}:")
        e(f"s_mov_b32 s61, {hex(C2)}\nv_max3_f32 v28, v16, v20, v24")
        for i in range(3):
            e(f"v_sub_f32 v{18+4*i}, v{16+4*i}, v28\nv_mul_f32 v{18+4*i}, s61, v{18+4*i}\nv_exp_f32 v{18+4*i}, v{18+4*i}")
        e("s_nop 0\nv_mul_f32 v29, v17, v18\nv_fmac_f32 v29, v21, v22\nv_fmac_f32 v29, v25, v26")
        e(f"v_or_b32 v{RAW}, v28, v{vT16}\nv_and_b32 v1, 0xffff0000, v29\nv_or_b32 v{RAW+1}, v1, v{vT16}")
        e(f"v_lshlrev_b32 v1, 16, v29\nv_or_b32 v{RAW+2}, v1, v{vT16}\nv_mov_b32 v{RAW+3}, v{vT16}")
        e(f"s_lshl_b32 s58, s49, 8\ns_add_u32 s58, s58, {WS_ML}\ns_lshl_b32 s60, s48, 4\nv_mov_b32 v1, s60")
        e(f"s_mov_b64 exec, 1\nbuffer_store_dwordx4 v[{RAW}:{RAW+3}], v1, s[32:35], s58 offen sc1\ns_mov_b64 exec, -1")
        e("s_mov_b32 s47, 0")
        self.lds_wait(vM, FULL - MISC, 47, 640, 32)
        e("v_and_b32 v9, 7, v0\nv_lshlrev_b32 v9, 4, v9")
        self.gather([(4, RAW + 4, RAW + 8, 9, "s58", 0)], vT16, "WORD_0", "-1", sleep=16)
        m, l = RAW + 8, RAW + 9
        e(f"v_lshrrev_b32 v{l+1}, 16, v{l+1}\nv_or_b32 v{l}, v{l}, v{l+1}\nv_mov_b32 v28, v{m}")
        oct_steps = ["quad_perm:[1,0,3,2]", "quad_perm:[2,3,0,1]", "row_half_mirror"]
        for st in oct_steps:
            e(f"s_nop 1\nv_max_f32_dpp v28, v28, v28 {st} {DPPF}")
        e(f"v_sub_f32 v{m}, v{m}, v28\nv_mul_f32 v{m}, s61, v{m}\nv_exp_f32 v{m}, v{m}\ns_nop 0\nv_mul_f32 v29, v{m}, v{l}")
        for st in oct_steps:
            e(f"s_nop 1\nv_add_f32_dpp v29, v29, v29 {st} {DPPF}")
        e("v_rcp_f32 v29, v29")
        for i in range(3):
            e(f"v_sub_f32 v{F+i}, v{16+4*i}, v28\nv_mul_f32 v{F+i}, s61, v{F+i}\nv_exp_f32 v{F+i}, v{F+i}\ns_nop 0")
            e(f"v_mul_f32 v{F+i}, v{F+i}, v29")
        e(f"v_lshlrev_b32 v9, 4, v0\nv_add_u32 v14, {SC}, v9\ns_lshl_b32 s58, s2, 10\ns_add_u32 s58, s58, {WS_OP}")
        e("s_mov_b32 s60, 0xffffff00\ns_barrier")
        if self.stamps:
            self.stamp(6)
        for i in range(3):
            e(f"ds_read_b128 v[{16+4*i}:{19+4*i}], v14 offset:{SC_STRIDE*i}")
        e("s_waitcnt lgkmcnt(2)")
        for k in range(4):
            e(f"v_mul_f32 v{16+k}, v{16+k}, v{F}")
        for i in (1, 2):
            e(f"s_waitcnt lgkmcnt({2-i})")
            for k in range(4):
                e(f"v_fmac_f32 v{16+k}, v{16+4*i+k}, v{F+i}")
        for k in range(4):
            e(f"v_and_or_b32 v{16+k}, v{16+k}, s60, v{vT8}")
        e("buffer_store_dwordx4 v[16:19], v9, s[32:35], s58 offen sc1\ns_branch L_tail1")
        e("L_tail0:")
        self.stamp(5)
        e("s_barrier")
        if self.stamps:
            self.stamp(0)
        e("L_tail1:\ns_cmp_eq_u32 s48, 7\ns_cbranch_scc1 L_fin")

        e(f"s_lshl_b32 s58, s49, 13\ns_lshl_b32 s60, s30, 8\ns_add_u32 s58, s58, s60\ns_add_u32 s58, s58, {WS_OP}")
        e("s_add_u32 s59, s58, 4096\nv_lshlrev_b32 v9, 2, v0")
        e(f"s_lshl_b32 s60, s30, 7\ns_add_u32 s60, s60, {QV}\nv_lshl_add_u32 v14, v0, 1, s60")
        e(f"v_lshlrev_b32 v15, 4, v3\nv_add_u32 v15, {QV}, v15")
        self.gather([(1, RAW + k, 20 + k, 9, f"s{58+(k>>2)}", (k & 3) * 1024) for k in range(8)],
                    vT8, "BYTE_0", "-1")
        e("v_add_f32 v20, v20, v21\nv_add_f32 v22, v22, v23\nv_add_f32 v24, v24, v25\nv_add_f32 v26, v26, v27")
        e("v_add_f32 v20, v20, v22\nv_add_f32 v24, v24, v26\nv_add_f32 v20, v20, v24")
        e("v_cvt_pk_bf16_f32 v20, v20, v20\nds_write_b16 v14, v20\ns_waitcnt lgkmcnt(0)\ns_barrier")
        if self.stamps:
            e("s_cmp_eq_u32 s30, 0\ns_cbranch_scc1 L_st1")
            self.stamp(1)
            e("L_st1:")
        e(f"s_mul_i32 s58, s49, {448*4}\ns_lshl_b32 s60, s48, 8\ns_add_u32 s58, s58, s60")
        e(f"s_lshl_b32 s60, s30, 6\ns_add_u32 s58, s58, s60\ns_add_u32 s58, s58, {WS_Y}\ns_mov_b32 s60, 0xffffff00")
        self.unit_mfma_lds(WO, RAW, 15, 8, DD)
        e(f"v_and_or_b32 v{DD}, v{DD}, s60, v{vT8}")
        e(f"s_mov_b64 exec, 0xffff\nbuffer_store_dword v{DD}, v9, s[32:35], s58 offen sc1\ns_mov_b64 exec, -1")
        e("s_lshr_b32 s60, s49, 3\ns_cmp_lg_u32 s60, 1\ns_cbranch_scc1 L_fin")

        e(f"v_lshrrev_b32 v1, 5, v0\nv_mul_u32_u24 v1, {8*448*4-8}, v1\nv_lshl_add_u32 v9, v13, 2, v1")
        e(f"s_mul_i32 s58, s54, {16*448*4}\ns_add_u32 s40, s58, {WS_Y}")
        for k in range(1, 4):
            e(f"s_add_u32 s{40+k}, s40, {k*2*448*4}")
        e(f"v_lshl_add_u32 v14, v13, 1, v{vM}\nv_add_u32 v15, v5, v{vM}")
        e(f"s_lshl_b32 s60, s55, 5\ns_add_u32 s60, s60, {AIM}\nv_lshl_add_u32 v30, v4, 1, s60")
        for k in range(4):
            e(f"v_mov_b32 v{248+k}, 0")
        CL = WO
        self.gather([(4, RAW + 4 * k, CL + 4 * k, 9, f"s{40+(k>>1)}", (k & 1) * 448 * 4) for k in range(8)],
                    vT8, "BYTE_0", HM)
        if self.stamps:
            e("s_cmp_eq_u32 s30, 0\ns_cbranch_scc1 L_st2")
            self.stamp(2)
            e("L_st2:")
        for st in (16, 8, 4):
            for k in range(0, st, 2):
                e(f"v_pk_add_f32 v[{CL+k}:{CL+k+1}], v[{CL+k}:{CL+k+1}], v[{CL+st+k}:{CL+st+k+1}]")
        e(f"s_nop 1\nv_permlane32_swap_b32 v{CL}, v{CL+2}\nv_permlane32_swap_b32 v{CL+1}, v{CL+3}")
        e(f"v_add_f32 v{CL}, v{CL}, v{CL+2}\nv_add_f32 v{CL+1}, v{CL+1}, v{CL+3}")
        self.rbf_pairs([CL, CL + 1], [16])
        e(f"v_mul_f32 v{CL}, v{CL}, v{GA}\nv_mul_f32 v{CL+1}, v{CL+1}, v{GA+1}")
        self.rbf_pairs([CL, CL + 1], [16])
        e(f"v_add_f32 v{CL}, v{CL}, v{XP}\nv_add_f32 v{CL+1}, v{CL+1}, v{XP+1}")
        e(f"v_cvt_pk_bf16_f32 v16, v{CL}, v{CL+1}")
        e(f"s_mov_b64 exec, {HM}\nds_write_b32 v14, v16 offset:{AIM-MISC}\ns_mov_b64 exec, {LM}")
        e("s_waitcnt lgkmcnt(0)\ns_barrier")
        e(f"ds_read_b128 v[248:251], v15 offset:{AIM-MISC}\ns_mov_b64 exec, -1\nds_read_u16 v31, v30\ns_waitcnt lgkmcnt(1)")
        X = list(range(CL, CL + 8))
        self.unpack([248, 249, 250, 251], X)
        self.layernorm(X, list(range(16, 22)))
        self.modulate(X, list(range(OCB, OCB + 8)), list(range(SB, SB + 8)), [248, 249, 250, 251], list(range(16, 20)))
        e(f"s_lshl_b32 s60, s30, 5\ns_add_u32 s60, s60, {RED}\nv_lshl_add_u32 v14, v4, 1, s60")
        e(f"v_lshl_add_u32 v15, v3, 4, v{vM}")
        self.unit_mfma_dpp(W1, 248, AD, DD)
        self.rbf1(DD)
        self.silu([DD], [16])
        e(f"v_cvt_pk_bf16_f32 v{DD}, v{DD}, v{DD}\nds_write_b16 v14, v{DD}\ns_waitcnt lgkmcnt(0)\ns_barrier")
        e(f"ds_read_b128 v[{AD}:{AD+3}], v15 offset:{RED-MISC}\nds_read_b128 v[{AD+4}:{AD+7}], v15 offset:{RED-MISC+64}")
        if self.stamps:
            e("s_cmp_eq_u32 s30, 0\ns_cbranch_scc1 L_st3")
            self.stamp(3)
            e("L_st3:")
        e(f"s_mul_i32 s40, s54, {28*1792}\ns_add_u32 s40, s40, {WS_Z}")
        e(f"s_mul_i32 s58, s30, 1792\ns_lshl_b32 s60, s55, 6\ns_add_u32 s58, s58, s60\ns_add_u32 s58, s58, s40")
        e(f"s_add_u32 s59, s58, {16*1792}\nv_mul_u32_u24 v9, {4*1792}, v3\nv_lshl_add_u32 v9, v4, 2, v9\ns_mov_b32 s60, 0xffffff00")
        for st in range(2):
            e(f"s_waitcnt lgkmcnt({1-st})")
            for rho in range(7):
                d, b = RAW + 4 * rho, W2 + 8 * rho + 4 * st
                c = "0" if st == 0 else f"v[{d}:{d+3}]"
                e(f"v_mfma_f32_16x16x32_bf16 v[{d}:{d+3}], v[{AD+4*st}:{AD+4*st+3}], v[{b}:{b+3}], {c}")
        e("s_nop 4")
        for g in (1, 2, 3):
            e(f"v_mov_b32_dpp v{RAW}, v{RAW+4*g} quad_perm:[0,1,2,3] row_mask:{hex(1<<g)} bank_mask:0xf\ns_nop 1")
        e(f"v_and_or_b32 v{RAW}, v{RAW}, s60, v{vT8}")
        e(f"v_mov_b32_dpp v{RAW+16}, v{RAW+20} quad_perm:[0,1,2,3] row_mask:0x2 bank_mask:0xf")
        e(f"buffer_store_dword v{RAW}, v9, s[32:35], s58 offen sc1\ns_nop 0")
        e(f"v_mov_b32_dpp v{RAW+16}, v{RAW+24} quad_perm:[0,1,2,3] row_mask:0x4 bank_mask:0xf")
        e(f"v_and_or_b32 v{RAW+16}, v{RAW+16}, s60, v{vT8}\ns_mov_b32 exec_hi, 0xffff")
        e(f"buffer_store_dword v{RAW+16}, v9, s[32:35], s59 offen sc1\ns_mov_b64 exec, -1")
        if self.stamps:
            e("s_cmp_eq_u32 s30, 0\ns_cbranch_scc1 L_st4")
            self.stamp(4)
            e("L_st4:")
        e("s_cmp_lg_u32 s30, 0\ns_cbranch_scc1 L_fin")
        e("s_mul_i32 s58, s55, 1792\ns_add_u32 s58, s58, s40\nv_lshlrev_b32 v9, 2, v0")
        self.srd(36, 24, 1792)
        e("s_mul_i32 s41, s54, 896\ns_lshl_b32 s60, s55, 5\ns_add_u32 s41, s41, s60")
        e("v_lshlrev_b32 v14, 1, v0\nv_lshlrev_b32 v31, 16, v31")
        self.gather([(1, CL + k, 16 + k, 9, "s58", 256 * k) for k in range(7)], vT8, "BYTE_0", "-1")
        e("v_add_f32 v16, v16, v17\nv_add_f32 v18, v18, v19\nv_add_f32 v20, v20, v21\nv_add_f32 v16, v16, v22")
        e("v_add_f32 v18, v18, v20\nv_add_f32 v16, v16, v18")
        for sw in ("v_permlane16_swap_b32", "v_permlane32_swap_b32"):
            e(f"v_mov_b32 v17, v16\ns_nop 1\n{sw} v16, v17\nv_add_f32 v16, v16, v17")
        self.rbf1(16)
        e(f"v_mul_f32 v16, v16, v{GB}")
        self.rbf1(16)
        e("v_add_f32 v16, v16, v31\nv_cvt_pk_bf16_f32 v16, v16, v16")
        e("s_mov_b64 exec, 0xffff\nbuffer_store_short v16, v14, s[36:39], s41 offen")
        e(f"s_cmp_lg_u32 s2, 64\ns_cbranch_scc1 L_fin")
        e(f"v_mov_b32 v16, s56\ns_mov_b64 exec, 1\nbuffer_store_dword v16, v2, s[32:35], 0 offen sc1")
        if self.diag_total:
            e(f"L_dt:\ns_memrealtime s[98:99]\ns_waitcnt lgkmcnt(0)\ns_sub_u32 s98, s98, s100\ns_cmp_lt_u32 s98, {self.diag_total*100}\ns_cbranch_scc1 L_dt")
        e("L_fin:")
        self.stamp(7)
        self.end()

    def build(self, header):
        e = self.e
        K = NAME + "_kernel"
        self.L.append(header.rstrip("\n"))
        self.L.append(f"; @launch grid=(256,1,1) block=(512,1,1) lds={LDS_BYTES}")
        self.L.append('.amdgcn_target "amdgcn-amd-amdhsa--gfx950"\n.text')
        self.L.append(f".globl {K}\n.p2align 8\n.type {K},@function\n{K}:")
        e("s_cmp_ge_u32 s2, 256\ns_cbranch_scc1 L_end")
        e("s_load_dwordx16 s[4:19], s[0:1], 0\ns_load_dwordx8 s[20:27], s[0:1], 64\ns_load_dwordx2 s[28:29], s[0:1], 96")
        e("v_lshrrev_b32 v1, 6, v0\nv_and_b32 v0, 63, v0\nv_readfirstlane_b32 s3, v1")
        self.stamp_init()
        e("s_cmp_ge_u32 s3, 4\ns_cbranch_scc1 L_service\ns_cmp_lg_u32 s3, 0\ns_cbranch_scc1 L_consumer")
        self.loader()
        e("L_end:\ns_endpgm")
        self.consumer()
        self.service()
        self.L.append(f""".section .rodata,"a"
.p2align 6
.amdhsa_kernel {K}
  .amdhsa_next_free_vgpr 256
  .amdhsa_next_free_sgpr 102
  .amdhsa_accum_offset 256
  .amdhsa_group_segment_fixed_size 0
  .amdhsa_kernarg_size 104
  .amdhsa_user_sgpr_count 2
  .amdhsa_user_sgpr_kernarg_segment_ptr 1
  .amdhsa_system_sgpr_workgroup_id_x 1
  .amdhsa_float_denorm_mode_32 3
.end_amdhsa_kernel""")
        return "\n".join(self.L) + "\n"


HEADER = """; Fused adaLN-conditioned block: cached multi-head attention (decode) + SiLU MLP, gfx950.
"""


def generate(**kw):
    return Gen(**kw).build(HEADER)


if __name__ == "__main__":
    import json
    kw = json.loads(sys.argv[2]) if len(sys.argv) > 2 else {}
    open(sys.argv[1], "w").write(generate(**kw))
```

```python
import struct
import sys

NAME = "adaLN_cond__mha_block_cached__dense_activation_silu__decode"

WS_EPOCH, WS_MOD, WS_Q, WS_OP, WS_Y, WS_ML, WS_Z, WS_CTR, WS_SIZE = (
    0, 0x1000, 0x10000, 0x20000, 0x60000, 0x6E000, 0x70000, 0x90000, 0xB0000)
WS_STAMP = 0xB0000
RING, NSLOT = 0, 16
SC, SC_STRIDE = 131072, 6144
STG = 149504
PST = 131072
MISC = 159744
FULL, FREE, QRDY, TAG, BAR, ML, QV, AIM, RED = (MISC, MISC + 256, MISC + 272, MISC + 276, MISC + 280,
                                                MISC + 288, MISC + 512, MISC + 1024, MISC + 2816)
LDS_BYTES = 163840


STAMPS = [("ld start", 0, 0), ("S0 start", 4, 0), ("S0 weights landed", 4, 1), ("S0 frags read", 4, 2),
          ("S0 mod gathered", 4, 3), ("S0 unit pub", 4, 4), ("S0 q ready", 4, 5), ("C prepull done", 1, 0),
          ("C q seen", 1, 1), ("ld K issued", 0, 1), ("C K done", 1, 2), ("C softmax done", 1, 3),
          ("ld done", 0, 2), ("T0 barrier", 5, 0), ("o gathered+bar", 5, 1), ("y gathered", 5, 2),
          ("hid barrier", 5, 3), ("z pub", 5, 4), ("bg done", 5, 5), ("S0 end", 4, 7)]


def f2u(x):
    return struct.unpack("<I", struct.pack("<f", x))[0]


LOG2E = 1.4426950408889634
C2 = f2u(LOG2E / 16.0)
DPPF = "row_mask:0xf bank_mask:0xf"


class Gen:
    def __init__(self, D=20, wpol="nt", stamps=False, prepull=5, kvpol="nt", qsleep=0, lev=None, period=32, pwait=11, nsh=4, cstart=96, diag_total=0, diag_first=0):
        self.L = []
        self.n = 0
        self.D = D
        self.wpol = wpol
        self.kvpol = kvpol
        self.stamps = stamps
        self.prepull = prepull
        self.qsleep = qsleep
        self.diag_first = diag_first
        self.diag_total = diag_total
        self.cstart = cstart
        assert cstart >= 64 and cstart % period == 0
        self.lev, self.period, self.pwait, self.nsh = lev, period, pwait, nsh

    def e(self, s):
        for line in s.split("\n"):
            line = line.strip()
            if not line:
                continue
            self.L.append(line if line.endswith(":") or line.startswith(";") else "    " + line)

    def lab(self, p):
        self.n += 1
        return f"L_{p}_{self.n}"

    def srd(self, d, base, size):
        self.e(f"s_mov_b32 s{d}, s{base}\ns_mov_b32 s{d+1}, s{base+1}\n"
               f"s_mov_b32 s{d+2}, {size}\ns_mov_b32 s{d+3}, 0x20000")

    def stamp(self, k):
        if self.stamps:
            self.e(f"s_memrealtime s[{84+2*k}:{85+2*k}]\ns_waitcnt lgkmcnt(0)")

    def stamp_init(self):
        if self.stamps:
            for k in range(8):
                self.e(f"s_mov_b64 s[{84+2*k}:{85+2*k}], 0")

    def stamp_flush(self):
        if self.stamps:
            self.e("s_mov_b64 exec, -1")
            self.srd(80, 28, WS_STAMP + 0x20000)
            for k in range(8):
                self.e(f"v_mov_b32 v{8+k}, s{84+2*k}")
            self.e(f"s_lshl_b32 s30, s2, 3\ns_add_u32 s30, s30, s3\ns_lshl_b32 s30, s30, 5\n"
                   f"s_add_u32 s30, s30, {WS_STAMP}\nv_mov_b32 v1, s30\ns_mov_b64 exec, 1\n"
                   "buffer_store_dwordx4 v[8:11], v1, s[80:83], 0 offen\n"
                   "buffer_store_dwordx4 v[12:15], v1, s[80:83], 0 offen offset:16")

    def end(self):
        self.stamp_flush()
        self.e("s_endpgm")

    def budget(self):
        self.e("s_sub_u32 s31, s31, 1\ns_cbranch_scc1 L_end")

    def wave_reduce(self, op, regs, nsteps=6):
        steps = ["quad_perm:[1,0,3,2] " + DPPF, "quad_perm:[2,3,0,1] " + DPPF, "row_half_mirror " + DPPF,
                 "row_mirror " + DPPF, "row_bcast:15 row_mask:0xa bank_mask:0xf",
                 "row_bcast:31 row_mask:0xc bank_mask:0xf"]
        for st in steps[:nsteps]:
            pad = 3 - len(regs) if st is not steps[0] else 2
            if pad > 0:
                self.e(f"s_nop {pad-1}")
            for r in regs:
                self.e(f"{op}_dpp v{r}, v{r}, v{r} {st}")
        self.e("s_nop 0")

    def rbf_pairs(self, regs, tmp):
        for k in range(0, len(regs), 2):
            self.e(f"v_cvt_pk_bf16_f32 v{tmp[k//2]}, v{regs[k]}, v{regs[k+1]}")
        self.unpack(tmp[:len(regs)//2], regs)

    def unpack(self, packed, regs):
        for k, p in enumerate(packed):
            self.e(f"v_lshlrev_b32 v{regs[2*k]}, 16, v{p}\nv_and_b32 v{regs[2*k+1]}, 0xffff0000, v{p}")

    def rbf1(self, r):
        self.e(f"v_cvt_pk_bf16_f32 v{r}, v{r}, v{r}\nv_and_b32 v{r}, 0xffff0000, v{r}")

    def silu(self, regs, tmp):
        for r, t in zip(regs, tmp):
            self.e(f"v_mul_f32 v{t}, {hex(f2u(-LOG2E))}, v{r}")
        for t in tmp[:len(regs)]:
            self.e(f"v_exp_f32 v{t}, v{t}")
        self.e("s_nop 0")
        for t in tmp[:len(regs)]:
            self.e(f"v_add_f32 v{t}, 1.0, v{t}")
        for t in tmp[:len(regs)]:
            self.e(f"v_rcp_f32 v{t}, v{t}")
        self.e("s_nop 0")
        for r, t in zip(regs, tmp):
            self.e(f"v_mul_f32 v{r}, v{r}, v{t}")

    def layernorm(self, X, t, extra=None):
        e = self.e
        S = X + (extra or [])
        e(f"v_add_f32 v{t[0]}, v{S[0]}, v{S[1]}\nv_mul_f32 v{t[1]}, v{S[0]}, v{S[0]}")
        e(f"v_fmac_f32 v{t[1]}, v{S[1]}, v{S[1]}")
        for r in S[2:]:
            e(f"v_add_f32 v{t[0]}, v{t[0]}, v{r}\nv_fmac_f32 v{t[1]}, v{r}, v{r}")
        if extra is None:
            self.wave_reduce("v_add_f32", [t[0], t[1]])
            e(f"v_readlane_b32 s60, v{t[0]}, 63\nv_readlane_b32 s61, v{t[1]}, 63")
            e(f"v_mov_b32 v{t[2]}, {hex(f2u(1.0/448))}")
            e(f"v_mul_f32 v{t[0]}, s60, v{t[2]}\nv_mul_f32 v{t[1]}, s61, v{t[2]}")
        else:
            self.wave_reduce("v_add_f32", [t[0], t[1]], nsteps=4)
            e(f"v_mov_b32 v{t[2]}, v{t[0]}\nv_mov_b32 v{t[3]}, v{t[1]}\ns_nop 1")
            e(f"v_permlane16_swap_b32 v{t[0]}, v{t[2]}\nv_permlane16_swap_b32 v{t[1]}, v{t[3]}")
            e(f"v_add_f32 v{t[0]}, v{t[0]}, v{t[2]}\nv_add_f32 v{t[1]}, v{t[1]}, v{t[3]}")
            e(f"v_mul_f32 v{t[0]}, {hex(f2u(1.0/448))}, v{t[0]}\nv_mul_f32 v{t[1]}, {hex(f2u(1.0/448))}, v{t[1]}")
        e(f"v_fma_f32 v{t[1]}, -v{t[0]}, v{t[0]}, v{t[1]}\nv_max_f32 v{t[1]}, 0, v{t[1]}")
        e(f"v_cvt_pk_bf16_f32 v{t[2]}, v{t[0]}, v{t[1]}")
        e(f"v_lshlrev_b32 v{t[0]}, 16, v{t[2]}\nv_and_b32 v{t[1]}, 0xffff0000, v{t[2]}")
        e(f"v_add_f32 v{t[1]}, {hex(f2u(1e-5))}, v{t[1]}")
        self.rbf1(t[1])
        e(f"v_sqrt_f32 v{t[1]}, v{t[1]}")
        for k in range(8):
            e(f"v_sub_f32 v{X[k]}, v{X[k]}, v{t[0]}")
        self.rbf1(t[1])
        e(f"v_rcp_f32 v{t[1]}, v{t[1]}")
        self.rbf_pairs(X, t[2:6])
        for k in range(8):
            e(f"v_mul_f32 v{X[k]}, v{X[k]}, v{t[1]}")
        self.rbf_pairs(X, t[2:6])

    def modulate(self, X, OC, SH, out, t):
        for k in range(8):
            self.e(f"v_mul_f32 v{X[k]}, v{X[k]}, v{OC[k]}")
        self.rbf_pairs(X, t)
        for k in range(8):
            self.e(f"v_add_f32 v{X[k]}, v{X[k]}, v{SH[k]}")
        for k in range(4):
            self.e(f"v_cvt_pk_bf16_f32 v{out[k]}, v{X[2*k]}, v{X[2*k+1]}")

    def gather(self, loads, vtag, sel, active, sleep=0):
        e = self.e
        top, done = self.lab("gat"), self.lab("gdone")
        for k in range(len(loads)):
            e(f"s_mov_b64 s[{64+2*k}:{65+2*k}], 1")
        e(f"s_mov_b64 exec, {active}\n{top}:")
        for k, (nd, raw, clean, va, so, imm) in enumerate(loads):
            sk = self.lab("gs")
            dst = f"v{raw}" if nd == 1 else f"v[{raw}:{raw+nd-1}]"
            suf = "" if nd == 1 else f"x{nd}"
            if len(loads) > 1:
                e(f"s_cmp_eq_u64 s[{64+2*k}:{65+2*k}], 0\ns_cbranch_scc1 {sk}")
            e(f"buffer_load_dword{suf} {dst}, v{va}, s[32:35], {so} offen offset:{imm} sc1")
            e(f"{sk}:")
        e("s_waitcnt vmcnt(0)")
        for k, (nd, raw, clean, va, so, imm) in enumerate(loads):
            for j in range(nd):
                e(f"v_xor_b32 v{clean+j}, v{raw+j}, v{vtag}")
            if nd == 1:
                chk = clean
            elif nd == 2:
                chk = 1
                e(f"v_or_b32 v1, v{clean}, v{clean+1}")
            else:
                chk = 1
                e(f"v_or3_b32 v1, v{clean}, v{clean+1}, v{clean+2}\nv_or_b32 v1, v1, v{clean+3}")
            e(f"v_cmp_ne_u32_sdwa s[{64+2*k}:{65+2*k}], v{chk}, v2 src0_sel:{sel} src1_sel:DWORD")
        e("s_or_b64 s[62:63], s[64:65], s[64:65]")
        for k in range(1, len(loads)):
            e(f"s_or_b64 s[62:63], s[62:63], s[{64+2*k}:{65+2*k}]")
        e(f"s_cbranch_scc0 {done}")
        self.budget()
        if sleep:
            e(f"s_sleep {sleep}")
        e(f"s_branch {top}\n{done}:\ns_mov_b64 exec, -1")

    def lds_wait(self, vaddr, off, sreg, need, sleep):
        e = self.e
        top, go = self.lab("lw"), self.lab("lgo")
        e(f"s_cmp_ge_u32 s{sreg}, {need}\ns_cbranch_scc1 {go}\n{top}:")
        e(f"ds_read_b32 v1, v{vaddr} offset:{off}\ns_waitcnt lgkmcnt(0)\nv_readfirstlane_b32 s{sreg}, v1")
        e(f"s_cmp_ge_u32 s{sreg}, {need}\ns_cbranch_scc1 {go}")
        self.budget()
        e(f"s_sleep {sleep}\ns_branch {top}\n{go}:")

    def dma_step(self, vaddr, srd, lds_sreg_or_imm, pol):
        self.e(f"s_mov_b32 m0, {lds_sreg_or_imm}\ns_nop 0")
        self.e(f"buffer_load_dwordx4 v{vaddr}, s[{srd}:{srd+3}], s58 offen {pol} lds")

    def tr_reads(self, dst, vtr, off):
        self.e(f"ds_read_b64_tr_b16 v[{dst}:{dst+1}], v{vtr} offset:{off}")
        self.e(f"ds_read_b64_tr_b16 v[{dst+2}:{dst+3}], v{vtr} offset:{off+512}")

    def loader(self):
        e, D = self.e, self.D
        lev = self.lev or [D]
        ctl = self.lev is not None
        P, PW = self.period, self.pwait
        ng = D // 4
        e("L_loader:\ns_setprio 3")
        e(f"v_lshlrev_b32 v1, 4, v0\nv_lshlrev_b32 v2, 2, v0\nv_add_u32 v2, {FULL}, v2\nv_mov_b32 v3, {FREE}")
        e("v_mov_b32 v6, 0\nv_mov_b32 v7, 0\nv_mov_b32 v8, 0")
        e("s_lshl_b32 s30, s2, 21\ns_mov_b32 s31, 0x200000\ns_waitcnt lgkmcnt(0)")
        self.stamp(0)
        e("s_add_u32 s32, s6, s30\ns_addc_u32 s33, s7, 0\ns_mov_b32 s34, 0x200000\ns_mov_b32 s35, 0x20000")
        e("s_add_u32 s36, s8, s30\ns_addc_u32 s37, s9, 0\ns_mov_b32 s38, 0x200000\ns_mov_b32 s39, 0x20000")
        for n in range(ng):
            e(f"s_mov_b32 m0, {n*4096}\ns_mov_b32 s41, {n*4096}")
            for k in range(4):
                e(f"buffer_load_dwordx4 v1, s[32:35], s41 offen offset:{k*1024} {self.kvpol} lds")
        e(f"s_mov_b32 s40, {ng}\ns_mov_b32 s41, {ng*4096}\ns_mov_b32 s44, {2*NSLOT}\ns_mov_b32 s45, {lev.index(D)}")
        if ctl:
            e(f"s_lshr_b32 s48, s2, 3\ns_and_b32 s48, s48, {self.nsh-1}\ns_lshl_b32 s48, s48, 8\ns_add_u32 s48, s48, {WS_CTR}")
        e("s_barrier")
        for ph, srd in enumerate((32, 36)):
            top, back, slow, go, cont, spec = (f"L_ld{x}{ph}" for x in ("", "b", "s", "g", "c", "x"))
            e(f"{top}:\ns_cmp_lt_u32 s40, s44\ns_cbranch_scc0 {slow}\n{back}:")
            e(f"s_and_b32 s42, s41, {NSLOT*8192-1}\ns_mov_b32 m0, s42")
            for q in range(len(lev) - 1, -1, -1):
                if q == len(lev) - 1 or lev[q] != lev[q + 1]:
                    e(f"s_sub_u32 s43, s40, {lev[q]//4-1}\ns_waitcnt vmcnt({lev[q]-4})")
                if q and lev[q] != lev[q - 1]:
                    e(f"s_cmp_ge_u32 s45, {q}\ns_cbranch_scc1 {go}")
            e(f"{go}:")
            for k in range(4):
                e(f"buffer_load_dwordx4 v1, s[{srd}:{srd+3}], s41 offen offset:{k*1024} {self.kvpol} lds")
            e("v_mov_b32 v4, s43\nds_write_b32 v2, v4")
            if ctl:
                e(f"s_and_b32 s46, s40, {P-1}\ns_cmp_le_u32 s46, {PW}\ns_cbranch_scc1 {spec}")
            e(f"L_ldr{ph}:\ns_waitcnt lgkmcnt(1)\nv_min3_u32 v5, v6, v7, v8\nds_read_b96 v[6:8], v3")
            e(f"v_readfirstlane_b32 s44, v5\ns_lshl_b32 s44, s44, 1\ns_add_u32 s44, s44, {2*NSLOT}")
            e(f"{cont}:\ns_add_u32 s40, s40, 1\ns_add_u32 s41, s41, 4096")
            e(f"s_cmp_lt_u32 s41, 0x200000\ns_cbranch_scc1 {top}")
            if ph == 0:
                e("s_mov_b32 s41, 0")
                self.stamp(1)
        for k in range(max(lev) // 4 - 1, -1, -1):
            e(f"s_max_u32 s43, s43, {1024-k}\nv_mov_b32 v4, s43\ns_waitcnt vmcnt({4*k})\nds_write_b32 v2, v4")
        self.stamp(2)
        self.end()
        for ph in range(2):
            e(f"L_lds{ph}:\ns_sleep 1\nds_read_b96 v[6:8], v3\ns_waitcnt lgkmcnt(0)\nv_min3_u32 v5, v6, v7, v8")
            self.budget()
            if self.stamps:
                e("s_add_u32 s98, s98, 1")
            e(f"v_readfirstlane_b32 s44, v5\ns_lshl_b32 s44, s44, 1\ns_add_u32 s44, s44, {2*NSLOT}")
            e(f"s_cmp_lt_u32 s40, s44\ns_cbranch_scc1 L_ldb{ph}\ns_branch L_lds{ph}")
            if ctl:
                e(f"L_ldx{ph}:\ns_cmp_lt_u32 s40, {self.cstart}\ns_cbranch_scc1 L_ldr{ph}")
                e(f"s_cmp_lg_u32 s46, 0\ns_cbranch_scc1 L_ldy{ph}")
                e(f"s_mov_b32 s47, 1\ns_atomic_add s47, s[28:29], s48 glc\ns_branch L_ldc{ph}")
                e(f"L_ldy{ph}:\ns_cmp_lg_u32 s46, {PW}\ns_cbranch_scc1 L_ldc{ph}")
                sh = (256 // self.nsh // len(lev)).bit_length() - 1
                e(f"s_waitcnt lgkmcnt(0)\ns_lshr_b32 s45, s47, {sh}\ns_add_u32 s48, s48, {256*self.nsh}")
                if self.stamps:
                    e("s_add_u32 s96, s96, s45")
                e(f"s_branch L_ldc{ph}")

    def consumer(self):
        e = self.e
        NP = self.prepull
        BUF = [96 + 32 * u for u in range(NP)]
        QB, DQ, O0, O1, AP, MK, P = 64, 16, 20, 24, 32, 28, 12
        vK, vV, vA, vM, vS, vSL = 3, 4, 5, 6, 7, 8

        def pull(buf, vbase, after=None):
            e("s_lshl_b32 s43, s40, 1\ns_add_u32 s43, s43, 2")
            self.lds_wait(vM, FULL - MISC, 42, "s43", 1)
            e(f"s_and_b32 s44, s40, {NSLOT-1}\ns_lshl_b32 s44, s44, 13\nv_add_u32 v{vA}, s44, v{vbase}")
            for k in range(8):
                e(f"ds_read_b128 v[{buf+4*k}:{buf+4*k+3}], v{vA} offset:{(k>>1)*2048+(k&1)*256}")

        def release():
            e(f"v_mov_b32 v1, s41\nds_write_b32 v9, v1")

        def qk(buf, counted):
            for k in range(8):
                if counted:
                    e(f"s_waitcnt lgkmcnt({7-k})")
                c = "0" if k == 0 else f"v[{DQ}:{DQ+3}]"
                e(f"v_mfma_f32_16x16x32_bf16 v[{DQ}:{DQ+3}], v[{buf+4*k}:{buf+4*k+3}], v[{QB+4*k}:{QB+4*k+3}], {c}")
            if counted:
                release()
                e("s_nop 5")
            else:
                e("s_nop 7")
            e(f"v_mov_b32_dpp v10, v{DQ} quad_perm:[0,0,0,0] {DPPF}")
            e(f"v_mov_b32_dpp v11, v{DQ+2} quad_perm:[2,2,2,2] {DPPF}\ns_nop 0")
            e(f"v_add_f32_dpp v10, v{DQ+1}, v10 quad_perm:[1,1,1,1] {DPPF}")
            e(f"v_add_f32_dpp v11, v{DQ+3}, v11 quad_perm:[3,3,3,3] {DPPF}")
            e("v_add_f32 v10, v10, v11")
            self.rbf1(10)

        e("L_consumer:\ns_sub_u32 s30, s3, 1\ns_mov_b32 s31, 0x200000\ns_mov_b32 s42, 0")
        e(f"v_mov_b32 v{vM}, {MISC}")
        e(f"s_cmp_lg_u32 s30, 0\ns_cbranch_scc1 L_noinit")
        e(f"v_lshl_add_u32 v1, v0, 3, v{vM}\nv_mov_b32 v10, 0\nv_mov_b32 v11, 0\nds_write_b64 v1, v[10:11]\nL_noinit:")
        e("v_lshrrev_b32 v13, 4, v0\nv_and_b32 v14, 15, v0\nv_bfe_u32 v15, v0, 2, 2\nv_and_b32 v2, 3, v0")
        e(f"v_lshlrev_b32 v{vK}, 6, v13\nv_lshl_add_u32 v{vK}, v2, 4, v{vK}\nv_mov_b32 v12, v{vK}")
        e(f"v_lshl_add_u32 v{vK}, v15, 9, v{vK}")
        e(f"v_lshlrev_b32 v{vV}, 9, v13\nv_lshl_add_u32 v{vV}, v14, 4, v{vV}")
        e(f"s_mul_i32 s45, s30, {SC_STRIDE}\ns_add_u32 s45, s45, {SC}")
        e(f"v_and_b32 v{vS}, 60, v0\nv_add_u32 v{vS}, s45, v{vS}")
        e(f"v_lshlrev_b32 v{vSL}, 4, v0\nv_add_u32 v{vSL}, s45, v{vSL}")
        e(f"s_lshl_b32 s46, s30, 2\ns_add_u32 s46, s46, {FREE}\nv_mov_b32 v9, s46")
        e("v_and_b32 v1, 1, v0\nv_mov_b32 v10, 0xffff\nv_lshlrev_b32 v1, 4, v1\nv_lshlrev_b32 v10, v1, v10")
        e("v_lshrrev_b32 v1, 1, v14")
        for r in range(4):
            e(f"v_cmp_eq_u32 vcc, {r}, v1\ns_nop 1\nv_cndmask_b32 v{MK+r}, 0, v10, vcc")
        for r in range(8):
            e(f"v_mov_b32 v{O0+r}, 0")
        e("s_waitcnt lgkmcnt(0)\ns_barrier")
        e("s_mov_b32 s40, s30")
        for u in range(NP):
            pull(BUF[u], vK)
            e("s_add_u32 s41, s40, 3\ns_waitcnt lgkmcnt(0)")
            release()
            e("s_mov_b32 s40, s41")
        e("s_mov_b32 s47, 0")
        self.stamp(0)
        self.lds_wait(vM, QRDY - MISC, 47, 1, 1)
        self.stamp(1)
        e(f"v_add_u32 v12, {QV}, v12")
        e(f"ds_read_b128 v[{AP}:{AP+3}], v12\nds_read_b128 v[{AP+4}:{AP+7}], v12 offset:256")
        for r in range(4):
            e(f"v_mov_b32 v{DQ+r}, 0xff800000")
        e(f"ds_write_b128 v{vSL}, v[{DQ}:{DQ+3}] offset:5120\ns_waitcnt lgkmcnt(0)")
        for t in range(4):
            e(f"v_cmp_eq_u32 vcc, {t}, v15\ns_nop 1")
            for k in range(8):
                e(f"v_cndmask_b32 v{QB+8*t+k}, 0, v{AP+k}, vcc")
        e("s_nop 1")
        qk(BUF[0], False)
        e(f"ds_write_b32 v{vS}, v10")
        e(f"v_add_u32 v2, {64*NP}, v{vS}\ns_add_u32 s48, s30, 256")
        e("L_kloop:")
        e("s_add_u32 s41, s40, 3\ns_cmp_lt_u32 s41, 256\ns_cselect_b32 s41, s41, s48")
        pull(BUF[0], vK)
        qk(BUF[0], True)
        e("ds_write_b32 v2, v10\nv_add_u32 v2, 64, v2")
        e("s_mov_b32 s40, s41\ns_cmp_lt_u32 s40, 256\ns_cbranch_scc1 L_kloop")
        for u in range(1, NP):
            qk(BUF[u], False)
            e(f"ds_write_b32 v{vS}, v10 offset:{64*u}")
        self.stamp(2)
        S = BUF[0]
        for k in range(6):
            e(f"ds_read_b128 v[{S+4*k}:{S+4*k+3}], v{vSL} offset:{1024*k}")
        e("s_waitcnt lgkmcnt(0)")
        e(f"v_max_f32 v10, v{S}, v{S+1}")
        for k in range(2, 24, 2):
            e(f"v_max3_f32 v10, v10, v{S+k}, v{S+k+1}")
        self.wave_reduce("v_max_f32", [10])
        e(f"v_readlane_b32 s50, v10, 63\ns_mov_b32 s51, {hex(C2)}\ns_nop 0")
        for k in range(24):
            e(f"v_subrev_f32 v{S+k}, s50, v{S+k}")
        for k in range(24):
            e(f"v_mul_f32 v{S+k}, s51, v{S+k}")
        for k in range(24):
            e(f"v_exp_f32 v{S+k}, v{S+k}")
        e(f"v_add_f32 v10, v{S}, v{S+1}")
        for k in range(2, 24):
            e(f"v_add_f32 v10, v10, v{S+k}")
        for k in range(24):
            e(f"v_cvt_pk_bf16_f32 v{S+k}, v{S+k}, v{S+k}")
        for k in range(6):
            e(f"ds_write_b128 v{vSL}, v[{S+4*k}:{S+4*k+3}] offset:{1024*k}")
        self.wave_reduce("v_add_f32", [10])
        e(f"v_readlane_b32 s52, v10, 63\nv_mov_b32 v{DQ}, s50\nv_mov_b32 v{DQ+2}, 1\nv_mov_b32 v{DQ+3}, 1")
        e(f"v_mov_b32 v{DQ+1}, s52\ns_lshl_b32 s46, s30, 4\ns_add_u32 s46, s46, {ML}\nv_mov_b32 v1, s46")
        e(f"ds_write_b128 v1, v[{DQ}:{DQ+3}]\nv_mov_b32 v2, v{vS}")
        self.stamp(3)
        e("L_vloop:")
        e(f"s_add_u32 s41, s40, 3\nds_read_b32 v{P}, v2\nv_add_u32 v2, 64, v2\ns_waitcnt lgkmcnt(0)")
        for t in range(4):
            for r in range(4):
                e(f"v_and_b32_dpp v{AP+4*t+r}, v{P}, v{MK+r} row_newbcast:{4*t} {DPPF}")
        pull(BUF[0], vV)
        for k in range(8):
            o = O0 if k % 2 == 0 else O1
            a = AP + 4 * (k >> 1)
            e(f"s_waitcnt lgkmcnt({7-k})")
            e(f"v_mfma_f32_16x16x32_bf16 v[{o}:{o+3}], v[{a}:{a+3}], v[{BUF[0]+4*k}:{BUF[0]+4*k+3}], v[{o}:{o+3}]")
        release()
        e("s_mov_b32 s40, s41\ns_cmp_lt_u32 s40, 512\ns_cbranch_scc1 L_vloop")
        e("v_lshlrev_b32 v1, 5, v14\nv_lshl_add_u32 v1, v13, 4, v1\nv_add_u32 v1, s45, v1")
        e("s_mov_b32 exec_hi, 0")
        e(f"ds_write_b128 v1, v[{O0}:{O0+3}]\nds_write_b128 v1, v[{O1}:{O1+3}] offset:512")
        e("s_waitcnt lgkmcnt(0)\ns_barrier")
        self.stamp(4)
        self.end()

    def unit_mfma_lds(self, B, A, vA, nsteps, D):
        for s in range(nsteps):
            self.e(f"ds_read_b128 v[{A+4*s}:{A+4*s+3}], v{vA} offset:{64*s}")
        for s in range(nsteps):
            self.e(f"s_waitcnt lgkmcnt({nsteps-1-s})")
            c = "0" if s == 0 else f"v[{D}:{D+3}]"
            self.e(f"v_mfma_f32_16x16x32_bf16 v[{D}:{D+3}], v[{A+4*s}:{A+4*s+3}], v[{B+4*s}:{B+4*s+3}], {c}")
        self.e("s_nop 7")

    def unit_mfma_dpp(self, B, src, A, D):
        def bc(s):
            for r in range(4):
                self.e(f"v_mov_b32_dpp v{A+4*(s%3)+r}, v{src+r} row_newbcast:{s} {DPPF}")
        self.e("s_nop 1")
        bc(0)
        for s in range(14):
            if s < 13:
                bc(s + 1)
            else:
                self.e("s_nop 0")
            a = A + 4 * (s % 3)
            c = "0" if s == 0 else f"v[{D}:{D+3}]"
            self.e(f"v_mfma_f32_16x16x32_bf16 v[{D}:{D+3}], v[{a}:{a+3}], v[{B+4*s}:{B+4*s+3}], {c}")
        self.e("s_nop 7")

    def soft_barrier(self, vM):
        self.e(f"s_add_u32 s45, s45, 4\nv_mov_b32 v1, 1\ns_mov_b64 exec, 1\n"
               f"ds_add_u32 v{vM}, v1 offset:{BAR-MISC}\ns_mov_b64 exec, -1")
        self.lds_wait(vM, BAR - MISC, 44, "s45", 2)

    def unit_load(self, dst, rounds, srd, stride, advance, vM):
        e = self.e
        e(f"s_lshl_b32 s60, s30, 4\nv_add_u32 v9, s60, v6\nv_mul_u32_u24 v9, {stride}, v9\nv_add_u32 v9, v9, v7")
        e(f"v_add_u32 v14, {8*stride}, v9")
        for rd in range(rounds):
            self.dma_step(9, srd, "s57", self.wpol)
            self.dma_step(14, srd, "s59", self.wpol)
            e(f"s_add_u32 s58, s58, {advance}\ns_waitcnt vmcnt(0)")
            self.soft_barrier(vM)
            self.tr_reads(dst + 8 * rd, 8, 0)
            self.tr_reads(dst + 8 * rd + 4, 8, 4096)
            e("s_waitcnt lgkmcnt(0)")
            self.soft_barrier(vM)

    def sum_round(self, a, b, n, tmp):
        for k in range(n):
            self.e(f"v_add_f32 v{a+k}, v{a+k}, v{b+k}")
        if n == 1:
            self.rbf1(a)
        else:
            self.rbf_pairs(list(range(a, a + n)), tmp)

    def service(self):
        e = self.e
        WO, W1, W2 = 32, 64, 120
        OCB, SB, GA, XP, GB, F = 176, 184, 192, 194, 196, 197
        RAW, AD, DD = 200, 232, 244
        vT8, vT16, vM = 10, 11, 12
        LM, HM = "s[50:51]", "s[52:53]"
        e("L_service:\ns_sub_u32 s30, s3, 4\ns_mov_b32 s31, 0x80000")
        e("s_and_b32 s48, s2, 7\ns_lshr_b32 s49, s2, 3")
        e("s_mov_b32 s50, 0x3fff3fff\ns_mov_b32 s51, 0x3fff3fff\ns_mov_b32 s52, 0x0fffffff\ns_mov_b32 s53, 0x0fffffff")
        e("v_mov_b32 v2, 0\nv_lshrrev_b32 v3, 4, v0\nv_and_b32 v4, 15, v0")
        e("v_lshlrev_b32 v5, 6, v4\nv_lshl_add_u32 v5, v3, 4, v5")
        e("v_lshrrev_b32 v6, 3, v0\nv_and_b32 v7, 7, v0\nv_lshlrev_b32 v7, 4, v7")
        e("v_lshlrev_b32 v8, 10, v3\nv_bfe_u32 v1, v0, 2, 2\nv_lshl_add_u32 v8, v1, 7, v8")
        e("v_and_b32 v1, 3, v0\nv_lshl_add_u32 v8, v1, 3, v8")
        e(f"v_mov_b32 v{vM}, {MISC}\ns_mov_b32 s47, 0\ns_waitcnt lgkmcnt(0)")
        self.srd(32, 28, WS_SIZE)
        e("s_cmp_eq_u32 s30, 0\ns_cbranch_scc1 L_pro")
        e("s_barrier")
        self.lds_wait(vM, QRDY - MISC, 47, 1, 8)
        e(f"ds_read_b32 v1, v{vM} offset:{TAG-MISC}\ns_waitcnt lgkmcnt(0)\nv_readfirstlane_b32 s56, v1")
        e(f"v_and_b32 v{vT8}, 0xff, v1\nv_and_b32 v{vT16}, 0xffff, v1\ns_branch L_bg")

        PB, PA, PRAW, PCL, PN, PC, PD = 32, 144, 144, 176, 208, 224, 232
        e("L_pro:")
        if self.diag_total and not self.diag_first:
            e("s_memrealtime s[100:101]")
        self.stamp(0)
        e("s_load_dword s56, s[28:29], 0")
        e("s_and_b32 s54, s2, 1\ns_bfe_u32 s55, s2, 0x60001")
        e("s_cmp_ge_u32 s2, 128")
        e("s_cselect_b32 s36, s4, s20\ns_cselect_b32 s37, s5, s21\ns_mov_b32 s38, 1792\ns_mov_b32 s39, 0x20000")
        e("s_cselect_b32 s40, s10, s22\ns_cselect_b32 s41, s11, s23\ns_mov_b32 s43, 0x20000")
        e(f"s_mov_b32 s46, 5376\ns_cselect_b32 s46, 8192, s46\ns_mul_i32 s42, s46, 448")
        e("s_cbranch_scc1 L_unit\ns_cmp_lt_u32 s2, 84\ns_cbranch_scc1 L_unit")
        e("s_barrier\ns_waitcnt lgkmcnt(0)\ns_add_u32 s56, s56, 1")
        e(f"s_and_b32 s60, s56, 0xff\nv_mov_b32 v{vT8}, s60\ns_and_b32 s60, s56, 0xffff\nv_mov_b32 v{vT16}, s60")
        e("s_branch L_getq")
        e("L_unit:")
        for k in range(8):
            e(f"v_mov_b32 v{PC+k}, 0")
        if self.lev:
            per = -(-((1024 - 64) // self.period * self.nsh) // 28)
            assert per <= 16 and per * 28 * 256 <= WS_SIZE - WS_CTR
            e(f"s_cmp_ge_u32 s2, 28\ns_cbranch_scc1 L_noz\ns_mul_i32 s58, s2, {per*256}\ns_add_u32 s58, s58, {WS_CTR}")
            e("v_lshrrev_b32 v1, 2, v0\nv_and_b32 v9, 3, v0\nv_lshlrev_b32 v9, 4, v9\nv_lshl_add_u32 v9, v1, 8, v9")
            e(f"v_cmp_gt_u32 vcc, {per}, v1\ns_and_saveexec_b64 s[62:63], vcc")
            e(f"buffer_store_dwordx4 v[{PC}:{PC+3}], v9, s[32:35], s58 offen sc1\ns_mov_b64 exec, -1\nL_noz:")
        e("v_lshrrev_b32 v1, 5, v0\nv_and_b32 v15, 31, v0\nv_mul_u32_u24 v13, 896, v1\nv_lshl_add_u32 v13, v15, 4, v13")
        e("s_mul_i32 s58, s54, 448\ns_sub_u32 s59, 448, s58")
        e(f"s_mov_b64 exec, {HM}")
        e(f"buffer_load_dwordx4 v[{PC}:{PC+3}], v13, s[36:39], s58 offen")
        e(f"buffer_load_dwordx4 v[{PC+4}:{PC+7}], v13, s[36:39], s59 offen")
        e("s_mov_b64 exec, -1")
        e("v_mul_u32_u24 v9, s46, v6\nv_add_u32 v9, v9, v7")
        e("s_mul_i32 s58, s54, 224\ns_mul_i32 s58, s58, s46\ns_lshl_b32 s60, s55, 7\ns_add_u32 s58, s58, s60\ns_lshl_b32 s59, s46, 3")
        for n in range(28):
            self.dma_step(9, 40, PST + 1024 * n, self.wpol)
            e("s_add_u32 s58, s58, s59")
        e("s_barrier")
        e(f"v_mul_u32_u24 v9, {2688*4}, v1\nv_lshl_add_u32 v9, v15, 5, v9")
        e(f"v_mul_u32_u24 v13, 448, v1\nv_lshl_add_u32 v13, v15, 4, v13\nv_add_u32 v13, {AIM}, v13")
        e(f"v_bfe_u32 v1, v0, 2, 1\nv_mul_u32_u24 v14, 448, v1\nv_lshl_add_u32 v14, v3, 4, v14\nv_add_u32 v14, {AIM}, v14")
        e(f"v_add_u32 v15, {PST}, v8")
        e("s_waitcnt lgkmcnt(0)\ns_add_u32 s56, s56, 1")
        e(f"s_and_b32 s60, s56, 0xff\nv_mov_b32 v{vT8}, s60\ns_and_b32 s60, s56, 0xffff\nv_mov_b32 v{vT16}, s60")
        e("s_waitcnt vmcnt(28)")
        X = list(range(PN, PN + 8))
        self.unpack(list(range(PC, PC + 8)), list(range(PN, PN + 16)))
        e("s_cmp_ge_u32 s2, 128\ns_cbranch_scc1 L_ln1")
        self.silu(X, list(range(PN + 8, PN + 16)))
        for k in range(4):
            e(f"v_cvt_pk_bf16_f32 v{PC+k}, v{X[2*k]}, v{X[2*k+1]}")
        e("s_branch L_frag\nL_ln1:")
        self.layernorm(X, list(range(16, 22)), extra=list(range(PN + 8, PN + 16)))
        e("L_frag:\ns_waitcnt vmcnt(0)")
        self.stamp(1)
        for st in range(7):
            for u in range(4):
                self.tr_reads(PB + 16 * st + 4 * u, 15, 4096 * st + 32 * u)
        self.stamp(2)
        e("s_cmp_lt_u32 s2, 128\ns_cbranch_scc1 L_mm")
        e(f"s_mul_i32 s58, s54, 896\ns_add_u32 s58, s58, {WS_MOD}\ns_add_u32 s59, s58, {2*2688*4}")
        loads = []
        for p in range(2):
            for m in range(2):
                for hf in range(2):
                    k = (p * 2 + m) * 2 + hf
                    loads.append((4, PRAW + 4 * k, PCL + 4 * k, 9, f"s{58+p}", m * 448 * 4 + hf * 16))
        self.gather(loads, vT8, "BYTE_0", HM)
        self.stamp(3)
        self.sum_round(PCL, PCL + 16, 16, list(range(16, 24)))
        CA = list(range(PCL + 8, PCL + 16))
        for r in CA:
            e(f"v_add_f32 v{r}, 1.0, v{r}")
        self.rbf_pairs(CA, list(range(16, 20)))
        self.modulate(X, CA, list(range(PCL, PCL + 8)), list(range(PC, PC + 4)), list(range(16, 20)))
        e("L_mm:")
        e(f"s_mov_b64 exec, {HM}\nds_write_b128 v13, v[{PC}:{PC+3}]\ns_mov_b64 exec, -1\ns_waitcnt lgkmcnt(0)")
        for st in range(7):
            e(f"ds_read_b128 v[{PA+4*st}:{PA+4*st+3}], v14 offset:{64*st}")
        e("s_lshl_b32 s46, s46, 1\nv_and_b32 v1, 1, v3\nv_mul_u32_u24 v9, s46, v1\nv_lshrrev_b32 v1, 5, v0")
        e("v_lshl_add_u32 v9, v1, 6, v9\nv_lshl_add_u32 v9, v4, 2, v9")
        e(f"s_mul_i32 s58, s54, s46\ns_lshl_b32 s58, s58, 1\ns_lshl_b32 s60, s55, 8\ns_add_u32 s58, s58, s60")
        e(f"s_mov_b32 s60, {WS_MOD}\ns_cmp_ge_u32 s2, 128\ns_cselect_b32 s60, {WS_Q}, s60\ns_add_u32 s58, s58, s60")
        e("s_mov_b32 s60, 0xffffff00")
        for st in range(7):
            e(f"s_waitcnt lgkmcnt({6-st})")
            for u in range(4):
                d, b = PD + 4 * u, PB + 16 * st + 4 * u
                c = "0" if st == 0 else f"v[{d}:{d+3}]"
                e(f"v_mfma_f32_16x16x32_bf16 v[{d}:{d+3}], v[{PA+4*st}:{PA+4*st+3}], v[{b}:{b+3}], {c}")
        e("s_nop 7")
        for v in range(2):
            e(f"v_mov_b32_dpp v{PD+8*v}, v{PD+8*v+4} quad_perm:[0,1,2,3] row_mask:0xc bank_mask:0xf")
        for v in range(2):
            e(f"v_and_or_b32 v{PD+8*v}, v{PD+8*v}, s60, v{vT8}")
            e(f"buffer_store_dword v{PD+8*v}, v9, s[32:35], s58 offen offset:{128*v} sc1")
        self.stamp(4)
        e("L_getq:")
        e(f"v_lshlrev_b32 v9, 4, v0\ns_lshl_b32 s58, s49, 10\ns_add_u32 s58, s58, {WS_Q}\ns_add_u32 s59, s58, 0x8000")
        self.gather([(4, PRAW, PCL, 9, "s58", 0), (4, PRAW + 4, PCL + 4, 9, "s59", 0)], vT8, "BYTE_0", "-1",
                    sleep=self.qsleep)
        for k in range(4):
            e(f"v_add_f32 v{PCL+k}, v{PCL+k}, v{PCL+4+k}")
        e(f"v_cvt_pk_bf16_f32 v16, v{PCL}, v{PCL+1}\nv_cvt_pk_bf16_f32 v17, v{PCL+2}, v{PCL+3}")
        e(f"v_lshl_add_u32 v1, v0, 3, v{vM}\nds_write_b64 v1, v[16:17] offset:{QV-MISC}")
        e(f"v_mov_b32 v18, 1\nv_mov_b32 v19, s56\nds_write_b64 v{vM}, v[18:19] offset:{QRDY-MISC}")
        self.stamp(5)

        e("L_bg:")
        e(f"s_lshl_b32 s57, s30, 11\ns_add_u32 s57, s57, {STG}\ns_add_u32 s59, s57, 1024")
        e(f"s_lshl_b32 s60, s30, 5\ns_add_u32 s60, s60, {STG}\nv_add_u32 v8, s60, v8\ns_mov_b32 s44, 0\ns_mov_b32 s45, 0")
        e("s_cmp_eq_u32 s48, 7\ns_cbranch_scc1 L_bgdone")
        self.srd(36, 12, 4096 * 896)
        e(f"s_and_b32 s58, s49, 15\ns_mul_i32 s58, s58, {256*896}\ns_lshl_b32 s60, s48, 7\ns_add_u32 s58, s58, s60")
        self.unit_load(WO, 4, 36, 896, 64 * 896, vM)
        e("s_lshr_b32 s60, s49, 3\ns_cmp_lg_u32 s60, 1\ns_cbranch_scc1 L_bgdone")
        e("s_bfe_u32 s54, s49, 0x10002\ns_and_b32 s55, s49, 3\ns_lshl_b32 s60, s48, 2\ns_add_u32 s55, s55, s60")
        self.srd(36, 16, 448 * 3584)
        e("s_lshl_b32 s58, s55, 7")
        self.unit_load(W1, 7, 36, 3584, 64 * 3584, vM)
        self.srd(36, 18, 1792 * 896)
        e(f"s_mul_i32 s58, s55, {64*896}")
        self.unit_load(W2, 7, 36, 896, 128, vM)
        e("v_and_b32 v1, 31, v0\nv_lshlrev_b32 v13, 2, v1\nv_lshrrev_b32 v1, 5, v0\nv_lshl_add_u32 v13, v1, 1, v13")
        e("s_mul_i32 s60, s30, 112\nv_add_u32 v13, s60, v13")
        self.srd(36, 4, 1792)
        e(f"v_lshlrev_b32 v14, 1, v13\ns_mul_i32 s58, s54, 896\nbuffer_load_dword v{XP}, v14, s[36:39], s58 offen")
        e(f"s_mul_i32 s58, s54, {2688*4}\ns_add_u32 s58, s58, {WS_MOD+896*4}\ns_add_u32 s59, s58, {2*2688*4}\nv_lshlrev_b32 v9, 2, v13")
        self.gather([(2, RAW, GA, 9, "s58", 0), (2, RAW + 2, 16, 9, "s59", 0)], vT8, "BYTE_0", HM, sleep=8)
        self.sum_round(GA, 16, 2, [18])
        e(f"v_and_b32 v{XP+1}, 0xffff0000, v{XP}\nv_lshlrev_b32 v{XP}, 16, v{XP}")
        e("v_lshlrev_b32 v9, 1, v5")
        loads = []
        for p in range(2):
            for m, dst in enumerate((SB, OCB)):
                for hf in range(2):
                    k = (p * 2 + m) * 2 + hf
                    cl = dst + 4 * hf if p == 0 else AD + 8 * (1 - m) + 4 * hf
                    loads.append((4, RAW + 4 * k, cl, 9, f"s{58+p}", (m + 1) * 448 * 4 + hf * 16))
        self.gather(loads, vT8, "BYTE_0", LM, sleep=8)
        self.sum_round(OCB, AD, 16, list(range(16, 24)))
        e(f"s_lshl_b32 s60, s55, 6\ns_add_u32 s58, s58, s60\ns_add_u32 s58, s58, {1344*4}\ns_add_u32 s59, s58, {2*2688*4}")
        e("v_lshlrev_b32 v9, 2, v4")
        self.gather([(1, RAW, GB, 9, "s58", 0), (1, RAW + 1, 16, 9, "s59", 0)], vT8, "BYTE_0", "-1", sleep=8)
        self.sum_round(GB, 16, 1, None)
        for k in range(8):
            e(f"v_add_f32 v{OCB+k}, 1.0, v{OCB+k}")
        self.rbf_pairs(list(range(OCB, OCB + 8)), list(range(16, 20)))
        e("L_bgdone:")
        e("s_cmp_lg_u32 s30, 0\ns_cbranch_scc1 L_tail0")

        top, go = self.lab("ml"), self.lab("mlgo")
        e(f"{top}:")
        for i in range(3):
            e(f"ds_read_b128 v[{16+4*i}:{19+4*i}], v{vM} offset:{ML-MISC+16*i}")
        e("s_waitcnt lgkmcnt(0)\nv_min3_u32 v1, v18, v22, v26\ns_nop 0\nv_readfirstlane_b32 s60, v1")
        e(f"s_cmp_lg_u32 s60, 0\ns_cbranch_scc1 {go}")
        self.budget()
        e(f"s_sleep 32\ns_branch {top}\n{go}:")
        e(f"s_mov_b32 s61, {hex(C2)}\nv_max3_f32 v28, v16, v20, v24")
        for i in range(3):
            e(f"v_sub_f32 v{18+4*i}, v{16+4*i}, v28\nv_mul_f32 v{18+4*i}, s61, v{18+4*i}\nv_exp_f32 v{18+4*i}, v{18+4*i}")
        e("s_nop 0\nv_mul_f32 v29, v17, v18\nv_fmac_f32 v29, v21, v22\nv_fmac_f32 v29, v25, v26")
        e(f"v_or_b32 v{RAW}, v28, v{vT16}\nv_and_b32 v1, 0xffff0000, v29\nv_or_b32 v{RAW+1}, v1, v{vT16}")
        e(f"v_lshlrev_b32 v1, 16, v29\nv_or_b32 v{RAW+2}, v1, v{vT16}\nv_mov_b32 v{RAW+3}, v{vT16}")
        e(f"s_lshl_b32 s58, s49, 8\ns_add_u32 s58, s58, {WS_ML}\ns_lshl_b32 s60, s48, 4\nv_mov_b32 v1, s60")
        e(f"s_mov_b64 exec, 1\nbuffer_store_dwordx4 v[{RAW}:{RAW+3}], v1, s[32:35], s58 offen sc1\ns_mov_b64 exec, -1")
        e("s_mov_b32 s47, 0")
        self.lds_wait(vM, FULL - MISC, 47, 640, 32)
        e("v_and_b32 v9, 7, v0\nv_lshlrev_b32 v9, 4, v9")
        self.gather([(4, RAW + 4, RAW + 8, 9, "s58", 0)], vT16, "WORD_0", "-1", sleep=16)
        m, l = RAW + 8, RAW + 9
        e(f"v_lshrrev_b32 v{l+1}, 16, v{l+1}\nv_or_b32 v{l}, v{l}, v{l+1}\nv_mov_b32 v28, v{m}")
        oct_steps = ["quad_perm:[1,0,3,2]", "quad_perm:[2,3,0,1]", "row_half_mirror"]
        for st in oct_steps:
            e(f"s_nop 1\nv_max_f32_dpp v28, v28, v28 {st} {DPPF}")
        e(f"v_sub_f32 v{m}, v{m}, v28\nv_mul_f32 v{m}, s61, v{m}\nv_exp_f32 v{m}, v{m}\ns_nop 0\nv_mul_f32 v29, v{m}, v{l}")
        for st in oct_steps:
            e(f"s_nop 1\nv_add_f32_dpp v29, v29, v29 {st} {DPPF}")
        e("v_rcp_f32 v29, v29")
        for i in range(3):
            e(f"v_sub_f32 v{F+i}, v{16+4*i}, v28\nv_mul_f32 v{F+i}, s61, v{F+i}\nv_exp_f32 v{F+i}, v{F+i}\ns_nop 0")
            e(f"v_mul_f32 v{F+i}, v{F+i}, v29")
        e(f"v_lshlrev_b32 v9, 4, v0\nv_add_u32 v14, {SC}, v9\ns_lshl_b32 s58, s2, 10\ns_add_u32 s58, s58, {WS_OP}")
        e("s_mov_b32 s60, 0xffffff00\ns_barrier")
        if self.stamps:
            self.stamp(6)
        for i in range(3):
            e(f"ds_read_b128 v[{16+4*i}:{19+4*i}], v14 offset:{SC_STRIDE*i}")
        e("s_waitcnt lgkmcnt(2)")
        for k in range(4):
            e(f"v_mul_f32 v{16+k}, v{16+k}, v{F}")
        for i in (1, 2):
            e(f"s_waitcnt lgkmcnt({2-i})")
            for k in range(4):
                e(f"v_fmac_f32 v{16+k}, v{16+4*i+k}, v{F+i}")
        for k in range(4):
            e(f"v_and_or_b32 v{16+k}, v{16+k}, s60, v{vT8}")
        e("buffer_store_dwordx4 v[16:19], v9, s[32:35], s58 offen sc1\ns_branch L_tail1")
        e("L_tail0:")
        self.stamp(5)
        e("s_barrier")
        if self.stamps:
            self.stamp(0)
        e("L_tail1:\ns_cmp_eq_u32 s48, 7\ns_cbranch_scc1 L_fin")

        e(f"s_lshl_b32 s58, s49, 13\ns_lshl_b32 s60, s30, 8\ns_add_u32 s58, s58, s60\ns_add_u32 s58, s58, {WS_OP}")
        e("s_add_u32 s59, s58, 4096\nv_lshlrev_b32 v9, 2, v0")
        e(f"s_lshl_b32 s60, s30, 7\ns_add_u32 s60, s60, {QV}\nv_lshl_add_u32 v14, v0, 1, s60")
        e(f"v_lshlrev_b32 v15, 4, v3\nv_add_u32 v15, {QV}, v15")
        self.gather([(1, RAW + k, 20 + k, 9, f"s{58+(k>>2)}", (k & 3) * 1024) for k in range(8)],
                    vT8, "BYTE_0", "-1")
        e("v_add_f32 v20, v20, v21\nv_add_f32 v22, v22, v23\nv_add_f32 v24, v24, v25\nv_add_f32 v26, v26, v27")
        e("v_add_f32 v20, v20, v22\nv_add_f32 v24, v24, v26\nv_add_f32 v20, v20, v24")
        e("v_cvt_pk_bf16_f32 v20, v20, v20\nds_write_b16 v14, v20\ns_waitcnt lgkmcnt(0)\ns_barrier")
        if self.stamps:
            e("s_cmp_eq_u32 s30, 0\ns_cbranch_scc1 L_st1")
            self.stamp(1)
            e("L_st1:")
        e(f"s_mul_i32 s58, s49, {448*4}\ns_lshl_b32 s60, s48, 8\ns_add_u32 s58, s58, s60")
        e(f"s_lshl_b32 s60, s30, 6\ns_add_u32 s58, s58, s60\ns_add_u32 s58, s58, {WS_Y}\ns_mov_b32 s60, 0xffffff00")
        self.unit_mfma_lds(WO, RAW, 15, 8, DD)
        e(f"v_and_or_b32 v{DD}, v{DD}, s60, v{vT8}")
        e(f"s_mov_b64 exec, 0xffff\nbuffer_store_dword v{DD}, v9, s[32:35], s58 offen sc1\ns_mov_b64 exec, -1")
        e("s_lshr_b32 s60, s49, 3\ns_cmp_lg_u32 s60, 1\ns_cbranch_scc1 L_fin")

        e(f"v_lshrrev_b32 v1, 5, v0\nv_mul_u32_u24 v1, {8*448*4-8}, v1\nv_lshl_add_u32 v9, v13, 2, v1")
        e(f"s_mul_i32 s58, s54, {16*448*4}\ns_add_u32 s40, s58, {WS_Y}")
        for k in range(1, 4):
            e(f"s_add_u32 s{40+k}, s40, {k*2*448*4}")
        e(f"v_lshl_add_u32 v14, v13, 1, v{vM}\nv_add_u32 v15, v5, v{vM}")
        e(f"s_lshl_b32 s60, s55, 5\ns_add_u32 s60, s60, {AIM}\nv_lshl_add_u32 v30, v4, 1, s60")
        for k in range(4):
            e(f"v_mov_b32 v{248+k}, 0")
        CL = WO
        self.gather([(4, RAW + 4 * k, CL + 4 * k, 9, f"s{40+(k>>1)}", (k & 1) * 448 * 4) for k in range(8)],
                    vT8, "BYTE_0", HM)
        if self.stamps:
            e("s_cmp_eq_u32 s30, 0\ns_cbranch_scc1 L_st2")
            self.stamp(2)
            e("L_st2:")
        for st in (16, 8, 4):
            for k in range(0, st, 2):
                e(f"v_pk_add_f32 v[{CL+k}:{CL+k+1}], v[{CL+k}:{CL+k+1}], v[{CL+st+k}:{CL+st+k+1}]")
        e(f"s_nop 1\nv_permlane32_swap_b32 v{CL}, v{CL+2}\nv_permlane32_swap_b32 v{CL+1}, v{CL+3}")
        e(f"v_add_f32 v{CL}, v{CL}, v{CL+2}\nv_add_f32 v{CL+1}, v{CL+1}, v{CL+3}")
        self.rbf_pairs([CL, CL + 1], [16])
        e(f"v_mul_f32 v{CL}, v{CL}, v{GA}\nv_mul_f32 v{CL+1}, v{CL+1}, v{GA+1}")
        self.rbf_pairs([CL, CL + 1], [16])
        e(f"v_add_f32 v{CL}, v{CL}, v{XP}\nv_add_f32 v{CL+1}, v{CL+1}, v{XP+1}")
        e(f"v_cvt_pk_bf16_f32 v16, v{CL}, v{CL+1}")
        e(f"s_mov_b64 exec, {HM}\nds_write_b32 v14, v16 offset:{AIM-MISC}\ns_mov_b64 exec, {LM}")
        e("s_waitcnt lgkmcnt(0)\ns_barrier")
        e(f"ds_read_b128 v[248:251], v15 offset:{AIM-MISC}\ns_mov_b64 exec, -1\nds_read_u16 v31, v30\ns_waitcnt lgkmcnt(1)")
        X = list(range(CL, CL + 8))
        self.unpack([248, 249, 250, 251], X)
        self.layernorm(X, list(range(16, 22)))
        self.modulate(X, list(range(OCB, OCB + 8)), list(range(SB, SB + 8)), [248, 249, 250, 251], list(range(16, 20)))
        e(f"s_lshl_b32 s60, s30, 5\ns_add_u32 s60, s60, {RED}\nv_lshl_add_u32 v14, v4, 1, s60")
        e(f"v_lshl_add_u32 v15, v3, 4, v{vM}")
        self.unit_mfma_dpp(W1, 248, AD, DD)
        self.rbf1(DD)
        self.silu([DD], [16])
        e(f"v_cvt_pk_bf16_f32 v{DD}, v{DD}, v{DD}\nds_write_b16 v14, v{DD}\ns_waitcnt lgkmcnt(0)\ns_barrier")
        e(f"ds_read_b128 v[{AD}:{AD+3}], v15 offset:{RED-MISC}\nds_read_b128 v[{AD+4}:{AD+7}], v15 offset:{RED-MISC+64}")
        if self.stamps:
            e("s_cmp_eq_u32 s30, 0\ns_cbranch_scc1 L_st3")
            self.stamp(3)
            e("L_st3:")
        e(f"s_mul_i32 s40, s54, {28*1792}\ns_add_u32 s40, s40, {WS_Z}")
        e(f"s_mul_i32 s58, s30, 1792\ns_lshl_b32 s60, s55, 6\ns_add_u32 s58, s58, s60\ns_add_u32 s58, s58, s40")
        e(f"s_add_u32 s59, s58, {16*1792}\nv_mul_u32_u24 v9, {4*1792}, v3\nv_lshl_add_u32 v9, v4, 2, v9\ns_mov_b32 s60, 0xffffff00")
        for st in range(2):
            e(f"s_waitcnt lgkmcnt({1-st})")
            for rho in range(7):
                d, b = RAW + 4 * rho, W2 + 8 * rho + 4 * st
                c = "0" if st == 0 else f"v[{d}:{d+3}]"
                e(f"v_mfma_f32_16x16x32_bf16 v[{d}:{d+3}], v[{AD+4*st}:{AD+4*st+3}], v[{b}:{b+3}], {c}")
        e("s_nop 4")
        for g in (1, 2, 3):
            e(f"v_mov_b32_dpp v{RAW}, v{RAW+4*g} quad_perm:[0,1,2,3] row_mask:{hex(1<<g)} bank_mask:0xf\ns_nop 1")
        e(f"v_and_or_b32 v{RAW}, v{RAW}, s60, v{vT8}")
        e(f"v_mov_b32_dpp v{RAW+16}, v{RAW+20} quad_perm:[0,1,2,3] row_mask:0x2 bank_mask:0xf")
        e(f"buffer_store_dword v{RAW}, v9, s[32:35], s58 offen sc1\ns_nop 0")
        e(f"v_mov_b32_dpp v{RAW+16}, v{RAW+24} quad_perm:[0,1,2,3] row_mask:0x4 bank_mask:0xf")
        e(f"v_and_or_b32 v{RAW+16}, v{RAW+16}, s60, v{vT8}\ns_mov_b32 exec_hi, 0xffff")
        e(f"buffer_store_dword v{RAW+16}, v9, s[32:35], s59 offen sc1\ns_mov_b64 exec, -1")
        if self.stamps:
            e("s_cmp_eq_u32 s30, 0\ns_cbranch_scc1 L_st4")
            self.stamp(4)
            e("L_st4:")
        e("s_cmp_lg_u32 s30, 0\ns_cbranch_scc1 L_fin")
        e("s_mul_i32 s58, s55, 1792\ns_add_u32 s58, s58, s40\nv_lshlrev_b32 v9, 2, v0")
        self.srd(36, 24, 1792)
        e("s_mul_i32 s41, s54, 896\ns_lshl_b32 s60, s55, 5\ns_add_u32 s41, s41, s60")
        e("v_lshlrev_b32 v14, 1, v0\nv_lshlrev_b32 v31, 16, v31")
        self.gather([(1, CL + k, 16 + k, 9, "s58", 256 * k) for k in range(7)], vT8, "BYTE_0", "-1")
        e("v_add_f32 v16, v16, v17\nv_add_f32 v18, v18, v19\nv_add_f32 v20, v20, v21\nv_add_f32 v16, v16, v22")
        e("v_add_f32 v18, v18, v20\nv_add_f32 v16, v16, v18")
        for sw in ("v_permlane16_swap_b32", "v_permlane32_swap_b32"):
            e(f"v_mov_b32 v17, v16\ns_nop 1\n{sw} v16, v17\nv_add_f32 v16, v16, v17")
        self.rbf1(16)
        e(f"v_mul_f32 v16, v16, v{GB}")
        self.rbf1(16)
        e("v_add_f32 v16, v16, v31\nv_cvt_pk_bf16_f32 v16, v16, v16")
        e("s_mov_b64 exec, 0xffff\nbuffer_store_short v16, v14, s[36:39], s41 offen")
        e(f"s_cmp_lg_u32 s2, 64\ns_cbranch_scc1 L_fin")
        e(f"v_mov_b32 v16, s56\ns_mov_b64 exec, 1\nbuffer_store_dword v16, v2, s[32:35], 0 offen sc1")
        if self.diag_total:
            e(f"L_dt:\ns_memrealtime s[98:99]\ns_waitcnt lgkmcnt(0)\ns_sub_u32 s98, s98, s100\ns_cmp_lt_u32 s98, {self.diag_total*100}\ns_cbranch_scc1 L_dt")
        e("L_fin:")
        self.stamp(7)
        self.end()

    def build(self, header):
        e = self.e
        K = NAME + "_kernel"
        self.L.append(header.rstrip("\n"))
        self.L.append(f"; @launch grid=(256,1,1) block=(512,1,1) lds={LDS_BYTES}")
        self.L.append('.amdgcn_target "amdgcn-amd-amdhsa--gfx950"\n.text')
        self.L.append(f".globl {K}\n.p2align 8\n.type {K},@function\n{K}:")
        if self.diag_first:
            e("s_memrealtime s[100:101]")
        e("s_cmp_ge_u32 s2, 256\ns_cbranch_scc1 L_end")
        e("s_load_dwordx16 s[4:19], s[0:1], 0\ns_load_dwordx8 s[20:27], s[0:1], 64\ns_load_dwordx2 s[28:29], s[0:1], 96")
        e("v_lshrrev_b32 v1, 6, v0\nv_and_b32 v0, 63, v0\nv_readfirstlane_b32 s3, v1")
        self.stamp_init()
        e("s_cmp_ge_u32 s3, 4\ns_cbranch_scc1 L_service\ns_cmp_lg_u32 s3, 0\ns_cbranch_scc1 L_consumer")
        self.loader()
        e("L_end:\ns_endpgm")
        self.consumer()
        self.service()
        self.L.append(f""".section .rodata,"a"
.p2align 6
.amdhsa_kernel {K}
  .amdhsa_next_free_vgpr 256
  .amdhsa_next_free_sgpr 102
  .amdhsa_accum_offset 256
  .amdhsa_group_segment_fixed_size 0
  .amdhsa_kernarg_size 104
  .amdhsa_user_sgpr_count 2
  .amdhsa_user_sgpr_kernarg_segment_ptr 1
  .amdhsa_system_sgpr_workgroup_id_x 1
  .amdhsa_float_denorm_mode_32 3
.end_amdhsa_kernel""")
        return "\n".join(self.L) + "\n"


HEADER = """; Fused adaLN-conditioned block: cached multi-head attention (decode) + SiLU MLP, gfx950.
"""


def generate(**kw):
    return Gen(**kw).build(HEADER)


if __name__ == "__main__":
    import json
    kw = json.loads(sys.argv[2]) if len(sys.argv) > 2 else {}
    open(sys.argv[1], "w").write(generate(**kw))
```

```python
import struct
import sys

NAME = "adaLN_cond__mha_block_cached__dense_activation_silu__decode"

WS_EPOCH, WS_MOD, WS_Q, WS_OP, WS_Y, WS_ML, WS_Z, WS_CTR, WS_SIZE = (
    0, 0x1000, 0x10000, 0x20000, 0x60000, 0x6E000, 0x70000, 0xB0000, 0x180000)
WS_STAMP = 0x180000
RING, NSLOT = 0, 16
SC, SC_STRIDE = 131072, 6144
STG = 149504
PST = 131072
MISC = 159744
FULL, FREE, QRDY, TAG, BAR, ML, QV, AIM, RED = (MISC, MISC + 256, MISC + 272, MISC + 276, MISC + 280,
                                                MISC + 288, MISC + 512, MISC + 1024, MISC + 2816)
FS, PF = MISC + 336, MISC + 352
GX, GBL = STG, STG + 4096
LDS_BYTES = 163840


STAMPS = [("ld start", 0, 0), ("S0 start", 4, 0), ("S0 weights landed", 4, 1), ("S0 frags read", 4, 2),
          ("S0 mod gathered", 4, 3), ("S0 unit pub", 4, 4), ("S0 q ready", 4, 5), ("C prepull done", 1, 0),
          ("C q seen", 1, 1), ("bg done", 5, 0), ("ld K issued", 0, 1), ("C K done", 1, 2), ("C softmax done", 1, 3),
          ("ld done", 0, 2), ("opart pub", 1, 4), ("o gathered", 5, 1), ("y pub", 5, 2), ("y gathered", 0, 3),
          ("x1 barrier", 5, 3), ("hid barrier", 5, 4), ("z pub", 5, 5), ("z gathered", 0, 4), ("end", 0, 5)]
END_STAMP = (0, 5)


def f2u(x):
    return struct.unpack("<I", struct.pack("<f", x))[0]


LOG2E = 1.4426950408889634
C2 = f2u(LOG2E / 16.0)
DPPF = "row_mask:0xf bank_mask:0xf"


class Gen:
    def __init__(self, D=20, lev=(18, 20, 22, 24), nsh=4, cst=256, cstart=64, atpos=16, wpol="nt", kvpol="nt",
                 prepull=5, qsleep=0, warm=0, pstart=1016, zpad=0, prewarm=1, vtouch=0, stamps=False, prog=None, bgst=0, l2warm=0, G=2, lev0=None):
        self.L = []
        self.n = 0
        self.D, self.lev, self.nsh, self.cst, self.cstart, self.atpos = D, list(lev), nsh, cst, cstart, atpos
        self.period = 32
        self.G, self.lev0 = G, lev0
        self.l2warm = l2warm
        assert cstart >= 64 and cstart % 32 == 0 and atpos % 8 == 0
        self.wpol, self.kvpol = wpol, kvpol
        self.prepull, self.qsleep, self.warm = prepull, qsleep, warm
        self.pstart, self.zpad, self.prewarm, self.vtouch = pstart, zpad, prewarm, vtouch
        self.stamps, self.prog, self.bgst = stamps, prog, bgst

    def e(self, s):
        for line in s.split("\n"):
            line = line.strip()
            if not line:
                continue
            self.L.append(line if line.endswith(":") or line.startswith(";") else "    " + line)

    def lab(self, p):
        self.n += 1
        return f"L_{p}_{self.n}"

    def srd(self, d, base, size):
        self.e(f"s_mov_b32 s{d}, s{base}\ns_mov_b32 s{d+1}, s{base+1}\n"
               f"s_mov_b32 s{d+2}, {size}\ns_mov_b32 s{d+3}, 0x20000")

    def stamp(self, k):
        if self.stamps:
            self.e(f"s_memrealtime s[{84+2*k}:{85+2*k}]")

    def stamp_init(self):
        if self.stamps:
            for k in range(8):
                self.e(f"s_mov_b64 s[{84+2*k}:{85+2*k}], 0")

    def stamp_flush(self):
        if self.stamps:
            self.e("s_mov_b64 exec, -1\ns_waitcnt lgkmcnt(0)")
            self.srd(80, 28, WS_STAMP + 0x20000)
            for k in range(8):
                self.e(f"v_mov_b32 v{8+k}, s{84+2*k}")
            self.e(f"s_lshl_b32 s30, s2, 3\ns_add_u32 s30, s30, s3\ns_lshl_b32 s30, s30, 5\n"
                   f"s_add_u32 s30, s30, {WS_STAMP}\nv_mov_b32 v1, s30\ns_mov_b64 exec, 1\n"
                   "buffer_store_dwordx4 v[8:11], v1, s[80:83], 0 offen\n"
                   "buffer_store_dwordx4 v[12:15], v1, s[80:83], 0 offen offset:16")

    def end(self):
        self.stamp_flush()
        self.e("s_endpgm")

    def budget(self):
        self.e("s_sub_u32 s31, s31, 1\ns_cbranch_scc1 L_end")

    def wave_reduce(self, op, regs, nsteps=6):
        steps = ["quad_perm:[1,0,3,2] " + DPPF, "quad_perm:[2,3,0,1] " + DPPF, "row_half_mirror " + DPPF,
                 "row_mirror " + DPPF, "row_bcast:15 row_mask:0xa bank_mask:0xf",
                 "row_bcast:31 row_mask:0xc bank_mask:0xf"]
        for st in steps[:nsteps]:
            pad = 3 - len(regs) if st is not steps[0] else 2
            if pad > 0:
                self.e(f"s_nop {pad-1}")
            for r in regs:
                self.e(f"{op}_dpp v{r}, v{r}, v{r} {st}")
        self.e("s_nop 0")

    def rbf_pairs(self, regs, tmp):
        for k in range(0, len(regs), 2):
            self.e(f"v_cvt_pk_bf16_f32 v{tmp[k//2]}, v{regs[k]}, v{regs[k+1]}")
        self.unpack(tmp[:len(regs)//2], regs)

    def unpack(self, packed, regs):
        for k, p in enumerate(packed):
            self.e(f"v_lshlrev_b32 v{regs[2*k]}, 16, v{p}\nv_and_b32 v{regs[2*k+1]}, 0xffff0000, v{p}")

    def rbf1(self, r):
        self.e(f"v_cvt_pk_bf16_f32 v{r}, v{r}, v{r}\nv_and_b32 v{r}, 0xffff0000, v{r}")

    def silu(self, regs, tmp):
        for r, t in zip(regs, tmp):
            self.e(f"v_mul_f32 v{t}, {hex(f2u(-LOG2E))}, v{r}")
        for t in tmp[:len(regs)]:
            self.e(f"v_exp_f32 v{t}, v{t}")
        self.e("s_nop 0")
        for t in tmp[:len(regs)]:
            self.e(f"v_add_f32 v{t}, 1.0, v{t}")
        for t in tmp[:len(regs)]:
            self.e(f"v_rcp_f32 v{t}, v{t}")
        self.e("s_nop 0")
        for r, t in zip(regs, tmp):
            self.e(f"v_mul_f32 v{r}, v{r}, v{t}")

    def layernorm(self, X, t, extra=None):
        e = self.e
        S = X + (extra or [])
        e(f"v_add_f32 v{t[0]}, v{S[0]}, v{S[1]}\nv_mul_f32 v{t[1]}, v{S[0]}, v{S[0]}")
        e(f"v_fmac_f32 v{t[1]}, v{S[1]}, v{S[1]}")
        for r in S[2:]:
            e(f"v_add_f32 v{t[0]}, v{t[0]}, v{r}\nv_fmac_f32 v{t[1]}, v{r}, v{r}")
        if extra is None:
            self.wave_reduce("v_add_f32", [t[0], t[1]])
            e(f"v_readlane_b32 s60, v{t[0]}, 63\nv_readlane_b32 s61, v{t[1]}, 63")
            e(f"v_mov_b32 v{t[2]}, {hex(f2u(1.0/448))}")
            e(f"v_mul_f32 v{t[0]}, s60, v{t[2]}\nv_mul_f32 v{t[1]}, s61, v{t[2]}")
        else:
            self.wave_reduce("v_add_f32", [t[0], t[1]], nsteps=4)
            e(f"v_mov_b32 v{t[2]}, v{t[0]}\nv_mov_b32 v{t[3]}, v{t[1]}\ns_nop 1")
            e(f"v_permlane16_swap_b32 v{t[0]}, v{t[2]}\nv_permlane16_swap_b32 v{t[1]}, v{t[3]}")
            e(f"v_add_f32 v{t[0]}, v{t[0]}, v{t[2]}\nv_add_f32 v{t[1]}, v{t[1]}, v{t[3]}")
            e(f"v_mul_f32 v{t[0]}, {hex(f2u(1.0/448))}, v{t[0]}\nv_mul_f32 v{t[1]}, {hex(f2u(1.0/448))}, v{t[1]}")
        e(f"v_fma_f32 v{t[1]}, -v{t[0]}, v{t[0]}, v{t[1]}\nv_max_f32 v{t[1]}, 0, v{t[1]}")
        e(f"v_cvt_pk_bf16_f32 v{t[2]}, v{t[0]}, v{t[1]}")
        e(f"v_lshlrev_b32 v{t[0]}, 16, v{t[2]}\nv_and_b32 v{t[1]}, 0xffff0000, v{t[2]}")
        e(f"v_add_f32 v{t[1]}, {hex(f2u(1e-5))}, v{t[1]}")
        self.rbf1(t[1])
        e(f"v_sqrt_f32 v{t[1]}, v{t[1]}")
        for k in range(8):
            e(f"v_sub_f32 v{X[k]}, v{X[k]}, v{t[0]}")
        self.rbf1(t[1])
        e(f"v_rcp_f32 v{t[1]}, v{t[1]}")
        self.rbf_pairs(X, t[2:6])
        for k in range(8):
            e(f"v_mul_f32 v{X[k]}, v{X[k]}, v{t[1]}")
        self.rbf_pairs(X, t[2:6])

    def modulate(self, X, OC, SH, out, t):
        for k in range(8):
            self.e(f"v_mul_f32 v{X[k]}, v{X[k]}, v{OC[k]}")
        self.rbf_pairs(X, t)
        for k in range(8):
            self.e(f"v_add_f32 v{X[k]}, v{X[k]}, v{SH[k]}")
        for k in range(4):
            self.e(f"v_cvt_pk_bf16_f32 v{out[k]}, v{X[2*k]}, v{X[2*k+1]}")

    def gather(self, loads, vtag, sel, active, sleep=0, pairs=False):
        e = self.e
        top, done = self.lab("gat"), self.lab("gdone")
        for k in range(len(loads)):
            e(f"s_mov_b64 s[{64+2*k}:{65+2*k}], 1")
        e(f"s_mov_b64 exec, {active}\n{top}:")
        for k, (nd, raw, clean, va, so, imm) in enumerate(loads):
            sk = self.lab("gs")
            dst = f"v{raw}" if nd == 1 else f"v[{raw}:{raw+nd-1}]"
            suf = "" if nd == 1 else f"x{nd}"
            if len(loads) > 1:
                e(f"s_cmp_eq_u64 s[{64+2*k}:{65+2*k}], 0\ns_cbranch_scc1 {sk}")
            e(f"buffer_load_dword{suf} {dst}, v{va}, s[32:35], {so} offen offset:{imm} sc1")
            e(f"{sk}:")
        e("s_waitcnt vmcnt(0)")
        for k, (nd, raw, clean, va, so, imm) in enumerate(loads):
            for j in range(nd):
                e(f"v_xor_b32 v{clean+j}, v{raw+j}, v{vtag}")
            if nd == 1:
                chk = clean
            elif nd == 2:
                chk = 1
                e(f"v_or_b32 v1, v{clean}, v{clean+1}")
            else:
                chk = 1
                e(f"v_or3_b32 v1, v{clean}, v{clean+1}, v{clean+2}\nv_or_b32 v1, v1, v{clean+3}")
            if isinstance(sel, int):
                e(f"v_and_b32 v1, {sel}, v{chk}\nv_cmp_ne_u32 s[{64+2*k}:{65+2*k}], 0, v1")
            else:
                e(f"v_cmp_ne_u32_sdwa s[{64+2*k}:{65+2*k}], v{chk}, v2 src0_sel:{sel} src1_sel:DWORD")
        if pairs:
            for k in range(0, len(loads), 2):
                e(f"s_or_b64 s[{64+2*k}:{65+2*k}], s[{64+2*k}:{65+2*k}], s[{66+2*k}:{67+2*k}]")
                e(f"s_mov_b64 s[{66+2*k}:{67+2*k}], s[{64+2*k}:{65+2*k}]")
        e("s_or_b64 s[62:63], s[64:65], s[64:65]")
        for k in range(1, len(loads)):
            e(f"s_or_b64 s[62:63], s[62:63], s[{64+2*k}:{65+2*k}]")
        e(f"s_cbranch_scc0 {done}")
        self.budget()
        if sleep:
            e(f"s_sleep {sleep}")
        e(f"s_branch {top}\n{done}:\ns_mov_b64 exec, -1")

    def issue(self, ld):
        nd, raw, va, so, imm = ld
        dst = f"v{raw}" if nd == 1 else f"v[{raw}:{raw+nd-1}]"
        suf = "" if nd == 1 else f"x{nd}"
        self.e(f"buffer_load_dword{suf} {dst}, v{va}, s[32:35], {so} offen offset:{imm} sc1")

    def gather8(self, loads, vtag, active):
        e = self.e
        top, chk = self.lab("gat"), self.lab("gchk")
        if active != "-1":
            e(f"s_mov_b64 exec, {active}")
        for ld in loads:
            self.issue(ld)
        e(f"s_branch {chk}\n{top}:")
        self.budget()
        for k, ld in enumerate(loads):
            sk = self.lab("gs")
            e(f"s_cmp_eq_u64 s[{64+2*k}:{65+2*k}], 0\ns_cbranch_scc1 {sk}")
            self.issue(ld)
            e(f"{sk}:")
        e(f"{chk}:\ns_waitcnt vmcnt(0)")
        for k, ld in enumerate(loads):
            e(f"v_cmp_ne_u32_sdwa s[{64+2*k}:{65+2*k}], v{ld[1]}, v{vtag} src0_sel:BYTE_0 src1_sel:DWORD")
        e("s_or_b64 s[62:63], s[64:65], s[66:67]")
        for k in range(2, len(loads)):
            e(f"s_or_b64 s[62:63], s[62:63], s[{64+2*k}:{65+2*k}]")
        e(f"s_cbranch_scc1 {top}")
        if active != "-1":
            e("s_mov_b64 exec, -1")
        for ld in loads:
            e(f"v_xor_b32 v{ld[1]}, v{ld[1]}, v{vtag}")

    def lds_wait(self, vaddr, off, sreg, need, sleep):
        e = self.e
        top, go = self.lab("lw"), self.lab("lgo")
        e(f"s_cmp_ge_u32 s{sreg}, {need}\ns_cbranch_scc1 {go}\n{top}:")
        e(f"ds_read_b32 v1, v{vaddr} offset:{off}\ns_waitcnt lgkmcnt(0)\nv_readfirstlane_b32 s{sreg}, v1")
        e(f"s_cmp_ge_u32 s{sreg}, {need}\ns_cbranch_scc1 {go}")
        self.budget()
        e(f"s_sleep {sleep}\ns_branch {top}\n{go}:")

    def dma_step(self, vaddr, srd, lds_sreg_or_imm, pol):
        self.e(f"s_mov_b32 m0, {lds_sreg_or_imm}\ns_nop 0")
        self.e(f"buffer_load_dwordx4 v{vaddr}, s[{srd}:{srd+3}], s58 offen {pol} lds")

    def tr_reads(self, dst, vtr, off):
        self.e(f"ds_read_b64_tr_b16 v[{dst}:{dst+1}], v{vtr} offset:{off}")
        self.e(f"ds_read_b64_tr_b16 v[{dst+2}:{dst+3}], v{vtr} offset:{off+512}")

    def loader(self):
        e, D, lev = self.e, self.D, self.lev
        ng = D // 4
        AT = self.atpos

        def loads():
            for k in range(4):
                e(f"buffer_load_dwordx4 v1, s[32:35], s41 offen offset:{k*1024} {self.kvpol} lds")

        def limit():
            e(f"v_min3_u32 v5, v6, v7, v8\ns_nop 0\nv_readfirstlane_b32 s44, v5\ns_lshl_b32 s44, s44, 1\ns_add_u32 s44, s44, {2*NSLOT}")

        e("L_loader:\ns_setprio 3")
        e(f"v_lshlrev_b32 v1, 4, v0\nv_lshlrev_b32 v2, 2, v0\nv_add_u32 v2, {FULL}, v2\nv_mov_b32 v3, {FREE}")
        e("v_mov_b32 v6, 0\nv_mov_b32 v7, 0\nv_mov_b32 v8, 0\nv_mov_b32 v4, 1")
        e("s_lshl_b32 s30, s2, 21\ns_mov_b32 s31, 0x200000\ns_waitcnt lgkmcnt(0)")
        self.stamp(0)
        e("s_add_u32 s32, s6, s30\ns_addc_u32 s33, s7, 0\ns_mov_b32 s34, 0x200000\ns_mov_b32 s35, 0x20000")
        for n in range(ng):
            e(f"s_mov_b32 m0, {n*4096}\ns_mov_b32 s41, {n*4096}")
            loads()
        e(f"s_mov_b32 s40, {ng}\ns_mov_b32 s41, {ng*4096}\ns_mov_b32 s44, {2*NSLOT}\ns_mov_b32 s45, {lev.index(D) if self.lev0 is None else self.lev0}")
        e(f"s_lshr_b32 s48, s2, 3\ns_and_b32 s48, s48, {self.nsh-1}\ns_mul_i32 s48, s48, {self.cst}\ns_add_u32 s48, s48, {WS_CTR}")
        e("s_barrier")
        e("L_ld0:\ns_cmp_lt_u32 s40, s44\ns_cbranch_scc0 L_lds0\nL_ldb0:")
        e(f"s_and_b32 m0, s41, {NSLOT*8192-1}\ns_waitcnt vmcnt({D-4})")
        loads()
        e("ds_write_b32 v2, v4\ns_waitcnt lgkmcnt(1)\nv_min3_u32 v5, v6, v7, v8\nds_read_b96 v[6:8], v3")
        e(f"v_readfirstlane_b32 s44, v5\nv_add_u32 v4, 1, v4\ns_add_u32 s40, s40, 1\ns_add_u32 s41, s41, 4096")
        e(f"s_lshl_b32 s44, s44, 1\ns_add_u32 s44, s44, {2*NSLOT}")
        e(f"s_cmp_lt_u32 s40, {self.cstart}\ns_cbranch_scc1 L_ld0")
        depths = sorted(set(lev))
        e("L_lap:\ns_sub_u32 s51, s44, s40")
        for d in depths[:0:-1]:
            e(f"s_cmp_ge_u32 s45, {lev.index(d)}\ns_cbranch_scc1 L_lap{d}")
        stubs = []
        for d in depths:
            G = self.G
            pub = [m for m in range(0, 128, G) if (m - d + G) % 8 < G]
            e(f"L_lap{d}:\ns_sub_u32 s43, s40, {-2*((pub[0] - d + G)//8)}\nv_mov_b32 v4, s43")
            for g in range(32):
                if g % 4 == 0:
                    e(f"s_cmp_lt_u32 s51, {g+4}\ns_cbranch_scc1 L_lx{d}_{g}\nL_lr{d}_{g}:")
                    stubs.append((d, g))
                e(f"s_mov_b32 m0, {g*4096}")
                wrote = False
                for k in range(4):
                    if k % G == 0:
                        e(f"s_waitcnt vmcnt({d-G})")
                    e(f"buffer_load_dwordx4 v1, s[32:35], s41 offen offset:{k*1024} {self.kvpol} lds")
                    if k % G == G - 1 and 4 * g + k - G + 1 in pub:
                        e("ds_write_b32 v2, v4\nv_add_u32 v4, 2, v4")
                        wrote = True
                e("s_add_u32 s41, s41, 4096")
                fresh = g < AT or g >= 30
                if g % 8 == 6 and fresh:
                    e("ds_read_b96 v[6:8], v3")
                if g % 8 == 7 and fresh:
                    e(f"s_waitcnt lgkmcnt({1 if wrote and g != 31 else 0})")
                    limit()
                    if g != 31:
                        e("s_sub_u32 s51, s44, s40")
                if g == AT - 1:
                    e("s_mov_b32 s47, 1\ns_atomic_add s47, s[28:29], s48 glc")
            if d != depths[-1]:
                e("s_branch L_lapend")
        sh = (256 // self.nsh // len(lev)).bit_length() - 1
        e(f"L_lapend:\ns_lshr_b32 s45, s47, {sh}\ns_add_u32 s48, s48, {self.cst*self.nsh}\ns_add_u32 s40, s40, 32")
        if self.stamps:
            e("s_add_u32 s96, s96, s45")
        for k, n in enumerate(self.prog or []):
            e(f"s_cmp_lg_u32 s40, {n}\ns_cbranch_scc1 L_pg{k}")
            self.stamp(3 + k)
            e(f"L_pg{k}:")
        e("s_cmp_lt_u32 s41, 0x200000\ns_cbranch_scc1 L_lap")
        e("s_cmp_lt_u32 s40, 1024\ns_cbranch_scc1 L_tov")
        e("v_subrev_u32 v4, 2, v4")
        for k in range((max(lev) + 3) // 4, -1, -1):
            if k % 2 == 0:
                e(f"v_max_u32 v4, {1024-k}, v4\ns_waitcnt vmcnt({4*k})\nds_write_b32 v2, v4")
        self.stamp(2)
        e("s_branch L_gtail")
        e("L_tov:\ns_add_u32 s32, s8, s30\ns_addc_u32 s33, s9, 0\ns_mov_b32 s41, 0")
        self.stamp(1)
        e("s_branch L_lap")
        e("L_lds0:\ns_sleep 1\nds_read_b96 v[6:8], v3\ns_waitcnt lgkmcnt(0)")
        limit()
        self.budget()
        if self.stamps:
            e("s_add_u32 s98, s98, 1")
        e("s_cmp_lt_u32 s40, s44\ns_cbranch_scc1 L_ldb0\ns_branch L_lds0")
        for d, g in stubs:
            e(f"L_lx{d}_{g}:\ns_mov_b32 s46, {g+4}\ns_call_b64 s[60:61], L_room\ns_branch L_lr{d}_{g}")
        e("L_room:\nds_read_b96 v[6:8], v3\ns_waitcnt lgkmcnt(0)")
        limit()
        self.budget()
        if self.stamps:
            e("s_add_u32 s98, s98, 1")
        e("s_sub_u32 s51, s44, s40\ns_cmp_lt_u32 s51, s46\ns_cbranch_scc1 L_room\ns_setpc_b64 s[60:61]")

    def consumer(self):
        e = self.e
        NP = self.prepull
        BUF = [96 + 32 * u for u in range(NP)]
        QB, DQ, O0, O1, AP, MK, P = 64, 16, 20, 24, 32, 28, 12
        vK, vV, vA, vM, vS, vSL = 3, 4, 5, 6, 7, 8
        vF, vT, vOA = 48, 49, 50

        def pull(buf, vbase, after=None):
            e("s_lshl_b32 s43, s40, 1\ns_add_u32 s43, s43, 2")
            self.lds_wait(vM, FULL - MISC, 42, "s43", 1)
            e(f"s_and_b32 s44, s40, {NSLOT-1}\ns_lshl_b32 s44, s44, 13\nv_add_u32 v{vA}, s44, v{vbase}")
            for k in range(8):
                e(f"ds_read_b128 v[{buf+4*k}:{buf+4*k+3}], v{vA} offset:{(k>>1)*2048+(k&1)*256}")

        def release():
            e(f"v_mov_b32 v1, s41\nds_write_b32 v9, v1")

        def qk(buf, counted):
            for k in range(8):
                if counted:
                    e(f"s_waitcnt lgkmcnt({7-k})")
                c = "0" if k == 0 else f"v[{DQ}:{DQ+3}]"
                e(f"v_mfma_f32_16x16x32_bf16 v[{DQ}:{DQ+3}], v[{buf+4*k}:{buf+4*k+3}], v[{QB+4*k}:{QB+4*k+3}], {c}")
            if counted:
                release()
                e("s_nop 5")
            else:
                e("s_nop 7")
            e(f"v_mov_b32_dpp v10, v{DQ} quad_perm:[0,0,0,0] {DPPF}")
            e(f"v_mov_b32_dpp v11, v{DQ+2} quad_perm:[2,2,2,2] {DPPF}\ns_nop 0")
            e(f"v_add_f32_dpp v10, v{DQ+1}, v10 quad_perm:[1,1,1,1] {DPPF}")
            e(f"v_add_f32_dpp v11, v{DQ+3}, v11 quad_perm:[3,3,3,3] {DPPF}")
            e("v_add_f32 v10, v10, v11")
            self.rbf1(10)

        e("L_consumer:\ns_sub_u32 s30, s3, 1\ns_mov_b32 s31, 0x200000\ns_mov_b32 s42, 0")
        if self.l2warm:
            K = NAME + "_kernel"
            e("s_cmp_lg_u32 s30, 1\ns_cbranch_scc1 L_nol2\ns_getpc_b64 s[60:61]\nL_pc:")
            e(f"s_sub_u32 s60, s60, L_pc-{K}\ns_subb_u32 s61, s61, 0\ns_lshr_b32 s62, s2, 3\ns_lshl_b32 s62, s62, 10")
            e(f"v_lshl_add_u32 v10, v0, 4, s62\nv_min_u32 v10, L_last-{K}-16, v10\nv_and_b32 v10, -16, v10")
            e("v_mov_b32 v11, s61\nv_add_co_u32 v10, vcc, s60, v10\ns_nop 1\nv_addc_co_u32 v11, vcc, 0, v11, vcc")
            e("global_load_dwordx4 v[52:55], v[10:11], off\nL_nol2:")
        e(f"v_mov_b32 v{vM}, {MISC}")
        e(f"s_cmp_lg_u32 s30, 0\ns_cbranch_scc1 L_noinit")
        e(f"v_lshl_add_u32 v1, v0, 3, v{vM}\nv_mov_b32 v10, 0\nv_mov_b32 v11, 0\nds_write_b64 v1, v[10:11]\nL_noinit:")
        e("v_lshrrev_b32 v13, 4, v0\nv_and_b32 v14, 15, v0\nv_bfe_u32 v15, v0, 2, 2\nv_and_b32 v2, 3, v0")
        e(f"v_lshlrev_b32 v{vK}, 6, v13\nv_lshl_add_u32 v{vK}, v2, 4, v{vK}\nv_mov_b32 v12, v{vK}")
        e(f"v_lshl_add_u32 v{vK}, v15, 9, v{vK}")
        e(f"v_lshlrev_b32 v{vV}, 9, v13\nv_lshl_add_u32 v{vV}, v14, 4, v{vV}")
        e(f"s_mul_i32 s45, s30, {SC_STRIDE}\ns_add_u32 s45, s45, {SC}")
        e(f"v_and_b32 v{vS}, 60, v0\nv_add_u32 v{vS}, s45, v{vS}")
        e(f"v_lshlrev_b32 v{vSL}, 4, v0\nv_add_u32 v{vSL}, s45, v{vSL}")
        e(f"s_lshl_b32 s46, s30, 2\ns_add_u32 s46, s46, {FREE}\nv_mov_b32 v9, s46")
        e("v_and_b32 v1, 1, v0\nv_mov_b32 v10, 0xffff\nv_lshlrev_b32 v1, 4, v1\nv_lshlrev_b32 v10, v1, v10")
        e("v_lshrrev_b32 v1, 1, v14")
        for r in range(4):
            e(f"v_cmp_eq_u32 vcc, {r}, v1\ns_nop 1\nv_cndmask_b32 v{MK+r}, 0, v10, vcc")
        for r in range(8):
            e(f"v_mov_b32 v{O0+r}, 0")
        e("s_waitcnt lgkmcnt(0)\ns_barrier")
        e("s_mov_b32 s40, s30")
        for u in range(NP):
            pull(BUF[u], vK)
            e("s_add_u32 s41, s40, 3\ns_waitcnt lgkmcnt(0)")
            release()
            e("s_mov_b32 s40, s41")
        e("s_mov_b32 s47, 0")
        self.stamp(0)
        self.lds_wait(vM, QRDY - MISC, 47, 1, 1)
        self.stamp(1)
        e(f"v_add_u32 v12, {QV}, v12")
        e(f"ds_read_b128 v[{AP}:{AP+3}], v12\nds_read_b128 v[{AP+4}:{AP+7}], v12 offset:256")
        for r in range(4):
            e(f"v_mov_b32 v{DQ+r}, 0xff800000")
        e(f"ds_write_b128 v{vSL}, v[{DQ}:{DQ+3}] offset:5120\ns_waitcnt lgkmcnt(0)")
        for t in range(4):
            e(f"v_cmp_eq_u32 vcc, {t}, v15\ns_nop 1")
            for k in range(8):
                e(f"v_cndmask_b32 v{QB+8*t+k}, 0, v{AP+k}, vcc")
        e("s_nop 1")
        qk(BUF[0], False)
        e(f"ds_write_b32 v{vS}, v10")
        e(f"v_add_u32 v2, {64*NP}, v{vS}\ns_add_u32 s48, s30, 256")
        e("L_kloop:")
        e("s_add_u32 s41, s40, 3\ns_cmp_lt_u32 s41, 256\ns_cselect_b32 s41, s41, s48")
        pull(BUF[0], vK)
        qk(BUF[0], True)
        e("ds_write_b32 v2, v10\nv_add_u32 v2, 64, v2")
        e("s_mov_b32 s40, s41\ns_cmp_lt_u32 s40, 256\ns_cbranch_scc1 L_kloop")
        for u in range(1, NP):
            qk(BUF[u], False)
            e(f"ds_write_b32 v{vS}, v10 offset:{64*u}")
        self.stamp(2)
        S = BUF[0]
        for k in range(6):
            e(f"ds_read_b128 v[{S+4*k}:{S+4*k+3}], v{vSL} offset:{1024*k}")
        e("s_waitcnt lgkmcnt(0)")
        e(f"v_max_f32 v10, v{S}, v{S+1}")
        for k in range(2, 24, 2):
            e(f"v_max3_f32 v10, v10, v{S+k}, v{S+k+1}")
        self.wave_reduce("v_max_f32", [10])
        e(f"v_readlane_b32 s50, v10, 63\ns_mov_b32 s51, {hex(C2)}\ns_nop 0")
        for k in range(24):
            e(f"v_subrev_f32 v{S+k}, s50, v{S+k}")
        for k in range(24):
            e(f"v_mul_f32 v{S+k}, s51, v{S+k}")
        for k in range(24):
            e(f"v_exp_f32 v{S+k}, v{S+k}")
        e(f"v_add_f32 v10, v{S}, v{S+1}")
        for k in range(2, 24):
            e(f"v_add_f32 v10, v10, v{S+k}")
        for k in range(24):
            e(f"v_cvt_pk_bf16_f32 v{S+k}, v{S+k}, v{S+k}")
        for k in range(6):
            e(f"ds_write_b128 v{vSL}, v[{S+4*k}:{S+4*k+3}] offset:{1024*k}")
        self.wave_reduce("v_add_f32", [10])
        e(f"v_readlane_b32 s52, v10, 63\nv_mov_b32 v{DQ}, s50\nv_mov_b32 v{DQ+2}, 1\nv_mov_b32 v{DQ+3}, 1")
        e(f"v_mov_b32 v{DQ+1}, s52\ns_lshl_b32 s46, s30, 4\ns_add_u32 s46, s46, {ML}\nv_mov_b32 v1, s46")
        e(f"ds_write_b128 v1, v[{DQ}:{DQ+3}]\nv_mov_b32 v2, v{vS}\ns_mov_b32 s49, 460")
        self.srd(32, 28, WS_SIZE)
        e(f"s_mov_b32 s53, 0xffffff00\ns_lshl_b32 s54, s2, 10\ns_add_u32 s54, s54, {WS_OP}")
        e(f"v_lshrrev_b32 v1, 5, v0\nv_lshlrev_b32 v{vOA}, 9, v1\nv_lshl_add_u32 v{vOA}, v14, 5, v{vOA}")
        e(f"v_and_b32 v1, 16, v0\nv_add_u32 v{vOA}, v{vOA}, v1")
        self.stamp(3)
        e("L_vloop:")
        e(f"s_add_u32 s41, s40, 3\nds_read_b32 v{P}, v2\nv_add_u32 v2, 64, v2\ns_waitcnt lgkmcnt(0)")
        for t in range(4):
            for r in range(4):
                e(f"v_and_b32_dpp v{AP+4*t+r}, v{P}, v{MK+r} row_newbcast:{4*t} {DPPF}")
        pull(BUF[0], vV)
        for k in range(8):
            o = O0 if k % 2 == 0 else O1
            a = AP + 4 * (k >> 1)
            e(f"s_waitcnt lgkmcnt({7-k})")
            e(f"v_mfma_f32_16x16x32_bf16 v[{o}:{o+3}], v[{a}:{a+3}], v[{BUF[0]+4*k}:{BUF[0]+4*k+3}], v[{o}:{o+3}]")
        release()
        e("s_mov_b32 s40, s41\ns_cmp_lt_u32 s40, s49\ns_cbranch_scc1 L_vloop")
        e("s_cmp_lt_u32 s40, 512\ns_cbranch_scc1 L_vmid")
        T = BUF[1]
        e("s_cmp_lg_u32 s30, 0\ns_cbranch_scc1 L_cpart")
        e(f"ds_read_b64 v[10:11], v{vM} offset:{PF-MISC}")
        e(f"ds_read_b128 v[{T}:{T+3}], v{vSL} offset:{SC_STRIDE}\nds_read_b128 v[{T+4}:{T+7}], v{vSL} offset:{2*SC_STRIDE}")
        for r in range(4):
            e(f"v_permlane32_swap_b32 v{O0+r}, v{O1+r}")
        e("L_csum:\ns_waitcnt lgkmcnt(0)\nv_and_b32 v10, v10, v11")
        e(f"v_pk_add_f32 v[{T}:{T+1}], v[{T}:{T+1}], v[{T+4}:{T+5}]\nv_pk_add_f32 v[{T+2}:{T+3}], v[{T+2}:{T+3}], v[{T+6}:{T+7}]")
        e("v_readfirstlane_b32 s46, v10")
        for r in range(4):
            e(f"v_fmac_f32 v{T+r}, v{O0+r}, v{vF}")
        e("s_cmp_eq_u32 s46, 0\ns_cbranch_scc1 L_cretry")
        for r in range(4):
            e(f"v_and_or_b32 v{T+r}, v{T+r}, s53, v{vT}")
        e(f"buffer_store_dwordx4 v[{T}:{T+3}], v{vOA}, s[32:35], s54 offen sc1")
        self.stamp(4)
        e("s_branch L_gtail")
        e("L_cretry:")
        self.budget()
        e(f"ds_read_b64 v[10:11], v{vM} offset:{PF-MISC}")
        e(f"ds_read_b128 v[{T}:{T+3}], v{vSL} offset:{SC_STRIDE}\nds_read_b128 v[{T+4}:{T+7}], v{vSL} offset:{2*SC_STRIDE}")
        e("s_branch L_csum")
        e("L_cpart:")
        for r in range(4):
            e(f"v_permlane32_swap_b32 v{O0+r}, v{O1+r}")
        for r in range(4):
            e(f"v_mul_f32 v{O0+r}, v{O0+r}, v{vF}")
        e(f"v_mov_b32 v1, 1\nds_write_b128 v{vSL}, v[{O0}:{O0+3}]\nds_write_b32 v9, v1 offset:{PF-4-FREE}\ns_branch L_gtail")
        e("L_vmid:\ns_mov_b32 s47, 0")
        self.lds_wait(vM, FS + 12 - MISC, 47, 1, 2)
        e(f"ds_read_b32 v{vF}, v9 offset:{FS-FREE}\nds_read_b32 v{vT}, v{vM} offset:{TAG-MISC}")
        e(f"s_mov_b32 s49, 512\ns_waitcnt lgkmcnt(0)\nv_and_b32 v{vT}, 0xff, v{vT}")
        e("s_branch L_vloop")

    def unit_mfma_lds(self, B, A, vA, nsteps, D, off=0):
        for s in range(nsteps):
            self.e(f"ds_read_b128 v[{A+4*s}:{A+4*s+3}], v{vA} offset:{off+64*s}")
        for s in range(nsteps):
            self.e(f"s_waitcnt lgkmcnt({nsteps-1-s})")
            c = "0" if s == 0 else f"v[{D}:{D+3}]"
            self.e(f"v_mfma_f32_16x16x32_bf16 v[{D}:{D+3}], v[{A+4*s}:{A+4*s+3}], v[{B+4*s}:{B+4*s+3}], {c}")
        self.e("s_nop 7")

    def unit_mfma_dpp(self, B, src, A, D):
        def bc(s):
            for r in range(4):
                self.e(f"v_mov_b32_dpp v{A+4*(s%3)+r}, v{src+r} row_newbcast:{s} {DPPF}")
        self.e("s_nop 1")
        bc(0)
        for s in range(14):
            if s < 13:
                bc(s + 1)
            else:
                self.e("s_nop 0")
            a = A + 4 * (s % 3)
            c = "0" if s == 0 else f"v[{D}:{D+3}]"
            self.e(f"v_mfma_f32_16x16x32_bf16 v[{D}:{D+3}], v[{a}:{a+3}], v[{B+4*s}:{B+4*s+3}], {c}")
        self.e("s_nop 7")

    def soft_barrier(self, vM):
        self.e(f"s_add_u32 s45, s45, 4\nv_mov_b32 v1, 1\ns_mov_b64 exec, 1\n"
               f"ds_add_u32 v{vM}, v1 offset:{BAR-MISC}\ns_mov_b64 exec, -1")
        self.lds_wait(vM, BAR - MISC, 44, "s45", 2)

    def unit_load(self, dst, rounds, srd, stride, advance, vM):
        e = self.e
        e(f"s_lshl_b32 s60, s30, 4\nv_add_u32 v9, s60, v6\nv_mul_u32_u24 v9, {stride}, v9\nv_add_u32 v9, v9, v7")
        e(f"v_add_u32 v14, {8*stride}, v9")
        for rd in range(rounds):
            self.dma_step(9, srd, "s57", self.wpol)
            self.dma_step(14, srd, "s59", self.wpol)
            e(f"s_add_u32 s58, s58, {advance}\ns_waitcnt vmcnt(0)")
            self.soft_barrier(vM)
            self.tr_reads(dst + 8 * rd, 8, 0)
            self.tr_reads(dst + 8 * rd + 4, 8, 4096)
            e("s_waitcnt lgkmcnt(0)")
            self.soft_barrier(vM)

    def sum_round(self, a, b, n, tmp):
        for k in range(n):
            self.e(f"v_add_f32 v{a+k}, v{a+k}, v{b+k}")
        if n == 1:
            self.rbf1(a)
        else:
            self.rbf_pairs(list(range(a, a + n)), tmp)

    def service(self):
        e = self.e
        WO, W1, W2 = 32, 64, 120
        OCB, SB, GA, XP, GB, F = 176, 184, 192, 194, 196, 240
        RAW, AD, DD = 200, 232, 244
        vT8, vT16, vM, vT3 = 10, 11, 12, 252
        LM, HM = "s[50:51]", "s[52:53]"
        e("L_service:\ns_sub_u32 s30, s3, 4\ns_mov_b32 s31, 0x80000")
        e("s_and_b32 s48, s2, 7\ns_lshr_b32 s49, s2, 3")
        e("s_mov_b32 s50, 0x3fff3fff\ns_mov_b32 s51, 0x3fff3fff\ns_mov_b32 s52, 0x0fffffff\ns_mov_b32 s53, 0x0fffffff")
        e("v_mov_b32 v2, 0\nv_lshrrev_b32 v3, 4, v0\nv_and_b32 v4, 15, v0")
        e("v_lshlrev_b32 v5, 6, v4\nv_lshl_add_u32 v5, v3, 4, v5")
        e("v_lshrrev_b32 v6, 3, v0\nv_and_b32 v7, 7, v0\nv_lshlrev_b32 v7, 4, v7")
        e("v_lshlrev_b32 v8, 10, v3\nv_bfe_u32 v1, v0, 2, 2\nv_lshl_add_u32 v8, v1, 7, v8")
        e("v_and_b32 v1, 3, v0\nv_lshl_add_u32 v8, v1, 3, v8")
        e(f"v_mov_b32 v{vM}, {MISC}\ns_mov_b32 s47, 0\ns_waitcnt lgkmcnt(0)")
        self.srd(32, 28, WS_SIZE)
        e("s_cmp_eq_u32 s30, 0\ns_cbranch_scc1 L_pro")
        e("s_barrier")
        self.lds_wait(vM, QRDY - MISC, 47, 1, 8)
        if self.vtouch:
            e("s_lshl_b32 s60, s2, 21\ns_add_u32 s36, s8, s60\ns_addc_u32 s37, s9, 0\ns_mov_b32 s38, 0x200000\ns_mov_b32 s39, 0x20000")
            e("s_cmp_lg_u32 s30, 1\ns_cbranch_scc1 L_notouch\nbuffer_load_dword v16, v2, s[36:39], 0 offen nt\nL_notouch:")
        e(f"ds_read_b32 v1, v{vM} offset:{TAG-MISC}\ns_waitcnt lgkmcnt(0)\nv_readfirstlane_b32 s56, v1")
        e(f"v_and_b32 v{vT8}, 0xff, v1\nv_and_b32 v{vT16}, 0xffff, v1\nv_and_b32 v{vT3}, 7, v1\ns_branch L_bg")

        PB, PA, PRAW, PCL, PN, PC, PD = 32, 144, 144, 176, 208, 224, 232
        e("L_pro:")
        self.stamp(0)
        e("s_load_dword s56, s[28:29], 0")
        e("s_and_b32 s54, s2, 1\ns_bfe_u32 s55, s2, 0x60001")
        e("s_cmp_ge_u32 s2, 128")
        e("s_cselect_b32 s36, s4, s20\ns_cselect_b32 s37, s5, s21\ns_mov_b32 s38, 1792\ns_mov_b32 s39, 0x20000")
        e("s_cselect_b32 s40, s10, s22\ns_cselect_b32 s41, s11, s23\ns_mov_b32 s43, 0x20000")
        e(f"s_mov_b32 s46, 5376\ns_cselect_b32 s46, 8192, s46\ns_mul_i32 s42, s46, 448")
        e("s_cbranch_scc1 L_unit\ns_cmp_lt_u32 s2, 84\ns_cbranch_scc1 L_unit")
        e("s_barrier\ns_waitcnt lgkmcnt(0)\ns_add_u32 s56, s56, 1")
        e(f"s_and_b32 s60, s56, 0xff\nv_mov_b32 v{vT8}, s60\ns_and_b32 s60, s56, 0xffff\nv_mov_b32 v{vT16}, s60\nv_and_b32 v{vT3}, 7, v{vT8}")
        e("s_branch L_getq")
        e("L_unit:")
        for k in range(8):
            e(f"v_mov_b32 v{PC+k}, 0")
        if self.lev:
            per = -(-((1024 - 64) // self.period * self.nsh) // 28)
            assert per <= 64 and per * 28 * self.cst <= WS_SIZE - WS_CTR
            e(f"s_cmp_ge_u32 s2, 28\ns_cbranch_scc1 L_noz\ns_mul_i32 s58, s2, {per*self.cst}\ns_add_u32 s58, s58, {WS_CTR}")
            for k in range(0, per, 16):
                e(f"v_lshrrev_b32 v1, 2, v0\nv_add_u32 v1, {k}, v1\nv_and_b32 v9, 3, v0\nv_lshlrev_b32 v9, 4, v9")
                e(f"v_mul_u32_u24 v13, {self.cst}, v1\nv_add_u32 v9, v9, v13")
                e(f"v_cmp_gt_u32 vcc, {per}, v1\ns_and_saveexec_b64 s[62:63], vcc")
                e(f"buffer_store_dwordx4 v[{PC}:{PC+3}], v9, s[32:35], s58 offen sc1\ns_mov_b64 exec, -1")
            e("L_noz:")
        e("v_lshrrev_b32 v1, 5, v0\nv_and_b32 v15, 31, v0\nv_mul_u32_u24 v13, 896, v1\nv_lshl_add_u32 v13, v15, 4, v13")
        e("s_mul_i32 s58, s54, 448\ns_sub_u32 s59, 448, s58")
        e(f"s_mov_b64 exec, {HM}")
        e(f"buffer_load_dwordx4 v[{PC}:{PC+3}], v13, s[36:39], s58 offen")
        e(f"buffer_load_dwordx4 v[{PC+4}:{PC+7}], v13, s[36:39], s59 offen")
        e("s_mov_b64 exec, -1")
        e("v_mul_u32_u24 v9, s46, v6\nv_add_u32 v9, v9, v7")
        e("s_mul_i32 s58, s54, 224\ns_mul_i32 s58, s58, s46\ns_lshl_b32 s60, s55, 7\ns_add_u32 s58, s58, s60\ns_lshl_b32 s59, s46, 3")
        for n in range(28):
            self.dma_step(9, 40, PST + 1024 * n, self.wpol)
            e("s_add_u32 s58, s58, s59")
        e("s_barrier")
        e(f"v_mul_u32_u24 v9, {2688*4}, v1\nv_lshl_add_u32 v9, v15, 5, v9")
        e(f"v_mul_u32_u24 v13, 448, v1\nv_lshl_add_u32 v13, v15, 4, v13\nv_add_u32 v13, {AIM}, v13")
        e(f"v_bfe_u32 v1, v0, 2, 1\nv_mul_u32_u24 v14, 448, v1\nv_lshl_add_u32 v14, v3, 4, v14\nv_add_u32 v14, {AIM}, v14")
        e(f"v_add_u32 v15, {PST}, v8")
        e("s_waitcnt lgkmcnt(0)\ns_add_u32 s56, s56, 1")
        e(f"s_and_b32 s60, s56, 0xff\nv_mov_b32 v{vT8}, s60\ns_and_b32 s60, s56, 0xffff\nv_mov_b32 v{vT16}, s60\nv_and_b32 v{vT3}, 7, v{vT8}")
        e("s_waitcnt vmcnt(28)")
        X = list(range(PN, PN + 8))
        self.unpack(list(range(PC, PC + 8)), list(range(PN, PN + 16)))
        e("s_cmp_ge_u32 s2, 128\ns_cbranch_scc1 L_ln1")
        self.silu(X, list(range(PN + 8, PN + 16)))
        for k in range(4):
            e(f"v_cvt_pk_bf16_f32 v{PC+k}, v{X[2*k]}, v{X[2*k+1]}")
        e("s_branch L_frag\nL_ln1:")
        self.layernorm(X, list(range(16, 22)), extra=list(range(PN + 8, PN + 16)))
        e("L_frag:\ns_waitcnt vmcnt(0)")
        self.stamp(1)
        for st in range(7):
            for u in range(4):
                self.tr_reads(PB + 16 * st + 4 * u, 15, 4096 * st + 32 * u)
        self.stamp(2)
        e("s_cmp_lt_u32 s2, 128\ns_cbranch_scc1 L_mm")
        e(f"s_mul_i32 s58, s54, 896\ns_add_u32 s58, s58, {WS_MOD}\ns_add_u32 s59, s58, {2*2688*4}")
        loads = []
        for p in range(2):
            for m in range(2):
                for hf in range(2):
                    k = (p * 2 + m) * 2 + hf
                    loads.append((4, PRAW + 4 * k, PCL + 4 * k, 9, f"s{58+p}", m * 448 * 4 + hf * 16))
        self.gather(loads, vT3, 7, HM, pairs=True)
        self.stamp(3)
        self.sum_round(PCL, PCL + 16, 16, list(range(16, 24)))
        CA = list(range(PCL + 8, PCL + 16))
        for r in CA:
            e(f"v_add_f32 v{r}, 1.0, v{r}")
        self.rbf_pairs(CA, list(range(16, 20)))
        self.modulate(X, CA, list(range(PCL, PCL + 8)), list(range(PC, PC + 4)), list(range(16, 20)))
        e("L_mm:")
        e(f"s_mov_b64 exec, {HM}\nds_write_b128 v13, v[{PC}:{PC+3}]\ns_mov_b64 exec, -1\ns_waitcnt lgkmcnt(0)")
        for st in range(7):
            e(f"ds_read_b128 v[{PA+4*st}:{PA+4*st+3}], v14 offset:{64*st}")
        e("s_lshl_b32 s46, s46, 1\nv_and_b32 v1, 1, v3\nv_mul_u32_u24 v9, s46, v1\nv_lshrrev_b32 v1, 5, v0")
        e("v_lshl_add_u32 v9, v1, 6, v9\nv_lshl_add_u32 v9, v4, 2, v9")
        e(f"s_mul_i32 s58, s54, s46\ns_lshl_b32 s58, s58, 1\ns_lshl_b32 s60, s55, 8\ns_add_u32 s58, s58, s60")
        e(f"s_mov_b32 s60, {WS_MOD}\ns_cmp_ge_u32 s2, 128\ns_cselect_b32 s60, {WS_Q}, s60\ns_add_u32 s58, s58, s60")
        for st in range(7):
            e(f"s_waitcnt lgkmcnt({6-st})")
            for u in range(4):
                d, b = PD + 4 * u, PB + 16 * st + 4 * u
                c = "0" if st == 0 else f"v[{d}:{d+3}]"
                e(f"v_mfma_f32_16x16x32_bf16 v[{d}:{d+3}], v[{PA+4*st}:{PA+4*st+3}], v[{b}:{b+3}], {c}")
        e("s_nop 7")
        for v in range(2):
            e(f"v_mov_b32_dpp v{PD+8*v}, v{PD+8*v+4} quad_perm:[0,1,2,3] row_mask:0xc bank_mask:0xf")
        for v in range(2):
            e(f"v_and_or_b32 v{PD+8*v}, v{PD+8*v}, -8, v{vT3}")
            e(f"buffer_store_dword v{PD+8*v}, v9, s[32:35], s58 offen offset:{128*v} sc1")
        self.stamp(4)
        e("L_getq:")
        e(f"v_lshlrev_b32 v9, 4, v0\ns_lshl_b32 s58, s49, 10\ns_add_u32 s58, s58, {WS_Q}\ns_add_u32 s59, s58, 0x8000")
        self.gather([(4, PRAW, PCL, 9, "s58", 0), (4, PRAW + 4, PCL + 4, 9, "s59", 0)], vT3, 7, "-1",
                    sleep=self.qsleep)
        for k in range(4):
            e(f"v_add_f32 v{PCL+k}, v{PCL+k}, v{PCL+4+k}")
        e(f"v_cvt_pk_bf16_f32 v16, v{PCL}, v{PCL+1}\nv_cvt_pk_bf16_f32 v17, v{PCL+2}, v{PCL+3}")
        e(f"v_lshl_add_u32 v1, v0, 3, v{vM}\nds_write_b64 v1, v[16:17] offset:{QV-MISC}")
        e(f"v_mov_b32 v18, 1\nv_mov_b32 v19, s56\nds_write_b64 v{vM}, v[18:19] offset:{QRDY-MISC}")
        self.stamp(5)

        e("L_bg:")
        e(f"s_lshl_b32 s57, s30, 11\ns_add_u32 s57, s57, {STG}\ns_add_u32 s59, s57, 1024")
        e(f"s_lshl_b32 s60, s30, 5\ns_add_u32 s60, s60, {STG}\nv_add_u32 v8, s60, v8\ns_mov_b32 s44, 0\ns_mov_b32 s45, 0")
        e("s_cmp_eq_u32 s48, 7\ns_cbranch_scc1 L_bgdone")
        self.srd(36, 12, 4096 * 896)
        e(f"s_and_b32 s58, s49, 15\ns_mul_i32 s58, s58, {256*896}\ns_lshl_b32 s60, s48, 7\ns_add_u32 s58, s58, s60")
        if self.bgst:
            self.stamp(1)
        self.unit_load(WO, 4, 36, 896, 64 * 896, vM)
        if self.bgst:
            self.stamp(2)
        e("s_lshr_b32 s60, s49, 3\ns_cmp_lg_u32 s60, 1\ns_cbranch_scc1 L_bgdone")
        e("s_bfe_u32 s54, s49, 0x10002\ns_and_b32 s55, s49, 3\ns_lshl_b32 s60, s48, 2\ns_add_u32 s55, s55, s60")
        self.srd(36, 16, 448 * 3584)
        e("s_lshl_b32 s58, s55, 7")
        self.unit_load(W1, 7, 36, 3584, 64 * 3584, vM)
        if self.bgst:
            self.stamp(3)
        self.srd(36, 18, 1792 * 896)
        e(f"s_mul_i32 s58, s55, {64*896}")
        self.unit_load(W2, 7, 36, 896, 128, vM)
        if self.bgst:
            self.stamp(4)
        e("v_and_b32 v1, 31, v0\nv_lshlrev_b32 v13, 2, v1\nv_lshrrev_b32 v1, 5, v0\nv_lshl_add_u32 v13, v1, 1, v13")
        e("s_mul_i32 s60, s30, 112\nv_add_u32 v13, s60, v13")
        self.srd(36, 4, 1792)
        e(f"v_lshlrev_b32 v14, 1, v13\ns_mul_i32 s58, s54, 896\nbuffer_load_dword v{XP}, v14, s[36:39], s58 offen")
        e(f"s_mul_i32 s58, s54, {2688*4}\ns_add_u32 s58, s58, {WS_MOD+896*4}\ns_add_u32 s59, s58, {2*2688*4}\nv_lshlrev_b32 v9, 2, v13")
        self.gather([(2, RAW, GA, 9, "s58", 0), (2, RAW + 2, 16, 9, "s59", 0)], vT3, 7, HM, sleep=8)
        self.sum_round(GA, 16, 2, [18])
        e(f"v_and_b32 v{XP+1}, 0xffff0000, v{XP}\nv_lshlrev_b32 v{XP}, 16, v{XP}")
        e("v_lshlrev_b32 v9, 1, v5")
        loads = []
        for p in range(2):
            for m, dst in enumerate((SB, OCB)):
                for hf in range(2):
                    k = (p * 2 + m) * 2 + hf
                    cl = dst + 4 * hf if p == 0 else AD + 8 * (1 - m) + 4 * hf
                    loads.append((4, RAW + 4 * k, cl, 9, f"s{58+p}", (m + 1) * 448 * 4 + hf * 16))
        self.gather(loads, vT3, 7, LM, sleep=8, pairs=True)
        self.sum_round(OCB, AD, 16, list(range(16, 24)))
        e(f"s_lshl_b32 s60, s55, 6\ns_add_u32 s58, s58, s60\ns_add_u32 s58, s58, {1344*4}\ns_add_u32 s59, s58, {2*2688*4}")
        e("v_lshlrev_b32 v9, 2, v4")
        self.gather([(1, RAW, GB, 9, "s58", 0), (1, RAW + 1, 16, 9, "s59", 0)], vT3, 7, "-1", sleep=8)
        self.sum_round(GB, 16, 1, None)
        for k in range(8):
            e(f"v_add_f32 v{OCB+k}, 1.0, v{OCB+k}")
        self.rbf_pairs(list(range(OCB, OCB + 8)), list(range(16, 20)))
        e(f"s_lshl_b32 s60, s30, 10\ns_add_u32 s60, s60, {GX}\nv_lshl_add_u32 v13, v0, 4, s60\nds_write_b128 v13, v[{GA}:{GA+3}]")
        e(f"v_lshlrev_b32 v13, 2, v0\nv_add_u32 v13, {GBL}, v13\nds_write_b32 v13, v{GB}\ns_waitcnt lgkmcnt(0)")
        self.soft_barrier(vM)
        e("L_bgdone:")
        if self.stamps:
            e("s_cmp_eq_u32 s30, 0\ns_cbranch_scc1 L_st0")
            self.stamp(0)
            e("L_st0:")
        if self.warm:
            e("s_cmp_lg_u32 s30, 1\ns_cbranch_scc1 L_warmed\ns_mov_b32 s60, 2\nL_warm:\ns_mov_b64 exec, 0\ns_branch L_pad0")
            e("L_padret:\ns_mov_b64 exec, -1\ns_sub_u32 s60, s60, 1\ns_cmp_lg_u32 s60, 0\ns_cbranch_scc1 L_warm\nL_warmed:")
        e("s_cmp_lg_u32 s30, 0\ns_cbranch_scc1 L_tail0")

        top, go = self.lab("ml"), self.lab("mlgo")
        e(f"{top}:")
        for i in range(3):
            e(f"ds_read_b128 v[{16+4*i}:{19+4*i}], v{vM} offset:{ML-MISC+16*i}")
        e("s_waitcnt lgkmcnt(0)\nv_min3_u32 v1, v18, v22, v26\ns_nop 0\nv_readfirstlane_b32 s60, v1")
        e(f"s_cmp_lg_u32 s60, 0\ns_cbranch_scc1 {go}")
        self.budget()
        e(f"s_sleep 32\ns_branch {top}\n{go}:")
        e(f"s_mov_b32 s61, {hex(C2)}\nv_max3_f32 v28, v16, v20, v24")
        for i in range(3):
            e(f"v_sub_f32 v{18+4*i}, v{16+4*i}, v28\nv_mul_f32 v{18+4*i}, s61, v{18+4*i}\nv_exp_f32 v{18+4*i}, v{18+4*i}")
        e("s_nop 0\nv_mul_f32 v29, v17, v18\nv_fmac_f32 v29, v21, v22\nv_fmac_f32 v29, v25, v26")
        e(f"v_or_b32 v{RAW}, v28, v{vT16}\nv_and_b32 v1, 0xffff0000, v29\nv_or_b32 v{RAW+1}, v1, v{vT16}")
        e(f"v_lshlrev_b32 v1, 16, v29\nv_or_b32 v{RAW+2}, v1, v{vT16}\nv_mov_b32 v{RAW+3}, v{vT16}")
        e(f"s_lshl_b32 s58, s49, 8\ns_add_u32 s58, s58, {WS_ML}\ns_lshl_b32 s60, s48, 4\nv_mov_b32 v1, s60")
        e(f"s_mov_b64 exec, 1\nbuffer_store_dwordx4 v[{RAW}:{RAW+3}], v1, s[32:35], s58 offen sc1\ns_mov_b64 exec, -1")
        e("s_mov_b32 s47, 0")
        self.lds_wait(vM, FULL - MISC, 47, 640, 32)
        e("v_and_b32 v9, 7, v0\nv_lshlrev_b32 v9, 4, v9")
        self.gather([(4, RAW + 4, RAW + 8, 9, "s58", 0)], vT16, "WORD_0", "-1", sleep=16)
        m, l = RAW + 8, RAW + 9
        e(f"v_lshrrev_b32 v{l+1}, 16, v{l+1}\nv_or_b32 v{l}, v{l}, v{l+1}\nv_mov_b32 v28, v{m}")
        oct_steps = ["quad_perm:[1,0,3,2]", "quad_perm:[2,3,0,1]", "row_half_mirror"]
        for st in oct_steps:
            e(f"s_nop 1\nv_max_f32_dpp v28, v28, v28 {st} {DPPF}")
        e(f"v_sub_f32 v{m}, v{m}, v28\nv_mul_f32 v{m}, s61, v{m}\nv_exp_f32 v{m}, v{m}\ns_nop 0\nv_mul_f32 v29, v{m}, v{l}")
        for st in oct_steps:
            e(f"s_nop 1\nv_add_f32_dpp v29, v29, v29 {st} {DPPF}")
        e("v_rcp_f32 v29, v29")
        for i in range(3):
            e(f"v_sub_f32 v{F+i}, v{16+4*i}, v28\nv_mul_f32 v{F+i}, s61, v{F+i}\nv_exp_f32 v{F+i}, v{F+i}\ns_nop 0")
            e(f"v_mul_f32 v{F+i}, v{F+i}, v29")
        e(f"v_mov_b32 v{F+3}, 1\nds_write_b128 v{vM}, v[{F}:{F+3}] offset:{FS-MISC}")
        e("L_tail0:\ns_cmp_eq_u32 s48, 7\ns_cbranch_scc1 L_fin")

        def stamp_s(k):
            if self.stamps and not self.bgst:
                e(f"s_cmp_eq_u32 s30, 0\ns_cbranch_scc1 L_st{k}")
                self.stamp(k)
                e(f"L_st{k}:")

        e(f"s_lshl_b32 s58, s49, 13\ns_lshl_b32 s60, s30, 8\ns_add_u32 s58, s58, s60\ns_add_u32 s58, s58, {WS_OP}")
        e("s_add_u32 s59, s58, 4096\nv_lshlrev_b32 v9, 2, v0")
        e(f"s_lshl_b32 s60, s30, 7\ns_add_u32 s60, s60, {QV}\nv_lshl_add_u32 v14, v0, 1, s60")
        e(f"v_lshl_add_u32 v15, v3, 4, v{vM}\nv_add_u32 v13, v5, v{vM}")
        e(f"s_mul_i32 s40, s49, {448*4}\ns_lshl_b32 s60, s48, 8\ns_add_u32 s40, s40, s60")
        e(f"s_lshl_b32 s60, s30, 6\ns_add_u32 s40, s40, s60\ns_add_u32 s40, s40, {WS_Y}")
        vYM, vYT = 253, 254
        e(f"v_and_b32 v1, 3, v0\nv_cmp_eq_u32 vcc, 0, v1\nv_mov_b32 v1, 0xffffff00\ns_mov_b32 s43, 0xffffff00")
        e(f"v_cndmask_b32 v{vYM}, -1, v1, vcc\nv_cndmask_b32 v{vYT}, 0, v{vT8}, vcc")
        e(f"s_lshl_b32 s60, s30, 5\ns_add_u32 s60, s60, {RED}\nv_lshl_add_u32 v30, v4, 1, s60")
        ZB = 1792 << self.zpad
        e(f"s_mul_i32 s41, s54, {28*ZB}\ns_mul_i32 s60, s30, {ZB}\ns_add_u32 s41, s41, s60")
        e(f"s_lshl_b32 s60, s55, {6+self.zpad}\ns_add_u32 s41, s41, s60\ns_add_u32 s41, s41, {WS_Z}\ns_add_u32 s42, s41, {16*ZB}")
        e(f"v_mul_u32_u24 v31, {4*ZB}, v3\nv_lshl_add_u32 v31, v4, 2, v31")
        for k in range(4):
            e(f"v_mov_b32 v{248+k}, 0")
        ol = [(1, 20 + k, 9, f"s{58+(k>>2)}", (k & 3) * 1024) for k in range(8)]
        e("s_lshr_b32 s46, s49, 3\ns_mov_b32 s47, 0")
        self.lds_wait(vM, FULL - MISC, 47, self.pstart - 40, 64)
        self.lds_wait(vM, FULL - MISC, 47, self.pstart, 3)
        e("s_setprio 2")
        self.L.append("@WARM_BEGIN")

        self.gather8(ol, vT8, "-1")
        e("v_pk_add_f32 v[20:21], v[20:21], v[22:23]\nv_pk_add_f32 v[24:25], v[24:25], v[26:27]")
        e("v_pk_add_f32 v[20:21], v[20:21], v[24:25]\nv_add_f32 v20, v20, v21")
        e("v_cvt_pk_bf16_f32 v20, v20, v20\nds_write_b16 v14, v20")
        stamp_s(1)
        e("s_waitcnt lgkmcnt(0)\ns_barrier")
        self.unit_mfma_lds(WO, RAW, 15, 8, DD, QV - MISC)
        e(f"v_and_or_b32 v{DD}, v{DD}, v{vYM}, v{vYT}")
        e(f"s_mov_b64 exec, 0xffff\nbuffer_store_dword v{DD}, v9, s[32:35], s40 offen sc1")
        stamp_s(2)
        e(f"s_cmp_lg_u32 s46, 1\ns_cbranch_scc1 L_fin\ns_mov_b64 exec, {LM}\ns_barrier")

        e(f"ds_read_b128 v[248:251], v13 offset:{AIM-MISC}\ns_mov_b64 exec, -1")
        stamp_s(3)
        e("s_waitcnt lgkmcnt(0)")
        X = list(range(WO, WO + 8))
        self.unpack([248, 249, 250, 251], X)
        self.layernorm(X, list(range(16, 22)))
        self.modulate(X, list(range(OCB, OCB + 8)), list(range(SB, SB + 8)), [248, 249, 250, 251], list(range(16, 20)))
        self.unit_mfma_dpp(W1, 248, AD, DD)
        self.rbf1(DD)
        self.silu([DD], [16])
        e(f"v_cvt_pk_bf16_f32 v{DD}, v{DD}, v{DD}\nds_write_b16 v30, v{DD}\ns_waitcnt lgkmcnt(0)\ns_barrier")
        e(f"ds_read_b128 v[{AD}:{AD+3}], v15 offset:{RED-MISC}\nds_read_b128 v[{AD+4}:{AD+7}], v15 offset:{RED-MISC+64}")
        stamp_s(4)
        for st in range(2):
            e(f"s_waitcnt lgkmcnt({1-st})")
            for rho in range(7):
                d, b = RAW + 4 * rho, W2 + 8 * rho + 4 * st
                c = "0" if st == 0 else f"v[{d}:{d+3}]"
                e(f"v_mfma_f32_16x16x32_bf16 v[{d}:{d+3}], v[{AD+4*st}:{AD+4*st+3}], v[{b}:{b+3}], {c}")
        e("s_nop 4")
        for g in (1, 2, 3):
            e(f"v_mov_b32_dpp v{RAW}, v{RAW+4*g} quad_perm:[0,1,2,3] row_mask:{hex(1<<g)} bank_mask:0xf\ns_nop 1")
        e(f"v_and_or_b32 v{RAW}, v{RAW}, s43, v{vT8}")
        e(f"v_mov_b32_dpp v{RAW+16}, v{RAW+20} quad_perm:[0,1,2,3] row_mask:0x2 bank_mask:0xf")
        e(f"buffer_store_dword v{RAW}, v31, s[32:35], s41 offen sc1\ns_nop 0")
        e(f"v_mov_b32_dpp v{RAW+16}, v{RAW+24} quad_perm:[0,1,2,3] row_mask:0x4 bank_mask:0xf")
        e(f"v_and_or_b32 v{RAW+16}, v{RAW+16}, s43, v{vT8}\ns_mov_b32 exec_hi, 0xffff")
        e(f"buffer_store_dword v{RAW+16}, v31, s[32:35], s42 offen sc1")
        stamp_s(5)
        e("s_branch L_fin")

    def gtail(self):
        e = self.e
        vM, vT8, GA, XP, GB, R = 12, 10, 4, 6, 8, 32
        HM = "s[52:53]"
        e("L_gtail:\ns_and_b32 s48, s2, 7\ns_cmp_eq_u32 s48, 7\ns_cbranch_scc1 L_fin")
        e("s_lshr_b32 s60, s2, 6\ns_cmp_lg_u32 s60, 1\ns_cbranch_scc1 L_fin")
        e(f"s_setprio 0\nv_mov_b32 v{vM}, {MISC}\nv_mov_b32 v2, 0\ns_mov_b32 s47, 0\ns_mov_b32 s31, 0x80000")
        self.srd(32, 28, WS_SIZE)
        e("s_mov_b32 s52, 0x0fffffff\ns_mov_b32 s53, 0x0fffffff")
        e("s_bfe_u32 s54, s2, 0x10005\ns_bfe_u32 s55, s2, 0x20003\ns_lshl_b32 s60, s48, 2\ns_add_u32 s55, s55, s60")
        e(f"s_mul_i32 s40, s54, {16*448*4}\ns_add_u32 s40, s40, {WS_Y}")
        for k in range(1, 4):
            e(f"s_add_u32 s{40+k}, s40, {k*2*448*4}")
        e("v_and_b32 v1, 31, v0\nv_lshrrev_b32 v3, 5, v0\ns_mul_i32 s60, s3, 448\nv_lshl_add_u32 v9, v1, 4, s60")
        e(f"v_lshrrev_b32 v14, 1, v9\nv_lshl_add_u32 v14, v3, 2, v14\nv_add_u32 v14, {AIM}, v14")
        e(f"v_mul_u32_u24 v3, {8*448*4}, v3\nv_add_u32 v9, v9, v3")
        yl = [(4, R + 4 * k, 9, f"s{40+(k>>1)}", (k & 1) * 448 * 4) for k in range(8)]
        zl = [(1, 20 + k, 13, "s58", (256 << self.zpad) * k) for k in range(7)]
        self.lds_wait(vM, FS + 12 - MISC, 47, 1, 2)
        e(f"ds_read_b32 v11, v{vM} offset:{TAG-MISC}")
        e(f"s_lshl_b32 s60, s3, 10\ns_add_u32 s60, s60, {GX}\nv_lshl_add_u32 v1, v0, 4, s60\nds_read_b128 v[{GA}:{GA+3}], v1")
        e(f"v_lshlrev_b32 v13, 2, v0\nv_add_u32 v1, {GBL}, v13\nds_read_b32 v{GB}, v1")
        if self.zpad:
            e("v_and_b32 v1, 48, v0\nv_lshl_add_u32 v13, v1, 2, v13")
        e(f"s_waitcnt lgkmcnt(0)\nv_and_b32 v{vT8}, 0xff, v11")
        e(f"s_mov_b64 exec, {HM}")
        for ld in yl if self.prewarm else []:
            self.issue(ld)
        e("s_barrier")
        self.gather8(yl, vT8, HM)
        if self.stamps and not self.prog:
            e("s_cmp_lg_u32 s3, 0\ns_cbranch_scc1 L_sg3")
            self.stamp(3)
            e("L_sg3:")
        for st in (16, 8, 4):
            for k in range(0, st, 2):
                e(f"v_pk_add_f32 v[{R+k}:{R+k+1}], v[{R+k}:{R+k+1}], v[{R+st+k}:{R+st+k+1}]")
        e(f"s_nop 1\nv_permlane32_swap_b32 v{R}, v{R+2}\nv_permlane32_swap_b32 v{R+1}, v{R+3}")
        e(f"v_pk_add_f32 v[{R}:{R+1}], v[{R}:{R+1}], v[{R+2}:{R+3}]")
        self.rbf_pairs([R, R + 1], [16])
        e(f"v_pk_mul_f32 v[{R}:{R+1}], v[{R}:{R+1}], v[{GA}:{GA+1}]")
        self.rbf_pairs([R, R + 1], [16])
        e(f"v_pk_add_f32 v[{R}:{R+1}], v[{R}:{R+1}], v[{XP}:{XP+1}]")
        e(f"v_cvt_pk_bf16_f32 v16, v{R}, v{R+1}")
        e(f"s_mov_b64 exec, {HM}\nds_write_b32 v14, v16\ns_waitcnt lgkmcnt(0)\ns_barrier")
        e("s_cmp_lg_u32 s3, 0\ns_cbranch_scc1 L_fin\ns_mov_b64 exec, -1")
        e(f"s_mul_i32 s58, s54, 28\ns_add_u32 s58, s58, s55\ns_mul_i32 s58, s58, {1792 << self.zpad}\ns_add_u32 s58, s58, {WS_Z}")
        for ld in zl if self.prewarm else []:
            self.issue(ld)
        e(f"s_lshl_b32 s60, s55, 5\ns_add_u32 s41, s60, {AIM}\nv_and_b32 v1, 15, v0\nv_lshl_add_u32 v1, v1, 1, s41\nds_read_u16 v31, v1")
        self.srd(36, 24, 1792)
        e("s_mul_i32 s41, s54, 896\ns_add_u32 s41, s41, s60\nv_lshlrev_b32 v14, 1, v0")
        e("s_waitcnt lgkmcnt(0)\nv_lshlrev_b32 v31, 16, v31\ns_barrier")
        self.gather8(zl, vT8, "-1")
        if not self.prog:
            self.stamp(4)
        e("v_pk_add_f32 v[20:21], v[20:21], v[22:23]\nv_add_f32 v24, v24, v26")
        e("v_pk_add_f32 v[20:21], v[20:21], v[24:25]\nv_add_f32 v16, v20, v21")
        for sw in ("v_permlane16_swap_b32", "v_permlane32_swap_b32"):
            e(f"v_mov_b32 v17, v16\ns_nop 1\n{sw} v16, v17\nv_add_f32 v16, v16, v17")
        self.rbf1(16)
        e(f"v_mul_f32 v16, v16, v{GB}")
        self.rbf1(16)
        e("v_add_f32 v16, v16, v31\nv_cvt_pk_bf16_f32 v16, v16, v16")
        e("s_mov_b64 exec, 0xffff\nbuffer_store_short v16, v14, s[36:39], s41 offen")
        if not self.prog:
            self.stamp(5)
        e("s_cmp_lg_u32 s2, 64\ns_cbranch_scc1 L_fin")
        e("s_mov_b64 exec, 1\nbuffer_store_dword v11, v2, s[32:35], 0 offen sc1")
        self.L.append("@WARM_END")
        e("L_fin:")
        self.end()

    def build(self, header):
        e = self.e
        K = NAME + "_kernel"
        self.L.append(header.rstrip("\n"))
        self.L.append(f"; @launch grid=(256,1,1) block=(512,1,1) lds={LDS_BYTES}")
        self.L.append('.amdgcn_target "amdgcn-amd-amdhsa--gfx950"\n.text')
        self.L.append(f".globl {K}\n.p2align 8\n.type {K},@function\n{K}:")
        e("s_cmp_ge_u32 s2, 256\ns_cbranch_scc1 L_end")
        e("s_load_dwordx16 s[4:19], s[0:1], 0\ns_load_dwordx8 s[20:27], s[0:1], 64\ns_load_dwordx2 s[28:29], s[0:1], 96")
        e("v_lshrrev_b32 v1, 6, v0\nv_and_b32 v0, 63, v0\nv_readfirstlane_b32 s3, v1")
        self.stamp_init()
        e("s_cmp_ge_u32 s3, 4\ns_cbranch_scc1 L_service\ns_cmp_lg_u32 s3, 0\ns_cbranch_scc1 L_consumer")
        self.loader()
        e("L_end:\ns_endpgm")
        self.consumer()
        self.service()
        self.gtail()
        e("L_last:")
        self.L.append(f""".section .rodata,"a"
.p2align 6
.amdhsa_kernel {K}
  .amdhsa_next_free_vgpr 256
  .amdhsa_next_free_sgpr 102
  .amdhsa_accum_offset 256
  .amdhsa_group_segment_fixed_size 0
  .amdhsa_kernarg_size 104
  .amdhsa_user_sgpr_count 2
  .amdhsa_user_sgpr_kernarg_segment_ptr 1
  .amdhsa_system_sgpr_workgroup_id_x 1
  .amdhsa_float_denorm_mode_32 3
.end_amdhsa_kernel""")
        return "\n".join(self.place_pads()) + "\n"

    def place_pads(self):
        out, inside, count, npad = [], False, 0, 0
        def pad(op):
            nonlocal npad, count
            out.append(f"L_pad{npad}:\n    {op} @PAD{npad+1}@")
            npad += 1
            count = 0
        for line in self.L:
            if line == "@WARM_BEGIN":
                inside = bool(self.warm)
                if inside:
                    pad("s_cbranch_execz")
                continue
            if line == "@WARM_END":
                inside = False
                continue
            out.append(line)
            if inside and line.startswith("    "):
                count += 1
                if line.strip().startswith("s_branch "):
                    pad("s_branch")
                elif count >= self.warm:
                    pad("s_cbranch_execz")
        text = "\n".join(out)
        for k in range(1, npad + 1):
            text = text.replace(f"@PAD{k}@", f"L_pad{k}" if k < npad else "L_padret")
        return text.split("\n")


HEADER = """; Fused adaLN-conditioned block: cached multi-head attention (decode) + SiLU MLP, gfx950.
"""


def generate(**kw):
    return Gen(**kw).build(HEADER)


if __name__ == "__main__":
    import json
    kw = json.loads(sys.argv[2]) if len(sys.argv) > 2 else {}
    open(sys.argv[1], "w").write(generate(**kw))
```

```python
import struct
import sys

NAME = "adaLN_cond__mha_block_cached__dense_activation_silu__decode"

WS_EPOCH, WS_MOD, WS_Q, WS_OP, WS_Y, WS_ML, WS_Z, WS_CTR, WS_SIZE = (
    0, 0x1000, 0x10000, 0x20000, 0x60000, 0x6E000, 0x70000, 0xB0000, 0x180000)
WS_STAMP = 0x180000
RING, NSLOT = 0, 16
SC, SC_STRIDE = 131072, 6144
STG = 149504
PST = 131072
MISC = 159744
FULL, FREE, QRDY, TAG, BAR, ML, QV, AIM, RED = (MISC, MISC + 256, MISC + 272, MISC + 276, MISC + 280,
                                                MISC + 288, MISC + 512, MISC + 1024, MISC + 2816)
FS, PF = MISC + 336, MISC + 352
GX, GBL = STG, STG + 4096
LDS_BYTES = 163840


STAMPS = [("ld start", 0, 0), ("S0 start", 4, 0), ("S0 weights landed", 4, 1), ("S0 frags read", 4, 2),
          ("S0 mod gathered", 4, 3), ("S0 unit pub", 4, 4), ("S0 q ready", 4, 5), ("C prepull done", 1, 0),
          ("C q seen", 1, 1), ("bg done", 5, 0), ("ld K issued", 0, 1), ("C K done", 1, 2), ("C softmax done", 1, 3),
          ("ld done", 0, 2), ("opart pub", 1, 4), ("o gathered", 5, 1), ("y pub", 5, 2), ("y gathered", 0, 3),
          ("x1 barrier", 5, 3), ("hid barrier", 5, 4), ("z pub", 5, 5), ("z gathered", 0, 4), ("end", 0, 5)]
END_STAMP = (0, 5)


def f2u(x):
    return struct.unpack("<I", struct.pack("<f", x))[0]


LOG2E = 1.4426950408889634
C2 = f2u(LOG2E / 16.0)
DPPF = "row_mask:0xf bank_mask:0xf"


class Gen:
    def __init__(self, D=20, lev=(18, 20, 22, 24), nsh=4, cst=256, cstart=64, atpos=16, wpol="nt", kvpol="nt",
                 prepull=5, qsleep=0, warm=0, pstart=1016, zpad=0, prewarm=2, vtouch=0, stamps=False, prog=None, bgst=0, l2warm=0, G=2, lev0=None, pi=None, xl=2, xm=1, fast=1, eb=8, mpol="", sh0=3, rot=0, qloc=1, qat=44, mat=21, msleep=0, xf=7, xg=0, ymerge=0, ystage=1):
        self.L = []
        self.n = 0
        self.D, self.lev, self.nsh, self.cst, self.cstart, self.atpos = D, list(lev), nsh, cst, cstart, atpos
        self.period = 32
        self.ymerge, self.ystage = ymerge, ystage
        self.xf, self.xg = xf, xg
        self.qat, self.mat, self.msleep = qat, mat, msleep
        self.qloc = qloc
        self.sh0, self.rot = sh0, rot
        self.xl, self.xm, self.fast, self.eb = xl, xm, fast, eb
        self.mpol = wpol if mpol is None else mpol
        assert xl or not (xm or fast)
        self.pi = pi
        self.G, self.lev0 = G, lev0
        self.l2warm = l2warm
        assert cstart >= 64 and cstart % 32 == 0 and atpos % 8 == 0
        self.wpol, self.kvpol = wpol, kvpol
        self.prepull, self.qsleep, self.warm = prepull, qsleep, warm
        self.pstart, self.zpad, self.prewarm, self.vtouch = pstart, zpad, prewarm, vtouch
        self.stamps, self.prog, self.bgst = stamps, prog, bgst

    def e(self, s):
        for line in s.split("\n"):
            line = line.strip()
            if not line:
                continue
            self.L.append(line if line.endswith(":") or line.startswith(";") else "    " + line)

    def lab(self, p):
        self.n += 1
        return f"L_{p}_{self.n}"

    def srd(self, d, base, size):
        self.e(f"s_mov_b32 s{d}, s{base}\ns_mov_b32 s{d+1}, s{base+1}\n"
               f"s_mov_b32 s{d+2}, {size}\ns_mov_b32 s{d+3}, 0x20000")

    def stamp(self, k):
        if self.stamps:
            self.e(f"s_memrealtime s[{84+2*k}:{85+2*k}]")

    def stamp_init(self):
        if self.stamps:
            for k in range(8):
                self.e(f"s_mov_b64 s[{84+2*k}:{85+2*k}], 0")

    def stamp_flush(self):
        if self.stamps:
            self.e("s_mov_b64 exec, -1\ns_waitcnt lgkmcnt(0)")
            self.srd(80, 28, WS_STAMP + 0x20000)
            for k in range(8):
                self.e(f"v_mov_b32 v{8+k}, s{84+2*k}")
            self.e(f"s_lshl_b32 s30, s2, 3\ns_add_u32 s30, s30, s3\ns_lshl_b32 s30, s30, 5\n"
                   f"s_add_u32 s30, s30, {WS_STAMP}\nv_mov_b32 v1, s30\ns_mov_b64 exec, 1\n"
                   "buffer_store_dwordx4 v[8:11], v1, s[80:83], 0 offen\n"
                   "buffer_store_dwordx4 v[12:15], v1, s[80:83], 0 offen offset:16")

    def end(self):
        self.stamp_flush()
        self.e("s_endpgm")

    def budget(self):
        self.e("s_sub_u32 s31, s31, 1\ns_cbranch_scc1 L_end")

    def wave_reduce(self, op, regs, nsteps=6):
        steps = ["quad_perm:[1,0,3,2] " + DPPF, "quad_perm:[2,3,0,1] " + DPPF, "row_half_mirror " + DPPF,
                 "row_mirror " + DPPF, "row_bcast:15 row_mask:0xa bank_mask:0xf",
                 "row_bcast:31 row_mask:0xc bank_mask:0xf"]
        for st in steps[:nsteps]:
            pad = 3 - len(regs) if st is not steps[0] else 2
            if pad > 0:
                self.e(f"s_nop {pad-1}")
            for r in regs:
                self.e(f"{op}_dpp v{r}, v{r}, v{r} {st}")
        self.e("s_nop 0")

    def rbf_pairs(self, regs, tmp):
        for k in range(0, len(regs), 2):
            self.e(f"v_cvt_pk_bf16_f32 v{tmp[k//2]}, v{regs[k]}, v{regs[k+1]}")
        self.unpack(tmp[:len(regs)//2], regs)

    def unpack(self, packed, regs):
        for k, p in enumerate(packed):
            self.e(f"v_lshlrev_b32 v{regs[2*k]}, 16, v{p}\nv_and_b32 v{regs[2*k+1]}, 0xffff0000, v{p}")

    def rbf1(self, r):
        self.e(f"v_cvt_pk_bf16_f32 v{r}, v{r}, v{r}\nv_and_b32 v{r}, 0xffff0000, v{r}")

    def silu(self, regs, tmp):
        for r, t in zip(regs, tmp):
            self.e(f"v_mul_f32 v{t}, {hex(f2u(-LOG2E))}, v{r}")
        for t in tmp[:len(regs)]:
            self.e(f"v_exp_f32 v{t}, v{t}")
        self.e("s_nop 0")
        for t in tmp[:len(regs)]:
            self.e(f"v_add_f32 v{t}, 1.0, v{t}")
        for t in tmp[:len(regs)]:
            self.e(f"v_rcp_f32 v{t}, v{t}")
        self.e("s_nop 0")
        for r, t in zip(regs, tmp):
            self.e(f"v_mul_f32 v{r}, v{r}, v{t}")

    def layernorm(self, X, t, extra=None):
        e = self.e
        S = X + (extra or [])
        e(f"v_add_f32 v{t[0]}, v{S[0]}, v{S[1]}\nv_mul_f32 v{t[1]}, v{S[0]}, v{S[0]}")
        e(f"v_fmac_f32 v{t[1]}, v{S[1]}, v{S[1]}")
        for r in S[2:]:
            e(f"v_add_f32 v{t[0]}, v{t[0]}, v{r}\nv_fmac_f32 v{t[1]}, v{r}, v{r}")
        if extra is None:
            self.wave_reduce("v_add_f32", [t[0], t[1]])
            e(f"v_readlane_b32 s60, v{t[0]}, 63\nv_readlane_b32 s61, v{t[1]}, 63")
            e(f"v_mov_b32 v{t[2]}, {hex(f2u(1.0/448))}")
            e(f"v_mul_f32 v{t[0]}, s60, v{t[2]}\nv_mul_f32 v{t[1]}, s61, v{t[2]}")
        else:
            self.wave_reduce("v_add_f32", [t[0], t[1]], nsteps=4)
            e(f"v_mov_b32 v{t[2]}, v{t[0]}\nv_mov_b32 v{t[3]}, v{t[1]}\ns_nop 1")
            e(f"v_permlane16_swap_b32 v{t[0]}, v{t[2]}\nv_permlane16_swap_b32 v{t[1]}, v{t[3]}")
            e(f"v_add_f32 v{t[0]}, v{t[0]}, v{t[2]}\nv_add_f32 v{t[1]}, v{t[1]}, v{t[3]}")
            e(f"v_mul_f32 v{t[0]}, {hex(f2u(1.0/448))}, v{t[0]}\nv_mul_f32 v{t[1]}, {hex(f2u(1.0/448))}, v{t[1]}")
        e(f"v_fma_f32 v{t[1]}, -v{t[0]}, v{t[0]}, v{t[1]}\nv_max_f32 v{t[1]}, 0, v{t[1]}")
        e(f"v_cvt_pk_bf16_f32 v{t[2]}, v{t[0]}, v{t[1]}")
        e(f"v_lshlrev_b32 v{t[0]}, 16, v{t[2]}\nv_and_b32 v{t[1]}, 0xffff0000, v{t[2]}")
        e(f"v_add_f32 v{t[1]}, {hex(f2u(1e-5))}, v{t[1]}")
        self.rbf1(t[1])
        e(f"v_sqrt_f32 v{t[1]}, v{t[1]}")
        for k in range(8):
            e(f"v_sub_f32 v{X[k]}, v{X[k]}, v{t[0]}")
        self.rbf1(t[1])
        e(f"v_rcp_f32 v{t[1]}, v{t[1]}")
        self.rbf_pairs(X, t[2:6])
        for k in range(8):
            e(f"v_mul_f32 v{X[k]}, v{X[k]}, v{t[1]}")
        self.rbf_pairs(X, t[2:6])

    def modulate(self, X, OC, SH, out, t):
        for k in range(8):
            self.e(f"v_mul_f32 v{X[k]}, v{X[k]}, v{OC[k]}")
        self.rbf_pairs(X, t)
        for k in range(8):
            self.e(f"v_add_f32 v{X[k]}, v{X[k]}, v{SH[k]}")
        for k in range(4):
            self.e(f"v_cvt_pk_bf16_f32 v{out[k]}, v{X[2*k]}, v{X[2*k+1]}")

    def gather(self, loads, vtag, sel, active, sleep=0, pairs=False):
        e = self.e
        top, done = self.lab("gat"), self.lab("gdone")
        for k in range(len(loads)):
            e(f"s_mov_b64 s[{64+2*k}:{65+2*k}], 1")
        e(f"s_mov_b64 exec, {active}\n{top}:")
        for k, (nd, raw, clean, va, so, imm) in enumerate(loads):
            sk = self.lab("gs")
            dst = f"v{raw}" if nd == 1 else f"v[{raw}:{raw+nd-1}]"
            suf = "" if nd == 1 else f"x{nd}"
            if len(loads) > 1:
                e(f"s_cmp_eq_u64 s[{64+2*k}:{65+2*k}], 0\ns_cbranch_scc1 {sk}")
            e(f"buffer_load_dword{suf} {dst}, v{va}, s[32:35], {so} offen offset:{imm} sc1")
            e(f"{sk}:")
        e("s_waitcnt vmcnt(0)")
        for k, (nd, raw, clean, va, so, imm) in enumerate(loads):
            for j in range(nd):
                e(f"v_xor_b32 v{clean+j}, v{raw+j}, v{vtag}")
            if nd == 1:
                chk = clean
            elif nd == 2:
                chk = 1
                e(f"v_or_b32 v1, v{clean}, v{clean+1}")
            else:
                chk = 1
                e(f"v_or3_b32 v1, v{clean}, v{clean+1}, v{clean+2}\nv_or_b32 v1, v1, v{clean+3}")
            if isinstance(sel, int):
                e(f"v_and_b32 v1, {sel}, v{chk}\nv_cmp_ne_u32 s[{64+2*k}:{65+2*k}], 0, v1")
            else:
                e(f"v_cmp_ne_u32_sdwa s[{64+2*k}:{65+2*k}], v{chk}, v2 src0_sel:{sel} src1_sel:DWORD")
        if pairs:
            for k in range(0, len(loads), 2):
                e(f"s_or_b64 s[{64+2*k}:{65+2*k}], s[{64+2*k}:{65+2*k}], s[{66+2*k}:{67+2*k}]")
                e(f"s_mov_b64 s[{66+2*k}:{67+2*k}], s[{64+2*k}:{65+2*k}]")
        e("s_or_b64 s[62:63], s[64:65], s[64:65]")
        for k in range(1, len(loads)):
            e(f"s_or_b64 s[62:63], s[62:63], s[{64+2*k}:{65+2*k}]")
        e(f"s_cbranch_scc0 {done}")
        self.budget()
        if sleep:
            e(f"s_sleep {sleep}")
        e(f"s_branch {top}\n{done}:\ns_mov_b64 exec, -1")

    def issue(self, ld):
        nd, raw, va, so, imm = ld
        dst = f"v{raw}" if nd == 1 else f"v[{raw}:{raw+nd-1}]"
        suf = "" if nd == 1 else f"x{nd}"
        self.e(f"buffer_load_dword{suf} {dst}, v{va}, s[32:35], {so} offen offset:{imm} sc1")

    def gather8(self, loads, vtag, active):
        e = self.e
        top, chk = self.lab("gat"), self.lab("gchk")
        if active != "-1":
            e(f"s_mov_b64 exec, {active}")
        for ld in loads:
            self.issue(ld)
        e(f"s_branch {chk}\n{top}:")
        self.budget()
        for k, ld in enumerate(loads):
            sk = self.lab("gs")
            e(f"s_cmp_eq_u64 s[{64+2*k}:{65+2*k}], 0\ns_cbranch_scc1 {sk}")
            self.issue(ld)
            e(f"{sk}:")
        e(f"{chk}:\ns_waitcnt vmcnt(0)")
        for k, ld in enumerate(loads):
            e(f"v_cmp_ne_u32_sdwa s[{64+2*k}:{65+2*k}], v{ld[1]}, v{vtag} src0_sel:BYTE_0 src1_sel:DWORD")
        e("s_or_b64 s[62:63], s[64:65], s[66:67]")
        for k in range(2, len(loads)):
            e(f"s_or_b64 s[62:63], s[62:63], s[{64+2*k}:{65+2*k}]")
        e(f"s_cbranch_scc1 {top}")
        if active != "-1":
            e("s_mov_b64 exec, -1")
        for ld in loads:
            e(f"v_xor_b32 v{ld[1]}, v{ld[1]}, v{vtag}")

    def lds_wait(self, vaddr, off, sreg, need, sleep):
        e = self.e
        top, go = self.lab("lw"), self.lab("lgo")
        e(f"s_cmp_ge_u32 s{sreg}, {need}\ns_cbranch_scc1 {go}\n{top}:")
        e(f"ds_read_b32 v1, v{vaddr} offset:{off}\ns_waitcnt lgkmcnt(0)\nv_readfirstlane_b32 s{sreg}, v1")
        e(f"s_cmp_ge_u32 s{sreg}, {need}\ns_cbranch_scc1 {go}")
        self.budget()
        e(f"s_sleep {sleep}\ns_branch {top}\n{go}:")

    def dma_step(self, vaddr, srd, lds_sreg_or_imm, pol):
        self.e(f"s_mov_b32 m0, {lds_sreg_or_imm}\ns_nop 0")
        self.e(f"buffer_load_dwordx4 v{vaddr}, s[{srd}:{srd+3}], s58 offen {pol} lds")

    def tr_reads(self, dst, vtr, off):
        self.e(f"ds_read_b64_tr_b16 v[{dst}:{dst+1}], v{vtr} offset:{off}")
        self.e(f"ds_read_b64_tr_b16 v[{dst+2}:{dst+3}], v{vtr} offset:{off+512}")

    def loader(self):
        e, D, lev = self.e, self.D, self.lev
        ng = D // 4
        AT = self.atpos

        def loads():
            for k in range(4):
                e(f"buffer_load_dwordx4 v1, s[32:35], s41 offen offset:{k*1024} {self.kvpol} lds")

        def limit():
            e(f"v_min3_u32 v5, v6, v7, v8\ns_nop 0\nv_readfirstlane_b32 s44, v5\ns_lshl_b32 s44, s44, 1\ns_add_u32 s44, s44, {2*NSLOT}")

        e("L_loader:\ns_setprio 3")
        e(f"v_lshlrev_b32 v1, 4, v0\nv_lshlrev_b32 v2, 2, v0\nv_add_u32 v2, {FULL}, v2\nv_mov_b32 v3, {FREE}")
        e("v_mov_b32 v6, 0\nv_mov_b32 v7, 0\nv_mov_b32 v8, 0\nv_mov_b32 v4, 1")
        e("s_lshl_b32 s30, s100, 21\ns_mov_b32 s31, 0x200000\ns_waitcnt lgkmcnt(0)")
        self.stamp(0)
        e("s_add_u32 s32, s6, s30\ns_addc_u32 s33, s7, 0\ns_mov_b32 s34, 0x200000\ns_mov_b32 s35, 0x20000")
        for n in range(ng):
            if n == self.eb:
                e("s_barrier")
            e(f"s_mov_b32 m0, {n*4096}\ns_mov_b32 s41, {n*4096}")
            loads()
        e(f"s_mov_b32 s40, {ng}\ns_mov_b32 s41, {ng*4096}\ns_mov_b32 s44, {2*NSLOT}\ns_mov_b32 s45, {lev.index(D) if self.lev0 is None else self.lev0}")
        e(f"s_lshr_b32 s49, s2, 3\ns_lshl_b32 s48, s49, 5\ns_or_b32 s49, s49, s48\ns_bfe_u32 s49, s49, {0x50000 + self.sh0}")
        e(f"s_mov_b32 s50, {WS_CTR}\ns_and_b32 s48, s49, {self.nsh-1}\ns_mul_i32 s48, s48, {self.cst}\ns_add_u32 s48, s48, s50")
        e("s_mov_b32 s52, 0")
        if self.eb >= ng:
            e("s_barrier")
        e("L_ld0:\ns_cmp_lt_u32 s40, s44\ns_cbranch_scc0 L_lds0\nL_ldb0:")
        e(f"s_and_b32 m0, s41, {NSLOT*8192-1}\ns_waitcnt vmcnt({D-4})")
        loads()
        e("ds_write_b32 v2, v4\ns_waitcnt lgkmcnt(1)\nv_min3_u32 v5, v6, v7, v8\nds_read_b96 v[6:8], v3")
        e(f"v_readfirstlane_b32 s44, v5\nv_add_u32 v4, 1, v4\ns_add_u32 s40, s40, 1\ns_add_u32 s41, s41, 4096")
        e(f"s_lshl_b32 s44, s44, 1\ns_add_u32 s44, s44, {2*NSLOT}")
        for k, n in enumerate(self.prog or []):
            e(f"s_cmp_eq_u32 s40, {n}\ns_cbranch_scc1 L_pq{k}\nL_pr{k}:")
        e(f"s_cmp_lt_u32 s40, {self.cstart}\ns_cbranch_scc1 L_ld0")
        depths = sorted(set(lev))
        e("L_lap:\ns_sub_u32 s51, s44, s40")
        for d in depths[:0:-1]:
            e(f"s_cmp_ge_u32 s45, {lev.index(d)}\ns_cbranch_scc1 L_lap{d}")
        stubs = []
        for dd in depths:
            d = dd % 100
            G = self.G
            pub = [m for m in range(0, 128, G) if (m - d + G) % 8 < G]
            e(f"L_lap{dd}:\ns_sub_u32 s43, s40, {-2*((pub[0] - d + G)//8)}\nv_mov_b32 v4, s43")
            for g in range(32):
                if g % 4 == 0:
                    e(f"s_cmp_lt_u32 s51, {g+4}\ns_cbranch_scc1 L_lx{dd}_{g}\nL_lr{dd}_{g}:")
                    stubs.append((dd, g))
                e(f"s_mov_b32 m0, {g*4096}")
                wrote = False
                for k in range(4):
                    if k % G == 0:
                        e(f"s_waitcnt vmcnt({d-G})")
                    e(f"buffer_load_dwordx4 v1, s[32:35], s41 offen offset:{k*1024} {self.kvpol} lds")
                    if k % G == G - 1 and 4 * g + k - G + 1 in pub:
                        e("ds_write_b32 v2, v4\nv_add_u32 v4, 2, v4")
                        wrote = True
                e("s_add_u32 s41, s41, 4096")
                fresh = g < AT or g >= 30
                if g % 8 == 6 and fresh:
                    e("ds_read_b96 v[6:8], v3")
                if g % 8 == 7 and fresh:
                    e(f"s_waitcnt lgkmcnt({1 if wrote and g != 31 else 0})")
                    limit()
                    if g != 31:
                        e("s_sub_u32 s51, s44, s40")
                if g == AT - 1:
                    e("s_mov_b32 s47, 1\ns_atomic_add s47, s[28:29], s48 glc")
            if dd != depths[-1]:
                e("s_branch L_lapend")
        sh = (256 // self.nsh // len(lev)).bit_length() - 1
        e("L_lapend:")
        if self.pi:
            kp, ki, lk, cen = self.pi
            e(f"s_sub_i32 s47, s47, {128//self.nsh}\ns_ashr_i32 s46, s52, {lk}\ns_sub_i32 s52, s52, s46\ns_add_i32 s52, s52, s47")
            e(f"s_mul_i32 s45, s47, {kp}\ns_mul_i32 s46, s52, {ki}\ns_add_i32 s45, s45, s46\ns_add_i32 s45, s45, {cen}")
            e("s_ashr_i32 s45, s45, 8\ns_max_i32 s45, s45, 0")
        else:
            e(f"s_lshr_b32 s45, s47, {sh}")
        if self.rot:
            e(f"s_lshl_b32 s48, s49, 5\ns_or_b32 s49, s49, s48\ns_bfe_u32 s49, s49, {0x50000 + self.rot}\ns_add_u32 s50, s50, {self.cst*self.nsh}")
            e(f"s_and_b32 s48, s49, {self.nsh-1}\ns_mul_i32 s48, s48, {self.cst}\ns_add_u32 s48, s48, s50\ns_add_u32 s40, s40, 32")
        else:
            e(f"s_add_u32 s48, s48, {self.cst*self.nsh}\ns_add_u32 s40, s40, 32")
        if self.stamps:
            e("s_add_u32 s96, s96, s45")
        for k, n in enumerate(self.prog or []):
            e(f"s_cmp_lg_u32 s40, {n}\ns_cbranch_scc1 L_pg{k}")
            self.stamp(3 + k)
            e(f"L_pg{k}:")
        e("s_cmp_lt_u32 s41, 0x200000\ns_cbranch_scc1 L_lap")
        e("s_cmp_lt_u32 s40, 1024\ns_cbranch_scc1 L_tov")
        e("v_subrev_u32 v4, 2, v4")
        for k in range((max(x % 100 for x in lev) + 3) // 4, -1, -1):
            if k % 2 == 0:
                e(f"v_max_u32 v4, {1024-k}, v4\ns_waitcnt vmcnt({4*k})\nds_write_b32 v2, v4")
        self.stamp(2)
        e("s_branch L_gtail")
        e("L_tov:\ns_add_u32 s32, s8, s30\ns_addc_u32 s33, s9, 0\ns_mov_b32 s41, 0")
        self.stamp(1)
        e("s_branch L_lap")
        e("L_lds0:\ns_sleep 1\nds_read_b96 v[6:8], v3\ns_waitcnt lgkmcnt(0)")
        limit()
        self.budget()
        if self.stamps:
            e("s_add_u32 s98, s98, 1")
        e("s_cmp_lt_u32 s40, s44\ns_cbranch_scc1 L_ldb0\ns_branch L_lds0")
        for k, n in enumerate(self.prog or []):
            e(f"L_pq{k}:")
            self.stamp(3 + k)
            e(f"s_branch L_pr{k}")
        for d, g in stubs:
            e(f"L_lx{d}_{g}:\ns_mov_b32 s46, {g+4}\ns_call_b64 s[60:61], L_room\ns_branch L_lr{d}_{g}")
        e("L_room:\nds_read_b96 v[6:8], v3\ns_waitcnt lgkmcnt(0)")
        limit()
        self.budget()
        if self.stamps:
            e("s_add_u32 s98, s98, 1")
        e("s_sub_u32 s51, s44, s40\ns_cmp_lt_u32 s51, s46\ns_cbranch_scc1 L_room\ns_setpc_b64 s[60:61]")

    def consumer(self):
        e = self.e
        NP = self.prepull
        BUF = [96 + 32 * u for u in range(NP)]
        QB, DQ, O0, O1, AP, MK, P = 64, 16, 20, 24, 32, 28, 12
        vK, vV, vA, vM, vS, vSL = 3, 4, 5, 6, 7, 8
        vF, vT, vOA = 48, 49, 50

        def pull(buf, vbase, after=None):
            e("s_lshl_b32 s43, s40, 1\ns_add_u32 s43, s43, 2")
            self.lds_wait(vM, FULL - MISC, 42, "s43", 1)
            e(f"s_and_b32 s44, s40, {NSLOT-1}\ns_lshl_b32 s44, s44, 13\nv_add_u32 v{vA}, s44, v{vbase}")
            for k in range(8):
                e(f"ds_read_b128 v[{buf+4*k}:{buf+4*k+3}], v{vA} offset:{(k>>1)*2048+(k&1)*256}")

        def release():
            e(f"v_mov_b32 v1, s41\nds_write_b32 v9, v1")

        def qk(buf, counted):
            for k in range(8):
                if counted:
                    e(f"s_waitcnt lgkmcnt({7-k})")
                c = "0" if k == 0 else f"v[{DQ}:{DQ+3}]"
                e(f"v_mfma_f32_16x16x32_bf16 v[{DQ}:{DQ+3}], v[{buf+4*k}:{buf+4*k+3}], v[{QB+4*k}:{QB+4*k+3}], {c}")
            if counted:
                release()
                e("s_nop 5")
            else:
                e("s_nop 7")
            e(f"v_mov_b32_dpp v10, v{DQ} quad_perm:[0,0,0,0] {DPPF}")
            e(f"v_mov_b32_dpp v11, v{DQ+2} quad_perm:[2,2,2,2] {DPPF}\ns_nop 0")
            e(f"v_add_f32_dpp v10, v{DQ+1}, v10 quad_perm:[1,1,1,1] {DPPF}")
            e(f"v_add_f32_dpp v11, v{DQ+3}, v11 quad_perm:[3,3,3,3] {DPPF}")
            e("v_add_f32 v10, v10, v11")
            self.rbf1(10)

        e("L_consumer:\ns_sub_u32 s30, s3, 1\ns_mov_b32 s31, 0x200000\ns_mov_b32 s42, 0\ns_waitcnt lgkmcnt(0)\ns_barrier")
        if self.l2warm:
            K = NAME + "_kernel"
            e("s_cmp_lg_u32 s30, 1\ns_cbranch_scc1 L_nol2\ns_getpc_b64 s[60:61]\nL_pc:")
            e(f"s_sub_u32 s60, s60, L_pc-{K}\ns_subb_u32 s61, s61, 0\ns_lshr_b32 s62, s2, 3\ns_lshl_b32 s62, s62, 10")
            e(f"v_lshl_add_u32 v10, v0, 4, s62\nv_min_u32 v10, L_last-{K}-16, v10\nv_and_b32 v10, -16, v10")
            e("v_mov_b32 v11, s61\nv_add_co_u32 v10, vcc, s60, v10\ns_nop 1\nv_addc_co_u32 v11, vcc, 0, v11, vcc")
            e("global_load_dwordx4 v[52:55], v[10:11], off\nL_nol2:")
        e(f"v_mov_b32 v{vM}, {MISC}")
        e("v_lshrrev_b32 v13, 4, v0\nv_and_b32 v14, 15, v0\nv_bfe_u32 v15, v0, 2, 2\nv_and_b32 v2, 3, v0")
        e(f"v_lshlrev_b32 v{vK}, 6, v13\nv_lshl_add_u32 v{vK}, v2, 4, v{vK}\nv_mov_b32 v12, v{vK}")
        e(f"v_lshl_add_u32 v{vK}, v15, 9, v{vK}")
        e(f"v_lshlrev_b32 v{vV}, 9, v13\nv_lshl_add_u32 v{vV}, v14, 4, v{vV}")
        e(f"s_mul_i32 s45, s30, {SC_STRIDE}\ns_add_u32 s45, s45, {SC}")
        e(f"v_and_b32 v{vS}, 60, v0\nv_add_u32 v{vS}, s45, v{vS}")
        e(f"v_lshlrev_b32 v{vSL}, 4, v0\nv_add_u32 v{vSL}, s45, v{vSL}")
        e(f"s_lshl_b32 s46, s30, 2\ns_add_u32 s46, s46, {FREE}\nv_mov_b32 v9, s46")
        e("v_and_b32 v1, 1, v0\nv_mov_b32 v10, 0xffff\nv_lshlrev_b32 v1, 4, v1\nv_lshlrev_b32 v10, v1, v10")
        e("v_lshrrev_b32 v1, 1, v14")
        for r in range(4):
            e(f"v_cmp_eq_u32 vcc, {r}, v1\ns_nop 1\nv_cndmask_b32 v{MK+r}, 0, v10, vcc")
        for r in range(8):
            e(f"v_mov_b32 v{O0+r}, 0")
        e("s_mov_b32 s40, s30")
        for u in range(NP):
            pull(BUF[u], vK)
            e("s_add_u32 s41, s40, 3\ns_waitcnt lgkmcnt(0)")
            release()
            e("s_mov_b32 s40, s41")
        e("s_mov_b32 s47, 0")
        self.stamp(0)
        self.lds_wait(vM, QRDY - MISC, 47, 1, 1)
        self.stamp(1)
        e(f"v_add_u32 v12, {QV}, v12")
        e(f"ds_read_b128 v[{AP}:{AP+3}], v12\nds_read_b128 v[{AP+4}:{AP+7}], v12 offset:256")
        for r in range(4):
            e(f"v_mov_b32 v{DQ+r}, 0xff800000")
        e(f"ds_write_b128 v{vSL}, v[{DQ}:{DQ+3}] offset:5120\ns_waitcnt lgkmcnt(0)")
        for t in range(4):
            e(f"v_cmp_eq_u32 vcc, {t}, v15\ns_nop 1")
            for k in range(8):
                e(f"v_cndmask_b32 v{QB+8*t+k}, 0, v{AP+k}, vcc")
        e("s_nop 1")
        qk(BUF[0], False)
        e(f"ds_write_b32 v{vS}, v10")
        e(f"v_add_u32 v2, {64*NP}, v{vS}\ns_add_u32 s48, s30, 256")
        e("L_kloop:")
        e("s_add_u32 s41, s40, 3\ns_cmp_lt_u32 s41, 256\ns_cselect_b32 s41, s41, s48")
        pull(BUF[0], vK)
        qk(BUF[0], True)
        e("ds_write_b32 v2, v10\nv_add_u32 v2, 64, v2")
        e("s_mov_b32 s40, s41\ns_cmp_lt_u32 s40, 256\ns_cbranch_scc1 L_kloop")
        for u in range(1, NP):
            qk(BUF[u], False)
            e(f"ds_write_b32 v{vS}, v10 offset:{64*u}")
        self.stamp(2)
        S = BUF[0]
        for k in range(6):
            e(f"ds_read_b128 v[{S+4*k}:{S+4*k+3}], v{vSL} offset:{1024*k}")
        e("s_waitcnt lgkmcnt(0)")
        e(f"v_max_f32 v10, v{S}, v{S+1}")
        for k in range(2, 24, 2):
            e(f"v_max3_f32 v10, v10, v{S+k}, v{S+k+1}")
        self.wave_reduce("v_max_f32", [10])
        e(f"v_readlane_b32 s50, v10, 63\ns_mov_b32 s51, {hex(C2)}\ns_nop 0")
        for k in range(24):
            e(f"v_subrev_f32 v{S+k}, s50, v{S+k}")
        for k in range(24):
            e(f"v_mul_f32 v{S+k}, s51, v{S+k}")
        for k in range(24):
            e(f"v_exp_f32 v{S+k}, v{S+k}")
        e(f"v_add_f32 v10, v{S}, v{S+1}")
        for k in range(2, 24):
            e(f"v_add_f32 v10, v10, v{S+k}")
        for k in range(24):
            e(f"v_cvt_pk_bf16_f32 v{S+k}, v{S+k}, v{S+k}")
        for k in range(6):
            e(f"ds_write_b128 v{vSL}, v[{S+4*k}:{S+4*k+3}] offset:{1024*k}")
        self.wave_reduce("v_add_f32", [10])
        e(f"v_readlane_b32 s52, v10, 63\nv_mov_b32 v{DQ}, s50\nv_mov_b32 v{DQ+2}, 1\nv_mov_b32 v{DQ+3}, 1")
        e(f"v_mov_b32 v{DQ+1}, s52\ns_lshl_b32 s46, s30, 4\ns_add_u32 s46, s46, {ML}\nv_mov_b32 v1, s46")
        e(f"ds_write_b128 v1, v[{DQ}:{DQ+3}]\nv_mov_b32 v2, v{vS}\ns_mov_b32 s49, 460")
        self.srd(32, 28, WS_SIZE)
        e(f"s_mov_b32 s53, 0xffffff00\ns_lshl_b32 s54, s100, 10\ns_add_u32 s54, s54, {WS_OP}")
        e(f"v_lshrrev_b32 v1, 5, v0\nv_lshlrev_b32 v{vOA}, 9, v1\nv_lshl_add_u32 v{vOA}, v14, 5, v{vOA}")
        e(f"v_and_b32 v1, 16, v0\nv_add_u32 v{vOA}, v{vOA}, v1")
        self.stamp(3)
        e("L_vloop:")
        e(f"s_add_u32 s41, s40, 3\nds_read_b32 v{P}, v2\nv_add_u32 v2, 64, v2\ns_waitcnt lgkmcnt(0)")
        for t in range(4):
            for r in range(4):
                e(f"v_and_b32_dpp v{AP+4*t+r}, v{P}, v{MK+r} row_newbcast:{4*t} {DPPF}")
        pull(BUF[0], vV)
        for k in range(8):
            o = O0 if k % 2 == 0 else O1
            a = AP + 4 * (k >> 1)
            e(f"s_waitcnt lgkmcnt({7-k})")
            e(f"v_mfma_f32_16x16x32_bf16 v[{o}:{o+3}], v[{a}:{a+3}], v[{BUF[0]+4*k}:{BUF[0]+4*k+3}], v[{o}:{o+3}]")
        release()
        e("s_mov_b32 s40, s41\ns_cmp_lt_u32 s40, s49\ns_cbranch_scc1 L_vloop")
        e("s_cmp_lt_u32 s40, 512\ns_cbranch_scc1 L_vmid")
        T = BUF[1]
        e("s_cmp_lg_u32 s30, 0\ns_cbranch_scc1 L_cpart")
        e(f"ds_read_b64 v[10:11], v{vM} offset:{PF-MISC}")
        e(f"ds_read_b128 v[{T}:{T+3}], v{vSL} offset:{SC_STRIDE}\nds_read_b128 v[{T+4}:{T+7}], v{vSL} offset:{2*SC_STRIDE}")
        for r in range(4):
            e(f"v_permlane32_swap_b32 v{O0+r}, v{O1+r}")
        e("L_csum:\ns_waitcnt lgkmcnt(0)\nv_and_b32 v10, v10, v11")
        e(f"v_pk_add_f32 v[{T}:{T+1}], v[{T}:{T+1}], v[{T+4}:{T+5}]\nv_pk_add_f32 v[{T+2}:{T+3}], v[{T+2}:{T+3}], v[{T+6}:{T+7}]")
        e("v_readfirstlane_b32 s46, v10")
        for r in range(4):
            e(f"v_fmac_f32 v{T+r}, v{O0+r}, v{vF}")
        e("s_cmp_eq_u32 s46, 0\ns_cbranch_scc1 L_cretry")
        for r in range(4):
            e(f"v_and_or_b32 v{T+r}, v{T+r}, s53, v{vT}")
        if self.fast:
            e("s_cmp_lg_u32 s47, 2\ns_cbranch_scc1 L_cfar")
            e(f"buffer_store_dwordx4 v[{T}:{T+3}], v{vOA}, s[32:35], s54 offen")
            self.stamp(4)
            e("s_branch L_gtail\nL_cfar:")
        e(f"buffer_store_dwordx4 v[{T}:{T+3}], v{vOA}, s[32:35], s54 offen sc1")
        self.stamp(4)
        e("s_branch L_gtail")
        e("L_cretry:")
        self.budget()
        e(f"ds_read_b64 v[10:11], v{vM} offset:{PF-MISC}")
        e(f"ds_read_b128 v[{T}:{T+3}], v{vSL} offset:{SC_STRIDE}\nds_read_b128 v[{T+4}:{T+7}], v{vSL} offset:{2*SC_STRIDE}")
        e("s_branch L_csum")
        e("L_cpart:")
        for r in range(4):
            e(f"v_permlane32_swap_b32 v{O0+r}, v{O1+r}")
        for r in range(4):
            e(f"v_mul_f32 v{O0+r}, v{O0+r}, v{vF}")
        e(f"v_mov_b32 v1, 1\nds_write_b128 v{vSL}, v[{O0}:{O0+3}]\nds_write_b32 v9, v1 offset:{PF-4-FREE}\ns_branch L_gtail")
        e("L_vmid:\ns_mov_b32 s47, 0")
        self.lds_wait(vM, FS + 12 - MISC, 47, 1, 2)
        e(f"ds_read_b32 v{vF}, v9 offset:{FS-FREE}\nds_read_b32 v{vT}, v{vM} offset:{TAG-MISC}")
        e(f"s_mov_b32 s49, 512\ns_waitcnt lgkmcnt(0)\nv_and_b32 v{vT}, 0xff, v{vT}")
        e("s_branch L_vloop")

    def unit_mfma_lds(self, B, A, vA, nsteps, D, off=0):
        for s in range(nsteps):
            self.e(f"ds_read_b128 v[{A+4*s}:{A+4*s+3}], v{vA} offset:{off+64*s}")
        for s in range(nsteps):
            self.e(f"s_waitcnt lgkmcnt({nsteps-1-s})")
            c = "0" if s == 0 else f"v[{D}:{D+3}]"
            self.e(f"v_mfma_f32_16x16x32_bf16 v[{D}:{D+3}], v[{A+4*s}:{A+4*s+3}], v[{B+4*s}:{B+4*s+3}], {c}")
        self.e("s_nop 7")

    def unit_mfma_dpp(self, B, src, A, D):
        def bc(s):
            for r in range(4):
                self.e(f"v_mov_b32_dpp v{A+4*(s%3)+r}, v{src+r} row_newbcast:{s} {DPPF}")
        self.e("s_nop 1")
        bc(0)
        for s in range(14):
            if s < 13:
                bc(s + 1)
            else:
                self.e("s_nop 0")
            a = A + 4 * (s % 3)
            c = "0" if s == 0 else f"v[{D}:{D+3}]"
            self.e(f"v_mfma_f32_16x16x32_bf16 v[{D}:{D+3}], v[{a}:{a+3}], v[{B+4*s}:{B+4*s+3}], {c}")
        self.e("s_nop 7")

    def soft_barrier(self, vM):
        self.e(f"s_add_u32 s45, s45, 4\nv_mov_b32 v1, 1\ns_mov_b64 exec, 1\n"
               f"ds_add_u32 v{vM}, v1 offset:{BAR-MISC}\ns_mov_b64 exec, -1")
        self.lds_wait(vM, BAR - MISC, 44, "s45", 2)

    def unit_load(self, dst, rounds, srd, stride, advance, vM, pol):
        e = self.e
        e(f"s_lshl_b32 s60, s30, 4\nv_add_u32 v9, s60, v6\nv_mul_u32_u24 v9, {stride}, v9\nv_add_u32 v9, v9, v7")
        e(f"v_add_u32 v14, {8*stride}, v9")
        for rd in range(rounds):
            self.dma_step(9, srd, "s57", pol)
            self.dma_step(14, srd, "s59", pol)
            e(f"s_add_u32 s58, s58, {advance}\ns_waitcnt vmcnt(0)")
            self.soft_barrier(vM)
            self.tr_reads(dst + 8 * rd, 8, 0)
            self.tr_reads(dst + 8 * rd + 4, 8, 4096)
            e("s_waitcnt lgkmcnt(0)")
            self.soft_barrier(vM)

    def sum_round(self, a, b, n, tmp):
        for k in range(n):
            self.e(f"v_add_f32 v{a+k}, v{a+k}, v{b+k}")
        if n == 1:
            self.rbf1(a)
        else:
            self.rbf_pairs(list(range(a, a + n)), tmp)

    def mlp_ids(self):
        e = self.e
        e("s_and_b32 s60, s100, 7")
        if not self.xl:
            e("s_bfe_u32 s54, s2, 0x10005\ns_bfe_u32 s55, s2, 0x20003\ns_lshl_b32 s61, s60, 2\ns_add_u32 s55, s55, s61")
            e("s_lshr_b32 s61, s2, 6\ns_cmp_eq_u32 s61, 1")
        elif self.xm:
            e("s_bfe_u32 s54, s2, 0x10002\ns_lshr_b32 s55, s2, 6\ns_mul_i32 s55, s55, 7\ns_add_u32 s55, s55, s60")
            e("s_and_b32 s61, s2, 3\ns_cmp_eq_u32 s61, 2")
        else:
            e("s_bfe_u32 s54, s2, 0x10006\ns_bfe_u32 s55, s2, 0x20001\ns_mul_i32 s55, s55, 7\ns_add_u32 s55, s55, s60")
            e("s_and_b32 s61, s2, 0x81\ns_cmp_eq_u32 s61, 0")
        e("s_cselect_b32 s60, s60, 7\ns_lshl_b32 s101, s54, 5\ns_add_u32 s101, s101, s55")
        e("s_cmp_eq_u32 s60, 7\ns_cselect_b32 s101, 64, s101")

    def service(self):
        e = self.e
        WO, W1, W2 = 32, 64, 120
        OCB, SB, GA, XP, GB, F = 176, 184, 192, 194, 196, 240
        RAW, AD, DD = 200, 232, 244
        vT8, vT16, vM, vT3 = 10, 11, 12, 252
        LM, HM = "s[50:51]", "s[52:53]"
        e("L_service:\ns_sub_u32 s30, s3, 4\ns_mov_b32 s31, 0x80000")
        e("s_and_b32 s48, s100, 7\ns_lshr_b32 s49, s100, 3")
        e("s_mov_b32 s50, 0x3fff3fff\ns_mov_b32 s51, 0x3fff3fff\ns_mov_b32 s52, 0x0fffffff\ns_mov_b32 s53, 0x0fffffff")
        e("v_mov_b32 v2, 0\nv_lshrrev_b32 v3, 4, v0\nv_and_b32 v4, 15, v0")
        e("v_lshlrev_b32 v5, 6, v4\nv_lshl_add_u32 v5, v3, 4, v5")
        e("v_lshrrev_b32 v6, 3, v0\nv_and_b32 v7, 7, v0\nv_lshlrev_b32 v7, 4, v7")
        e("v_lshlrev_b32 v8, 10, v3\nv_bfe_u32 v1, v0, 2, 2\nv_lshl_add_u32 v8, v1, 7, v8")
        e("v_and_b32 v1, 3, v0\nv_lshl_add_u32 v8, v1, 3, v8")
        e(f"v_mov_b32 v{vM}, {MISC}\ns_mov_b32 s47, 0\ns_waitcnt lgkmcnt(0)\ns_barrier")
        self.srd(32, 28, WS_SIZE)
        e("s_cmp_eq_u32 s30, 0\ns_cbranch_scc1 L_pro")
        self.lds_wait(vM, QRDY - MISC, 47, 1, 8)
        if self.vtouch:
            e("s_lshl_b32 s60, s100, 21\ns_add_u32 s36, s8, s60\ns_addc_u32 s37, s9, 0\ns_mov_b32 s38, 0x200000\ns_mov_b32 s39, 0x20000")
            e("s_cmp_lg_u32 s30, 1\ns_cbranch_scc1 L_notouch\nbuffer_load_dword v16, v2, s[36:39], 0 offen nt\nL_notouch:")
        e(f"ds_read_b32 v1, v{vM} offset:{TAG-MISC}\ns_waitcnt lgkmcnt(0)\nv_readfirstlane_b32 s56, v1")
        e(f"v_and_b32 v{vT8}, 0xff, v1\nv_and_b32 v{vT16}, 0xffff, v1\nv_and_b32 v{vT3}, 7, v1\ns_branch L_bg")

        PB, PA, PRAW, PCL, PN, PC, PD = 32, 144, 144, 176, 208, 224, 232
        e("L_pro:")
        self.stamp(0)
        e("s_load_dword s56, s[28:29], 0")
        e("s_cmp_ge_u32 s2, 128\ns_cselect_b32 s55, s100, s2" if self.qloc else "s_mov_b32 s55, s2")
        e("s_and_b32 s54, s55, 1\ns_bfe_u32 s55, s55, 0x60001")
        e("s_cmp_ge_u32 s2, 128")
        e("s_cselect_b32 s36, s4, s20\ns_cselect_b32 s37, s5, s21\ns_mov_b32 s38, 1792\ns_mov_b32 s39, 0x20000")
        e("s_cselect_b32 s40, s10, s22\ns_cselect_b32 s41, s11, s23\ns_mov_b32 s43, 0x20000")
        e(f"s_mov_b32 s46, 5376\ns_cselect_b32 s46, 8192, s46\ns_mul_i32 s42, s46, 448")
        e("s_cbranch_scc1 L_unit\ns_cmp_lt_u32 s2, 84\ns_cbranch_scc1 L_unit")
        e("s_waitcnt lgkmcnt(0)\ns_add_u32 s56, s56, 1")
        e(f"s_and_b32 s60, s56, 0xff\nv_mov_b32 v{vT8}, s60\ns_and_b32 s60, s56, 0xffff\nv_mov_b32 v{vT16}, s60\nv_and_b32 v{vT3}, 7, v{vT8}")
        e("s_branch L_getq")
        e("L_unit:")
        for k in range(8):
            e(f"v_mov_b32 v{PC+k}, 0")
        if self.lev:
            per = -(-((1024 - 64) // self.period * self.nsh) // 28)
            assert per <= 64 and per * 28 * self.cst <= WS_SIZE - WS_CTR
            e(f"s_cmp_ge_u32 s2, 28\ns_cbranch_scc1 L_noz\ns_mul_i32 s58, s2, {per*self.cst}\ns_add_u32 s58, s58, {WS_CTR}")
            for k in range(0, per, 16):
                e(f"v_lshrrev_b32 v1, 2, v0\nv_add_u32 v1, {k}, v1\nv_and_b32 v9, 3, v0\nv_lshlrev_b32 v9, 4, v9")
                e(f"v_mul_u32_u24 v13, {self.cst}, v1\nv_add_u32 v9, v9, v13")
                e(f"v_cmp_gt_u32 vcc, {per}, v1\ns_and_saveexec_b64 s[62:63], vcc")
                e(f"buffer_store_dwordx4 v[{PC}:{PC+3}], v9, s[32:35], s58 offen sc1\ns_mov_b64 exec, -1")
            e("L_noz:")
        e("v_lshrrev_b32 v1, 5, v0\nv_and_b32 v15, 31, v0\nv_mul_u32_u24 v13, 896, v1\nv_lshl_add_u32 v13, v15, 4, v13")
        e("s_mul_i32 s58, s54, 448\ns_sub_u32 s59, 448, s58")
        e(f"s_mov_b64 exec, {HM}")
        e(f"buffer_load_dwordx4 v[{PC}:{PC+3}], v13, s[36:39], s58 offen")
        e(f"buffer_load_dwordx4 v[{PC+4}:{PC+7}], v13, s[36:39], s59 offen")
        e("s_mov_b64 exec, -1")
        e("v_mul_u32_u24 v9, s46, v6\nv_add_u32 v9, v9, v7")
        e("s_mul_i32 s58, s54, 224\ns_mul_i32 s58, s58, s46\ns_lshl_b32 s60, s55, 7\ns_add_u32 s58, s58, s60\ns_lshl_b32 s59, s46, 3")
        for n in range(28):
            self.dma_step(9, 40, PST + 1024 * n, self.wpol)
            e("s_add_u32 s58, s58, s59")
        e(f"v_mul_u32_u24 v9, {2688*4}, v1\nv_lshl_add_u32 v9, v15, 5, v9")
        e(f"v_mul_u32_u24 v13, 448, v1\nv_lshl_add_u32 v13, v15, 4, v13\nv_add_u32 v13, {AIM}, v13")
        e(f"v_bfe_u32 v1, v0, 2, 1\nv_mul_u32_u24 v14, 448, v1\nv_lshl_add_u32 v14, v3, 4, v14\nv_add_u32 v14, {AIM}, v14")
        e(f"v_add_u32 v15, {PST}, v8")
        e("s_waitcnt lgkmcnt(0)\ns_add_u32 s56, s56, 1")
        e(f"s_and_b32 s60, s56, 0xff\nv_mov_b32 v{vT8}, s60\ns_and_b32 s60, s56, 0xffff\nv_mov_b32 v{vT16}, s60\nv_and_b32 v{vT3}, 7, v{vT8}")
        e("s_waitcnt vmcnt(28)")
        X = list(range(PN, PN + 8))
        self.unpack(list(range(PC, PC + 8)), list(range(PN, PN + 16)))
        e("s_cmp_ge_u32 s2, 128\ns_cbranch_scc1 L_ln1")
        self.silu(X, list(range(PN + 8, PN + 16)))
        for k in range(4):
            e(f"v_cvt_pk_bf16_f32 v{PC+k}, v{X[2*k]}, v{X[2*k+1]}")
        e("s_branch L_frag\nL_ln1:")
        self.layernorm(X, list(range(16, 22)), extra=list(range(PN + 8, PN + 16)))
        e("L_frag:\ns_waitcnt vmcnt(0)")
        self.stamp(1)
        for st in range(7):
            for u in range(4):
                self.tr_reads(PB + 16 * st + 4 * u, 15, 4096 * st + 32 * u)
        self.stamp(2)
        e("s_cmp_lt_u32 s2, 128\ns_cbranch_scc1 L_mm")
        e(f"s_mul_i32 s58, s54, 896\ns_add_u32 s58, s58, {WS_MOD}\ns_add_u32 s59, s58, {2*2688*4}")
        loads = []
        for p in range(2):
            for m in range(2):
                for hf in range(2):
                    k = (p * 2 + m) * 2 + hf
                    loads.append((4, PRAW + 4 * k, PCL + 4 * k, 9, f"s{58+p}", m * 448 * 4 + hf * 16))
        if self.mat:
            self.lds_wait(vM, FULL - MISC, 47, self.mat, 2)
        self.gather(loads, vT3, 7, HM, pairs=True, sleep=self.msleep)
        self.stamp(3)
        self.sum_round(PCL, PCL + 16, 16, list(range(16, 24)))
        CA = list(range(PCL + 8, PCL + 16))
        for r in CA:
            e(f"v_add_f32 v{r}, 1.0, v{r}")
        self.rbf_pairs(CA, list(range(16, 20)))
        self.modulate(X, CA, list(range(PCL, PCL + 8)), list(range(PC, PC + 4)), list(range(16, 20)))
        e("L_mm:")
        e(f"s_mov_b64 exec, {HM}\nds_write_b128 v13, v[{PC}:{PC+3}]\ns_mov_b64 exec, -1\ns_waitcnt lgkmcnt(0)")
        for st in range(7):
            e(f"ds_read_b128 v[{PA+4*st}:{PA+4*st+3}], v14 offset:{64*st}")
        e("s_lshl_b32 s46, s46, 1\nv_and_b32 v1, 1, v3\nv_mul_u32_u24 v9, s46, v1\nv_lshrrev_b32 v1, 5, v0")
        e("v_lshl_add_u32 v9, v1, 6, v9\nv_lshl_add_u32 v9, v4, 2, v9")
        e(f"s_mul_i32 s58, s54, s46\ns_lshl_b32 s58, s58, 1\ns_lshl_b32 s60, s55, 8\ns_add_u32 s58, s58, s60")
        e(f"s_mov_b32 s60, {WS_MOD}\ns_cmp_ge_u32 s2, 128\ns_cselect_b32 s60, {WS_Q}, s60\ns_add_u32 s58, s58, s60")
        for st in range(7):
            e(f"s_waitcnt lgkmcnt({6-st})")
            for u in range(4):
                d, b = PD + 4 * u, PB + 16 * st + 4 * u
                c = "0" if st == 0 else f"v[{d}:{d+3}]"
                e(f"v_mfma_f32_16x16x32_bf16 v[{d}:{d+3}], v[{PA+4*st}:{PA+4*st+3}], v[{b}:{b+3}], {c}")
        e("s_nop 7")
        for v in range(2):
            e(f"v_mov_b32_dpp v{PD+8*v}, v{PD+8*v+4} quad_perm:[0,1,2,3] row_mask:0xc bank_mask:0xf")
        for v in range(2):
            e(f"v_and_or_b32 v{PD+8*v}, v{PD+8*v}, -8, v{vT3}")
            e(f"buffer_store_dword v{PD+8*v}, v9, s[32:35], s58 offen offset:{128*v} sc1")
        self.stamp(4)
        e("L_getq:")
        if self.qat:
            self.lds_wait(vM, FULL - MISC, 47, self.qat, 2)
        e(f"v_lshlrev_b32 v9, 4, v0\ns_lshl_b32 s58, s49, 10\ns_add_u32 s58, s58, {WS_Q}\ns_add_u32 s59, s58, 0x8000")
        self.gather([(4, PRAW, PCL, 9, "s58", 0), (4, PRAW + 4, PCL + 4, 9, "s59", 0)], vT3, 7, "-1",
                    sleep=self.qsleep)
        for k in range(4):
            e(f"v_add_f32 v{PCL+k}, v{PCL+k}, v{PCL+4+k}")
        e(f"v_cvt_pk_bf16_f32 v16, v{PCL}, v{PCL+1}\nv_cvt_pk_bf16_f32 v17, v{PCL+2}, v{PCL+3}")
        e(f"v_lshl_add_u32 v1, v0, 3, v{vM}\nds_write_b64 v1, v[16:17] offset:{QV-MISC}")
        e(f"v_mov_b32 v18, 1\nv_mov_b32 v19, s56\nds_write_b64 v{vM}, v[18:19] offset:{QRDY-MISC}")
        self.stamp(5)

        e("L_bg:")
        e(f"s_lshl_b32 s57, s30, 11\ns_add_u32 s57, s57, {STG}\ns_add_u32 s59, s57, 1024")
        e(f"s_lshl_b32 s60, s30, 5\ns_add_u32 s60, s60, {STG}\nv_add_u32 v8, s60, v8\ns_mov_b32 s44, 0\ns_mov_b32 s45, 0")
        self.mlp_ids()
        e("s_cmp_eq_u32 s48, 7\ns_cbranch_scc1 L_bgdone")
        self.srd(36, 12, 4096 * 896)
        e(f"s_and_b32 s58, s49, 15\ns_mul_i32 s58, s58, {256*896}\ns_lshl_b32 s60, s48, 7\ns_add_u32 s58, s58, s60")
        if self.bgst:
            self.stamp(1)
        self.unit_load(WO, 4, 36, 896, 64 * 896, vM, self.wpol)
        if self.bgst:
            self.stamp(2)
        e("s_cmp_ge_u32 s101, 64\ns_cbranch_scc1 L_bgdone")
        self.srd(36, 16, 448 * 3584)
        e("s_lshl_b32 s58, s55, 7")
        self.unit_load(W1, 7, 36, 3584, 64 * 3584, vM, self.mpol)
        if self.bgst:
            self.stamp(3)
        self.srd(36, 18, 1792 * 896)
        e(f"s_mul_i32 s58, s55, {64*896}")
        self.unit_load(W2, 7, 36, 896, 128, vM, self.mpol)
        if self.bgst:
            self.stamp(4)
        e("v_and_b32 v1, 31, v0\nv_lshlrev_b32 v13, 2, v1\nv_lshrrev_b32 v1, 5, v0\nv_lshl_add_u32 v13, v1, 1, v13")
        e("s_mul_i32 s60, s30, 112\nv_add_u32 v13, s60, v13")
        self.srd(36, 4, 1792)
        e(f"v_lshlrev_b32 v14, 1, v13\ns_mul_i32 s58, s54, 896\nbuffer_load_dword v{XP}, v14, s[36:39], s58 offen")
        e(f"s_mul_i32 s58, s54, {2688*4}\ns_add_u32 s58, s58, {WS_MOD+896*4}\ns_add_u32 s59, s58, {2*2688*4}\nv_lshlrev_b32 v9, 2, v13")
        self.gather([(2, RAW, GA, 9, "s58", 0), (2, RAW + 2, 16, 9, "s59", 0)], vT3, 7, HM, sleep=8)
        self.sum_round(GA, 16, 2, [18])
        e(f"v_and_b32 v{XP+1}, 0xffff0000, v{XP}\nv_lshlrev_b32 v{XP}, 16, v{XP}")
        e("v_lshlrev_b32 v9, 1, v5")
        loads = []
        for p in range(2):
            for m, dst in enumerate((SB, OCB)):
                for hf in range(2):
                    k = (p * 2 + m) * 2 + hf
                    cl = dst + 4 * hf if p == 0 else AD + 8 * (1 - m) + 4 * hf
                    loads.append((4, RAW + 4 * k, cl, 9, f"s{58+p}", (m + 1) * 448 * 4 + hf * 16))
        self.gather(loads, vT3, 7, LM, sleep=8, pairs=True)
        self.sum_round(OCB, AD, 16, list(range(16, 24)))
        e(f"s_lshl_b32 s60, s55, 6\ns_add_u32 s58, s58, s60\ns_add_u32 s58, s58, {1344*4}\ns_add_u32 s59, s58, {2*2688*4}")
        e("v_lshlrev_b32 v9, 2, v4")
        self.gather([(1, RAW, GB, 9, "s58", 0), (1, RAW + 1, 16, 9, "s59", 0)], vT3, 7, "-1", sleep=8)
        self.sum_round(GB, 16, 1, None)
        for k in range(8):
            e(f"v_add_f32 v{OCB+k}, 1.0, v{OCB+k}")
        self.rbf_pairs(list(range(OCB, OCB + 8)), list(range(16, 20)))
        e(f"s_lshl_b32 s60, s30, 10\ns_add_u32 s60, s60, {GX}\nv_lshl_add_u32 v13, v0, 4, s60\nds_write_b128 v13, v[{GA}:{GA+3}]")
        e(f"v_lshlrev_b32 v13, 2, v0\nv_add_u32 v13, {GBL}, v13\nds_write_b32 v13, v{GB}\ns_waitcnt lgkmcnt(0)")
        self.soft_barrier(vM)
        e("L_bgdone:")
        if self.stamps:
            e("s_cmp_eq_u32 s30, 0\ns_cbranch_scc1 L_st0")
            self.stamp(0)
            e("L_st0:")
        if self.warm:
            e("s_cmp_lg_u32 s30, 1\ns_cbranch_scc1 L_warmed\ns_mov_b32 s60, 2\nL_warm:\ns_mov_b64 exec, 0\ns_branch L_pad0")
            e("L_padret:\ns_mov_b64 exec, -1\ns_sub_u32 s60, s60, 1\ns_cmp_lg_u32 s60, 0\ns_cbranch_scc1 L_warm\nL_warmed:")
        e("s_cmp_lg_u32 s30, 0\ns_cbranch_scc1 L_tail0")

        top, go = self.lab("ml"), self.lab("mlgo")
        e(f"{top}:")
        for i in range(3):
            e(f"ds_read_b128 v[{16+4*i}:{19+4*i}], v{vM} offset:{ML-MISC+16*i}")
        e("s_waitcnt lgkmcnt(0)\nv_min3_u32 v1, v18, v22, v26\ns_nop 0\nv_readfirstlane_b32 s60, v1")
        e(f"s_cmp_lg_u32 s60, 0\ns_cbranch_scc1 {go}")
        self.budget()
        e(f"s_sleep 32\ns_branch {top}\n{go}:")
        e(f"s_mov_b32 s61, {hex(C2)}\nv_max3_f32 v28, v16, v20, v24")
        for i in range(3):
            e(f"v_sub_f32 v{18+4*i}, v{16+4*i}, v28\nv_mul_f32 v{18+4*i}, s61, v{18+4*i}\nv_exp_f32 v{18+4*i}, v{18+4*i}")
        e("s_nop 0\nv_mul_f32 v29, v17, v18\nv_fmac_f32 v29, v21, v22\nv_fmac_f32 v29, v25, v26")
        e(f"v_or_b32 v{RAW}, v28, v{vT16}\nv_and_b32 v1, 0xffff0000, v29\nv_or_b32 v{RAW+1}, v1, v{vT16}")
        e(f"v_lshlrev_b32 v1, 16, v29\nv_or_b32 v{RAW+2}, v1, v{vT16}")
        e(f"s_getreg_b32 s46, hwreg(HW_REG_XCC_ID, 0, 4)\ns_lshl_b32 s46, s46, 16\nv_or_b32 v{RAW+3}, s46, v{vT16}")
        if self.xl:
            e("s_and_b32 s58, s2, 7\ns_lshr_b32 s59, s2, 3")
        else:
            e("s_lshr_b32 s58, s2, 5\ns_and_b32 s59, s2, 31")
        e(f"s_lshl_b32 s58, s58, 9\ns_add_u32 s58, s58, {WS_ML}\ns_lshl_b32 s60, s59, 4\nv_mov_b32 v1, s60")
        e(f"s_mov_b64 exec, 1\nbuffer_store_dwordx4 v[{RAW}:{RAW+3}], v1, s[32:35], s58 offen sc1\ns_mov_b64 exec, -1")
        e("s_mov_b32 s47, 0")
        self.lds_wait(vM, FULL - MISC, 47, 640, 32)
        e(f"s_and_b32 s59, s59, 24\nv_and_b32 v9, {31 if self.fast else 7}, v0\nv_xor_b32 v9, s59, v9\nv_lshlrev_b32 v9, 4, v9")
        self.gather([(4, RAW + 4, RAW + 8, 9, "s58", 0)], vT16, "WORD_0", "-1", sleep=16)
        m, l = RAW + 8, RAW + 9
        e(f"v_lshrrev_b32 v{l+1}, 16, v{l+1}\nv_or_b32 v{l}, v{l}, v{l+1}\nv_mov_b32 v28, v{m}")
        oct_steps = ["quad_perm:[1,0,3,2]", "quad_perm:[2,3,0,1]", "row_half_mirror"]
        for st in oct_steps:
            e(f"s_nop 1\nv_max_f32_dpp v28, v28, v28 {st} {DPPF}")
        e(f"v_sub_f32 v{m}, v{m}, v28\nv_mul_f32 v{m}, s61, v{m}\nv_exp_f32 v{m}, v{m}\ns_nop 0\nv_mul_f32 v29, v{m}, v{l}")
        for st in oct_steps:
            e(f"s_nop 1\nv_add_f32_dpp v29, v29, v29 {st} {DPPF}")
        e("v_rcp_f32 v29, v29")
        for i in range(3):
            e(f"v_sub_f32 v{F+i}, v{16+4*i}, v28\nv_mul_f32 v{F+i}, s61, v{F+i}\nv_exp_f32 v{F+i}, v{F+i}\ns_nop 0")
            e(f"v_mul_f32 v{F+i}, v{F+i}, v29")
        if self.fast:
            e(f"v_cmp_ne_u32 vcc, s46, v{RAW+11}\ns_cmp_eq_u64 vcc, 0\ns_cselect_b32 s60, 2, 1\nv_mov_b32 v{F+3}, s60")
        else:
            e(f"v_mov_b32 v{F+3}, 1")
        e(f"s_mov_b64 exec, 1\nds_write_b128 v{vM}, v[{F}:{F+3}] offset:{FS-MISC}\ns_mov_b64 exec, -1")
        e("L_tail0:\ns_cmp_eq_u32 s48, 7\ns_cbranch_scc1 L_fin")

        def stamp_s(k):
            if self.stamps and not self.bgst:
                e(f"s_cmp_eq_u32 s30, 0\ns_cbranch_scc1 L_st{k}")
                self.stamp(k)
                e(f"L_st{k}:")

        e(f"s_lshl_b32 s58, s49, 13\ns_lshl_b32 s60, s30, 8\ns_add_u32 s58, s58, s60\ns_add_u32 s58, s58, {WS_OP}")
        e("s_add_u32 s59, s58, 4096\nv_lshlrev_b32 v9, 2, v0")
        e(f"s_lshl_b32 s60, s30, 7\ns_add_u32 s60, s60, {QV}\nv_lshl_add_u32 v14, v0, 1, s60")
        e(f"v_lshl_add_u32 v15, v3, 4, v{vM}\nv_add_u32 v13, v5, v{vM}")
        e(f"s_mul_i32 s40, s49, {448*4}\ns_lshl_b32 s60, s48, 8\ns_add_u32 s40, s40, s60")
        e(f"s_lshl_b32 s60, s30, 6\ns_add_u32 s40, s40, {WS_Y}")
        if self.ymerge:
            e(f"v_lshl_add_u32 v29, v4, 2, v{vM}\nv_add_u32 v29, s60, v29\nv_add_u32 v28, v9, v{vM}")
        else:
            e("s_add_u32 s40, s40, s60")
        vYM, vYT = 253, 254
        e(f"v_and_b32 v1, 3, v0\nv_cmp_eq_u32 vcc, 0, v1\nv_mov_b32 v1, 0xffffff00\ns_mov_b32 s43, 0xffffff00")
        e(f"v_cndmask_b32 v{vYM}, -1, v1, vcc\nv_cndmask_b32 v{vYT}, 0, v{vT8}, vcc")
        e(f"s_lshl_b32 s60, s30, 5\ns_add_u32 s60, s60, {RED}\nv_lshl_add_u32 v30, v4, 1, s60")
        ZB = 1792 << self.zpad
        e(f"s_mul_i32 s41, s54, {28*ZB}\ns_mul_i32 s60, s30, {ZB}\ns_add_u32 s41, s41, s60")
        e(f"s_lshl_b32 s60, s55, {6+self.zpad}\ns_add_u32 s41, s41, s60\ns_add_u32 s41, s41, {WS_Z}\ns_add_u32 s42, s41, {16*ZB}")
        e(f"v_mul_u32_u24 v31, {4*ZB}, v3\nv_lshl_add_u32 v31, v4, 2, v31")
        for k in range(4):
            e(f"v_mov_b32 v{248+k}, 0")
        ol = [(1, 20 + k, 9, f"s{58+(k>>2)}", (k & 3) * 1024) for k in range(8)]
        e("s_mov_b32 s47, 0\ns_mov_b32 s46, 0")
        self.lds_wait(vM, FULL - MISC, 47, self.pstart - 40, 64)
        self.lds_wait(vM, FS + 12 - MISC, 46, 1, 2)
        self.lds_wait(vM, FULL - MISC, 47, self.pstart, 3)
        e("s_setprio 2")
        self.L.append("@WARM_BEGIN")

        self.gather8(ol, vT8, "-1")
        e("v_pk_add_f32 v[20:21], v[20:21], v[22:23]\nv_pk_add_f32 v[24:25], v[24:25], v[26:27]")
        e("v_pk_add_f32 v[20:21], v[20:21], v[24:25]\nv_add_f32 v20, v20, v21")
        e("v_cvt_pk_bf16_f32 v20, v20, v20\nds_write_b16 v14, v20")
        stamp_s(1)
        e("s_waitcnt lgkmcnt(0)\ns_barrier")
        self.unit_mfma_lds(WO, RAW, 15, 8, DD, QV - MISC)
        e(f"v_and_or_b32 v{DD}, v{DD}, v{vYM}, v{vYT}")
        if self.ymerge:
            e(f"ds_write_b32 v29, v{DD} offset:{RED+128-MISC}\ns_waitcnt lgkmcnt(0)\ns_barrier")
            e(f"s_cmp_lg_u32 s30, 1\ns_cbranch_scc1 L_ydone\nds_read_b32 v{DD}, v28 offset:{RED+128-MISC}\ns_waitcnt lgkmcnt(0)")
            e(f"buffer_store_dword v{DD}, v9, s[32:35], s40 offen sc1\nL_ydone:")
        else:
            e(f"s_mov_b64 exec, 0xffff\nbuffer_store_dword v{DD}, v9, s[32:35], s40 offen sc1")
        stamp_s(2)
        e(f"s_cmp_ge_u32 s101, 64\ns_cbranch_scc1 L_fin\ns_mov_b64 exec, {LM}\ns_barrier")

        e(f"ds_read_b128 v[248:251], v13 offset:{AIM-MISC}\ns_mov_b64 exec, -1")
        stamp_s(3)
        e("s_waitcnt lgkmcnt(0)")
        X = list(range(WO, WO + 8))
        self.unpack([248, 249, 250, 251], X)
        self.layernorm(X, list(range(16, 22)))
        self.modulate(X, list(range(OCB, OCB + 8)), list(range(SB, SB + 8)), [248, 249, 250, 251], list(range(16, 20)))
        self.unit_mfma_dpp(W1, 248, AD, DD)
        self.rbf1(DD)
        self.silu([DD], [16])
        e(f"v_cvt_pk_bf16_f32 v{DD}, v{DD}, v{DD}\nds_write_b16 v30, v{DD}\ns_waitcnt lgkmcnt(0)\ns_barrier")
        e(f"ds_read_b128 v[{AD}:{AD+3}], v15 offset:{RED-MISC}\nds_read_b128 v[{AD+4}:{AD+7}], v15 offset:{RED-MISC+64}")
        stamp_s(4)
        for st in range(2):
            e(f"s_waitcnt lgkmcnt({1-st})")
            for rho in range(7):
                d, b = RAW + 4 * rho, W2 + 8 * rho + 4 * st
                c = "0" if st == 0 else f"v[{d}:{d+3}]"
                e(f"v_mfma_f32_16x16x32_bf16 v[{d}:{d+3}], v[{AD+4*st}:{AD+4*st+3}], v[{b}:{b+3}], {c}")
        e("s_nop 4")
        for g in (1, 2, 3):
            e(f"v_mov_b32_dpp v{RAW}, v{RAW+4*g} quad_perm:[0,1,2,3] row_mask:{hex(1<<g)} bank_mask:0xf\ns_nop 1")
        e(f"v_and_or_b32 v{RAW}, v{RAW}, s43, v{vT8}")
        e(f"v_mov_b32_dpp v{RAW+16}, v{RAW+20} quad_perm:[0,1,2,3] row_mask:0x2 bank_mask:0xf")
        near = self.fast and self.xm
        if near:
            e("s_cmp_lg_u32 s46, 2\ns_cbranch_scc1 L_zfar")
        for pol in (["", "sc1"] if near else ["sc1"]):
            e(f"buffer_store_dword v{RAW}, v31, s[32:35], s41 offen {pol}\ns_nop 0")
            e(f"v_mov_b32_dpp v{RAW+16}, v{RAW+24} quad_perm:[0,1,2,3] row_mask:0x4 bank_mask:0xf")
            e(f"v_and_or_b32 v{RAW+16}, v{RAW+16}, s43, v{vT8}\ns_mov_b32 exec_hi, 0xffff")
            e(f"buffer_store_dword v{RAW+16}, v31, s[32:35], s42 offen {pol}")
            if self.stamps and not self.bgst:
                e("s_cmp_eq_u32 s30, 0\ns_cbranch_scc1 L_fin")
                self.stamp(5)
            e("s_branch L_fin")
            if pol == "":
                e("L_zfar:")

    def gtail(self):
        e = self.e
        vM, vT8, GA, XP, GB, R = 12, 10, 4, 6, 8, 32
        HM = "s[52:53]"
        e("L_gtail:")
        self.mlp_ids()
        e("s_cbranch_scc1 L_fin")
        e(f"s_setprio 0\nv_mov_b32 v{vM}, {MISC}\nv_mov_b32 v2, 0\ns_mov_b32 s47, 0\ns_mov_b32 s31, 0x80000")
        self.srd(32, 28, WS_SIZE)
        e("s_mov_b32 s52, 0x0fffffff\ns_mov_b32 s53, 0x0fffffff")
        e(f"s_mul_i32 s40, s54, {16*448*4}\ns_add_u32 s40, s40, {WS_Y}")
        for k in range(1, 4):
            e(f"s_add_u32 s{40+k}, s40, {k*2*448*4}")
        e("v_and_b32 v1, 31, v0\nv_lshrrev_b32 v3, 5, v0\ns_mul_i32 s60, s3, 448\nv_lshl_add_u32 v9, v1, 4, s60")
        e(f"v_lshrrev_b32 v14, 1, v9\nv_lshl_add_u32 v14, v3, 2, v14\nv_add_u32 v14, {AIM}, v14")
        e(f"v_mul_u32_u24 v3, {8*448*4}, v3\nv_add_u32 v9, v9, v3")
        yl = [(4, R + 4 * k, 9, f"s{40+(k>>1)}", (k & 1) * 448 * 4) for k in range(8)]
        zl = [(1, 20 + k, 13, "s58", (256 << self.zpad) * k) for k in range(7)]
        self.lds_wait(vM, FS + 12 - MISC, 47, 1, 2)
        e(f"ds_read_b32 v11, v{vM} offset:{TAG-MISC}")
        e(f"s_lshl_b32 s60, s3, 10\ns_add_u32 s60, s60, {GX}\nv_lshl_add_u32 v1, v0, 4, s60\nds_read_b128 v[{GA}:{GA+3}], v1")
        e(f"v_lshlrev_b32 v13, 2, v0\nv_add_u32 v1, {GBL}, v13\nds_read_b32 v{GB}, v1")
        if self.zpad:
            e("v_and_b32 v1, 48, v0\nv_lshl_add_u32 v13, v1, 2, v13")
        e(f"s_waitcnt lgkmcnt(0)\nv_and_b32 v{vT8}, 0xff, v11")
        e(f"s_mov_b64 exec, {HM}")
        for ld in yl if self.prewarm & 1 else []:
            self.issue(ld)
        e("s_barrier")
        if self.ymerge:
            e("s_barrier")
        if self.ystage:
            top = self.lab("ys")
            e(f"{top}:")
            self.budget()
            self.issue(yl[self.ystage - 1])
            e(f"s_waitcnt vmcnt(0)\nv_cmp_ne_u32_sdwa vcc, v{yl[self.ystage-1][1]}, v{vT8} src0_sel:BYTE_0 src1_sel:DWORD")
            e(f"s_cmp_lg_u64 vcc, 0\ns_cbranch_scc1 {top}")
        self.gather8(yl, vT8, HM)
        if self.stamps and not self.prog:
            e("s_cmp_lg_u32 s3, 0\ns_cbranch_scc1 L_sg3")
            self.stamp(3)
            e("L_sg3:")
        for st in (16, 8, 4):
            for k in range(0, st, 2):
                e(f"v_pk_add_f32 v[{R+k}:{R+k+1}], v[{R+k}:{R+k+1}], v[{R+st+k}:{R+st+k+1}]")
        e(f"s_nop 1\nv_permlane32_swap_b32 v{R}, v{R+2}\nv_permlane32_swap_b32 v{R+1}, v{R+3}")
        e(f"v_pk_add_f32 v[{R}:{R+1}], v[{R}:{R+1}], v[{R+2}:{R+3}]")
        self.rbf_pairs([R, R + 1], [16])
        e(f"v_pk_mul_f32 v[{R}:{R+1}], v[{R}:{R+1}], v[{GA}:{GA+1}]")
        self.rbf_pairs([R, R + 1], [16])
        e(f"v_pk_add_f32 v[{R}:{R+1}], v[{R}:{R+1}], v[{XP}:{XP+1}]")
        e(f"v_cvt_pk_bf16_f32 v16, v{R}, v{R+1}")
        e(f"s_mov_b64 exec, {HM}\nds_write_b32 v14, v16\ns_waitcnt lgkmcnt(0)\ns_barrier")
        e("s_cmp_lg_u32 s3, 0\ns_cbranch_scc1 L_fin\ns_mov_b64 exec, -1")
        e(f"s_mul_i32 s58, s54, 28\ns_add_u32 s58, s58, s55\ns_mul_i32 s58, s58, {1792 << self.zpad}\ns_add_u32 s58, s58, {WS_Z}")
        for ld in zl if self.prewarm & 2 else []:
            self.issue(ld)
        e(f"s_lshl_b32 s60, s55, 5\ns_add_u32 s41, s60, {AIM}\nv_and_b32 v1, 15, v0\nv_lshl_add_u32 v1, v1, 1, s41\nds_read_u16 v31, v1")
        self.srd(36, 24, 1792)
        e("s_mul_i32 s41, s54, 896\ns_add_u32 s41, s41, s60\nv_lshlrev_b32 v14, 1, v0")
        e("s_waitcnt lgkmcnt(0)\nv_lshlrev_b32 v31, 16, v31\ns_barrier")
        self.gather8(zl, vT8, "-1")
        if not self.prog:
            self.stamp(4)
        e("v_pk_add_f32 v[20:21], v[20:21], v[22:23]\nv_add_f32 v24, v24, v26")
        e("v_pk_add_f32 v[20:21], v[20:21], v[24:25]\nv_add_f32 v16, v20, v21")
        for sw in ("v_permlane16_swap_b32", "v_permlane32_swap_b32"):
            e(f"v_mov_b32 v17, v16\ns_nop 1\n{sw} v16, v17\nv_add_f32 v16, v16, v17")
        self.rbf1(16)
        e(f"v_mul_f32 v16, v16, v{GB}")
        self.rbf1(16)
        e("v_add_f32 v16, v16, v31\nv_cvt_pk_bf16_f32 v16, v16, v16")
        e("s_mov_b64 exec, 0xffff\nbuffer_store_short v16, v14, s[36:39], s41 offen")
        if not self.prog:
            self.stamp(5)
        e("s_cmp_lg_u32 s101, 0\ns_cbranch_scc1 L_fin")
        e("s_mov_b64 exec, 1\nbuffer_store_dword v11, v2, s[32:35], 0 offen sc1")
        self.L.append("@WARM_END")
        e("L_fin:")
        self.end()

    def build(self, header):
        e = self.e
        K = NAME + "_kernel"
        self.L.append(header.rstrip("\n"))
        self.L.append(f"; @launch grid=(256,1,1) block=(512,1,1) lds={LDS_BYTES}")
        self.L.append('.amdgcn_target "amdgcn-amd-amdhsa--gfx950"\n.text')
        self.L.append(f".globl {K}\n.p2align 8\n.type {K},@function\n{K}:")
        e("s_cmp_ge_u32 s2, 256\ns_cbranch_scc1 L_end")
        e("s_load_dwordx16 s[4:19], s[0:1], 0\ns_load_dwordx8 s[20:27], s[0:1], 64\ns_load_dwordx2 s[28:29], s[0:1], 96")
        e("v_lshrrev_b32 v1, 6, v0\nv_and_b32 v0, 63, v0\nv_readfirstlane_b32 s3, v1")
        if self.xl == 2:
            e("s_and_b32 s100, s2, 7\ns_lshl_b32 s100, s100, 3\ns_bfe_u32 s101, s2, 0x30003\ns_or_b32 s100, s100, s101")
            e("s_and_b32 s101, s2, 192\ns_or_b32 s100, s100, s101")
            if self.xf:
                e(f"s_bitcmp1_b32 s2, 6\ns_cselect_b32 s101, {self.xf << 3}, 0\ns_xor_b32 s100, s100, s101")
            if self.xg:
                e(f"s_bitcmp1_b32 s2, 7\ns_cselect_b32 s101, {self.xg << 3}, 0\ns_xor_b32 s100, s100, s101")
        elif self.xl:
            e("s_and_b32 s100, s2, 7\ns_lshl_b32 s100, s100, 4\ns_bfe_u32 s101, s2, 0x40003\ns_or_b32 s100, s100, s101")
            e("s_and_b32 s101, s2, 128\ns_or_b32 s100, s100, s101")
        else:
            e("s_mov_b32 s100, s2")
        self.stamp_init()
        e("s_cmp_eq_u32 s3, 0\ns_cbranch_scc1 L_loader")
        e(f"v_lshlrev_b32 v1, 3, v0\nv_add_u32 v1, {MISC}, v1\nv_mov_b32 v2, 0\nv_mov_b32 v3, 0\nds_write_b64 v1, v[2:3]")
        e("s_cmp_ge_u32 s3, 4\ns_cbranch_scc1 L_service\ns_branch L_consumer")
        self.loader()
        e("L_end:\ns_endpgm")
        self.consumer()
        self.service()
        self.gtail()
        e("L_last:")
        self.L.append(f""".section .rodata,"a"
.p2align 6
.amdhsa_kernel {K}
  .amdhsa_next_free_vgpr 256
  .amdhsa_next_free_sgpr 102
  .amdhsa_accum_offset 256
  .amdhsa_group_segment_fixed_size 0
  .amdhsa_kernarg_size 104
  .amdhsa_user_sgpr_count 2
  .amdhsa_user_sgpr_kernarg_segment_ptr 1
  .amdhsa_system_sgpr_workgroup_id_x 1
  .amdhsa_float_denorm_mode_32 3
.end_amdhsa_kernel""")
        return "\n".join(self.place_pads()) + "\n"

    def place_pads(self):
        out, inside, count, npad = [], False, 0, 0
        def pad(op):
            nonlocal npad, count
            out.append(f"L_pad{npad}:\n    {op} @PAD{npad+1}@")
            npad += 1
            count = 0
        for line in self.L:
            if line == "@WARM_BEGIN":
                inside = bool(self.warm)
                if inside:
                    pad("s_cbranch_execz")
                continue
            if line == "@WARM_END":
                inside = False
                continue
            out.append(line)
            if inside and line.startswith("    "):
                count += 1
                if line.strip().startswith("s_branch "):
                    pad("s_branch")
                elif count >= self.warm:
                    pad("s_cbranch_execz")
        text = "\n".join(out)
        for k in range(1, npad + 1):
            text = text.replace(f"@PAD{k}@", f"L_pad{k}" if k < npad else "L_padret")
        return text.split("\n")


HEADER = """; Fused adaLN-conditioned block: cached multi-head attention (decode) + SiLU MLP, gfx950.
"""


def generate(**kw):
    return Gen(**kw).build(HEADER)


if __name__ == "__main__":
    import json
    kw = json.loads(sys.argv[2]) if len(sys.argv) > 2 else {}
    open(sys.argv[1], "w").write(generate(**kw))
```

```python
import struct
import sys

NAME = "adaLN_cond__mha_block_cached__dense_activation_silu__decode"

WS_EPOCH, WS_MOD, WS_Q, WS_OP, WS_Y, WS_ML, WS_Z, WS_CTR, WS_SIZE = (
    0, 0x1000, 0x10000, 0x20000, 0x60000, 0x6E000, 0x70000, 0xB0000, 0x1E0000)
WS_STAMP = 0x1E0000
RING, NSLOT = 0, 16
SC, SC_STRIDE = 131072, 6144
STG = 149504
PST = 131072
MISC = 159744
FULL, FREE, QRDY, TAG, BAR, ML, QV, AIM, RED = (MISC, MISC + 256, MISC + 272, MISC + 276, MISC + 280,
                                                MISC + 288, MISC + 512, MISC + 1024, MISC + 2816)
FS, PF = MISC + 336, MISC + 352
GX, GBL = STG, STG + 4096
LDS_BYTES = 163840


STAMPS = [("ld start", 0, 0), ("S0 start", 4, 0), ("S0 weights landed", 4, 1), ("S0 frags read", 4, 2),
          ("S0 mod gathered", 4, 3), ("S0 unit pub", 4, 4), ("S0 q ready", 4, 5), ("C prepull done", 1, 0),
          ("C q seen", 1, 1), ("bg done", 5, 0), ("ld K issued", 0, 1), ("C K done", 1, 2), ("C softmax done", 1, 3),
          ("ld done", 0, 2), ("opart pub", 1, 4), ("o gathered", 5, 1), ("y pub", 5, 2), ("y gathered", 0, 3),
          ("x1 barrier", 5, 3), ("hid barrier", 5, 4), ("z pub", 5, 5), ("z gathered", 0, 4), ("end", 0, 5)]
END_STAMP = (0, 5)


def f2u(x):
    return struct.unpack("<I", struct.pack("<f", x))[0]


LOG2E = 1.4426950408889634
C2 = f2u(LOG2E / 16.0)
DPPF = "row_mask:0xf bank_mask:0xf"


class Gen:
    def __init__(self, D=20, lev=(18, 20, 22, 24), nsh=4, cst=8448, cstart=64, atpos=20, wpol="nt", kvpol="nt",
                 prepull=6, qsleep=0, warm=0, pstart=1016, zpad=0, prewarm=2, vtouch=0, stamps=False, prog=None, bgst=0, l2warm=1, G=2, lev0=None, pi=None, xl=2, xm=1, fast=1, eb=8, mpol="", sh0=3, rot=0, qloc=1, qat=46, mat=22, msleep=0, xf=7, xg=0, ymerge=0, ystage=1, fin=(24, 40), npol="", csleep=0, lnfast=0, mix=0, mixat=0, mixto=2048, ctouch=0, mdelay=0, wdelay=0, opol="", boost=None):
        self.L = []
        self.n = 0
        self.D, self.lev, self.nsh, self.cst, self.cstart, self.atpos = D, list(lev), nsh, cst, cstart, atpos
        self.period = 32
        self.boost = boost
        assert cstart + atpos > 2 * (NSLOT + 3 * prepull)
        self.mdelay, self.wdelay = mdelay, wdelay
        self.opol = wpol if opol is None else opol
        self.mix, self.mixat, self.mixto, self.ctouch = mix, mixat, mixto, ctouch
        self.csleep, self.lnfast = csleep, lnfast
        self.fin, self.npol = fin, npol
        self.ymerge, self.ystage = ymerge, ystage
        self.xf, self.xg = xf, xg
        self.qat, self.mat, self.msleep = qat, mat, msleep
        self.qloc = qloc
        self.sh0, self.rot = sh0, rot
        self.xl, self.xm, self.fast, self.eb = xl, xm, fast, eb
        self.mpol = wpol if mpol is None else mpol
        assert xl or not (xm or fast)
        self.pi = pi
        self.G, self.lev0 = G, lev0
        self.l2warm = l2warm
        assert cstart >= 64 and cstart % 32 == 0 and atpos % 8 != 7
        self.wpol, self.kvpol = wpol, kvpol
        self.prepull, self.qsleep, self.warm = prepull, qsleep, warm
        self.pstart, self.zpad, self.prewarm, self.vtouch = pstart, zpad, prewarm, vtouch
        self.stamps, self.prog, self.bgst = stamps, prog, bgst

    def e(self, s):
        for line in s.split("\n"):
            line = line.strip()
            if not line:
                continue
            self.L.append(line if line.endswith(":") or line.startswith(";") else "    " + line)

    def lab(self, p):
        self.n += 1
        return f"L_{p}_{self.n}"

    def srd(self, d, base, size):
        self.e(f"s_mov_b32 s{d}, s{base}\ns_mov_b32 s{d+1}, s{base+1}\n"
               f"s_mov_b32 s{d+2}, {size}\ns_mov_b32 s{d+3}, 0x20000")

    def stamp(self, k):
        if self.stamps:
            self.e(f"s_memrealtime s[{84+2*k}:{85+2*k}]")

    def stamp_init(self):
        if self.stamps:
            for k in range(8):
                self.e(f"s_mov_b64 s[{84+2*k}:{85+2*k}], 0")

    def stamp_flush(self):
        if self.stamps:
            self.e("s_mov_b64 exec, -1\ns_waitcnt lgkmcnt(0)")
            self.srd(80, 28, WS_STAMP + 0x20000)
            for k in range(8):
                self.e(f"v_mov_b32 v{8+k}, s{84+2*k}")
            self.e(f"s_lshl_b32 s30, s2, 3\ns_add_u32 s30, s30, s3\ns_lshl_b32 s30, s30, 5\n"
                   f"s_add_u32 s30, s30, {WS_STAMP}\nv_mov_b32 v1, s30\ns_mov_b64 exec, 1\n"
                   "buffer_store_dwordx4 v[8:11], v1, s[80:83], 0 offen\n"
                   "buffer_store_dwordx4 v[12:15], v1, s[80:83], 0 offen offset:16")

    def end(self):
        self.stamp_flush()
        self.e("s_endpgm")

    def budget(self):
        self.e("s_sub_u32 s31, s31, 1\ns_cbranch_scc1 L_end")

    def wave_reduce(self, op, regs, nsteps=6):
        steps = ["quad_perm:[1,0,3,2] " + DPPF, "quad_perm:[2,3,0,1] " + DPPF, "row_half_mirror " + DPPF,
                 "row_mirror " + DPPF, "row_bcast:15 row_mask:0xa bank_mask:0xf",
                 "row_bcast:31 row_mask:0xc bank_mask:0xf"]
        for st in steps[:nsteps]:
            pad = 3 - len(regs) if st is not steps[0] else 2
            if pad > 0:
                self.e(f"s_nop {pad-1}")
            for r in regs:
                self.e(f"{op}_dpp v{r}, v{r}, v{r} {st}")
        self.e("s_nop 0")

    def rbf_pairs(self, regs, tmp):
        for k in range(0, len(regs), 2):
            self.e(f"v_cvt_pk_bf16_f32 v{tmp[k//2]}, v{regs[k]}, v{regs[k+1]}")
        self.unpack(tmp[:len(regs)//2], regs)

    def unpack(self, packed, regs):
        for k, p in enumerate(packed):
            self.e(f"v_lshlrev_b32 v{regs[2*k]}, 16, v{p}\nv_and_b32 v{regs[2*k+1]}, 0xffff0000, v{p}")

    def rbf1(self, r):
        self.e(f"v_cvt_pk_bf16_f32 v{r}, v{r}, v{r}\nv_and_b32 v{r}, 0xffff0000, v{r}")

    def silu(self, regs, tmp):
        for r, t in zip(regs, tmp):
            self.e(f"v_mul_f32 v{t}, {hex(f2u(-LOG2E))}, v{r}")
        for t in tmp[:len(regs)]:
            self.e(f"v_exp_f32 v{t}, v{t}")
        self.e("s_nop 0")
        for t in tmp[:len(regs)]:
            self.e(f"v_add_f32 v{t}, 1.0, v{t}")
        for t in tmp[:len(regs)]:
            self.e(f"v_rcp_f32 v{t}, v{t}")
        self.e("s_nop 0")
        for r, t in zip(regs, tmp):
            self.e(f"v_mul_f32 v{r}, v{r}, v{t}")

    def pk(self, op, d, a, b, mods=""):
        self.e(f"v_pk_{op}_f32 v[{d}:{d+1}], v[{a}:{a+1}], v[{b}:{b+1}] {mods}")

    def layernorm(self, X, t, extra=None, rounded=True):
        e = self.e
        S = X[::2] + (extra[::2] if extra else [])
        a, b, m, r = t[0], t[2], t[6], t[8]
        self.pk("add", a, S[0], S[1])
        self.pk("mul", b, S[0], S[0])
        e(f"v_pk_fma_f32 v[{b}:{b+1}], v[{S[1]}:{S[1]+1}], v[{S[1]}:{S[1]+1}], v[{b}:{b+1}]")
        for q in S[2:]:
            self.pk("add", a, a, q)
            e(f"v_pk_fma_f32 v[{b}:{b+1}], v[{q}:{q+1}], v[{q}:{q+1}], v[{b}:{b+1}]")
        e(f"v_add_f32 v{a}, v{a}, v{a+1}\nv_add_f32 v{b}, v{b}, v{b+1}")
        inv = hex(f2u(1.0 / 448))
        if extra is None:
            self.wave_reduce("v_add_f32", [a, b])
            e(f"v_readlane_b32 s60, v{a}, 63\nv_readlane_b32 s61, v{b}, 63\nv_mov_b32 v{a+1}, {inv}")
            e(f"v_mul_f32 v{a}, s60, v{a+1}\nv_mul_f32 v{b}, s61, v{a+1}")
        else:
            self.wave_reduce("v_add_f32", [a, b], nsteps=4)
            e(f"v_mov_b32 v{a+1}, v{a}\nv_mov_b32 v{b+1}, v{b}\ns_nop 1")
            e(f"v_permlane16_swap_b32 v{a}, v{a+1}\nv_permlane16_swap_b32 v{b}, v{b+1}")
            e(f"v_add_f32 v{a}, v{a}, v{a+1}\nv_add_f32 v{b}, v{b}, v{b+1}")
            e(f"v_mul_f32 v{a}, {inv}, v{a}\nv_mul_f32 v{b}, {inv}, v{b}")
        e(f"v_fma_f32 v{b}, -v{a}, v{a}, v{b}\nv_max_f32 v{b}, 0, v{b}")
        e(f"v_cvt_pk_bf16_f32 v{a}, v{a}, v{b}")
        e(f"v_and_b32 v{r}, 0xffff0000, v{a}\nv_lshlrev_b32 v{m}, 16, v{a}")
        e(f"v_add_f32 v{r}, {hex(f2u(1e-5))}, v{r}")
        self.rbf1(r)
        e(f"v_sqrt_f32 v{r}, v{r}")
        for q in X[::2]:
            self.pk("add", q, q, m, "op_sel_hi:[1,0] neg_lo:[0,1] neg_hi:[0,1]")
        self.rbf1(r)
        e(f"v_rcp_f32 v{r}, v{r}")
        if rounded:
            self.rbf_pairs(X, t[2:6])
        else:
            e("s_nop 0")
        for q in X[::2]:
            self.pk("mul", q, q, r, "op_sel_hi:[1,0]")
        if rounded:
            self.rbf_pairs(X, t[2:6])

    def modulate(self, X, OC, SH, out, t, rounded=True):
        if rounded:
            for k in range(0, 8, 2):
                self.pk("mul", X[k], X[k], OC[k])
            self.rbf_pairs(X, t)
            for k in range(0, 8, 2):
                self.pk("add", X[k], X[k], SH[k])
        else:
            for k in range(0, 8, 2):
                self.e(f"v_pk_fma_f32 v[{X[k]}:{X[k]+1}], v[{X[k]}:{X[k]+1}], v[{OC[k]}:{OC[k]+1}], v[{SH[k]}:{SH[k]+1}]")
        for k in range(4):
            self.e(f"v_cvt_pk_bf16_f32 v{out[k]}, v{X[2*k]}, v{X[2*k+1]}")

    def gather(self, loads, vtag, sel, active, sleep=0, pairs=False):
        e = self.e
        top, done = self.lab("gat"), self.lab("gdone")
        for k in range(len(loads)):
            e(f"s_mov_b64 s[{64+2*k}:{65+2*k}], 1")
        e(f"s_mov_b64 exec, {active}\n{top}:")
        for k, (nd, raw, clean, va, so, imm) in enumerate(loads):
            sk = self.lab("gs")
            dst = f"v{raw}" if nd == 1 else f"v[{raw}:{raw+nd-1}]"
            suf = "" if nd == 1 else f"x{nd}"
            if len(loads) > 1:
                e(f"s_cmp_eq_u64 s[{64+2*k}:{65+2*k}], 0\ns_cbranch_scc1 {sk}")
            e(f"buffer_load_dword{suf} {dst}, v{va}, s[32:35], {so} offen offset:{imm} sc1")
            e(f"{sk}:")
        e("s_waitcnt vmcnt(0)")
        for k, (nd, raw, clean, va, so, imm) in enumerate(loads):
            for j in range(nd):
                e(f"v_xor_b32 v{clean+j}, v{raw+j}, v{vtag}")
            if nd == 1:
                chk = clean
            elif nd == 2:
                chk = 1
                e(f"v_or_b32 v1, v{clean}, v{clean+1}")
            else:
                chk = 1
                e(f"v_or3_b32 v1, v{clean}, v{clean+1}, v{clean+2}\nv_or_b32 v1, v1, v{clean+3}")
            if isinstance(sel, int):
                e(f"v_and_b32 v1, {sel}, v{chk}\nv_cmp_ne_u32 s[{64+2*k}:{65+2*k}], 0, v1")
            else:
                e(f"v_cmp_ne_u32_sdwa s[{64+2*k}:{65+2*k}], v{chk}, v2 src0_sel:{sel} src1_sel:DWORD")
        if pairs:
            for k in range(0, len(loads), 2):
                e(f"s_or_b64 s[{64+2*k}:{65+2*k}], s[{64+2*k}:{65+2*k}], s[{66+2*k}:{67+2*k}]")
                e(f"s_mov_b64 s[{66+2*k}:{67+2*k}], s[{64+2*k}:{65+2*k}]")
        e("s_or_b64 s[62:63], s[64:65], s[64:65]")
        for k in range(1, len(loads)):
            e(f"s_or_b64 s[62:63], s[62:63], s[{64+2*k}:{65+2*k}]")
        e(f"s_cbranch_scc0 {done}")
        self.budget()
        if sleep:
            e(f"s_sleep {sleep}")
        e(f"s_branch {top}\n{done}:\ns_mov_b64 exec, -1")

    def issue(self, ld):
        nd, raw, va, so, imm = ld
        dst = f"v{raw}" if nd == 1 else f"v[{raw}:{raw+nd-1}]"
        suf = "" if nd == 1 else f"x{nd}"
        self.e(f"buffer_load_dword{suf} {dst}, v{va}, s[32:35], {so} offen offset:{imm} sc1")

    def gather8(self, loads, vtag, active, skip):
        e = self.e
        top, chk = self.lab("gat"), self.lab("gchk")
        cur = [None]

        def lanes(m):
            if cur[0] != m:
                e(f"s_mov_b64 exec, {m}")
                cur[0] = m
        if skip:
            for ld, m in zip(loads, active):
                lanes(m)
                self.issue(ld)
            e(f"s_branch {chk}")
        e(f"{top}:")
        self.budget()
        cur[0] = None if len(set(active)) > 1 or active[0] != "-1" else "-1"
        for k, (ld, m) in enumerate(zip(loads, active)):
            if skip:
                e(f"s_cmp_lg_u64 s[{64+2*k}:{65+2*k}], 0\ns_cselect_b64 exec, {m}, 0")
            else:
                lanes(m)
            self.issue(ld)
        e(f"{chk}:")
        if skip:
            cur[0] = None
        order = list(range(len(loads)))[::-1]
        lanes(active[order[0]])
        e("s_waitcnt vmcnt(0)")
        for k in order:
            lanes(active[k])
            e(f"v_cmp_ne_u32_sdwa s[{64+2*k}:{65+2*k}], v{loads[k][1]}, v{vtag} src0_sel:BYTE_0 src1_sel:DWORD")
        e("s_or_b64 s[62:63], s[64:65], s[66:67]")
        for k in range(2, len(loads)):
            e(f"s_or_b64 s[62:63], s[62:63], s[{64+2*k}:{65+2*k}]")
        e(f"s_cbranch_scc1 {top}")
        lanes("-1")
        for ld in loads:
            e(f"v_and_b32 v{ld[1]}, 0xffffff00, v{ld[1]}")

    def lds_wait(self, vaddr, off, sreg, need, sleep):
        e = self.e
        top, go = self.lab("lw"), self.lab("lgo")
        e(f"s_cmp_ge_u32 s{sreg}, {need}\ns_cbranch_scc1 {go}\n{top}:")
        e(f"ds_read_b32 v1, v{vaddr} offset:{off}\ns_waitcnt lgkmcnt(0)\nv_readfirstlane_b32 s{sreg}, v1")
        e(f"s_cmp_ge_u32 s{sreg}, {need}\ns_cbranch_scc1 {go}")
        self.budget()
        if sleep:
            e(f"s_sleep {sleep}")
        e(f"s_branch {top}\n{go}:")

    def dma_step(self, vaddr, srd, lds_sreg_or_imm, pol):
        self.e(f"s_mov_b32 m0, {lds_sreg_or_imm}\ns_nop 0")
        self.e(f"buffer_load_dwordx4 v{vaddr}, s[{srd}:{srd+3}], s58 offen {pol} lds")

    def tr_reads(self, dst, vtr, off):
        self.e(f"ds_read_b64_tr_b16 v[{dst}:{dst+1}], v{vtr} offset:{off}")
        self.e(f"ds_read_b64_tr_b16 v[{dst+2}:{dst+3}], v{vtr} offset:{off+512}")

    def loader(self):
        e, D, lev = self.e, self.D, self.lev
        ng = D // 4
        AT = self.atpos

        def loads():
            for k in range(4):
                e(f"buffer_load_dwordx4 v1, s[32:35], s41 offen offset:{k*1024} {self.kvpol} lds")

        def limit():
            e(f"v_min3_u32 v5, v6, v7, v8\ns_nop 0\nv_readfirstlane_b32 s44, v5\ns_lshl_b32 s44, s44, 1\ns_add_u32 s44, s44, {2*NSLOT}")

        e("L_loader:\ns_setprio 3")
        e(f"v_lshlrev_b32 v1, 4, v0\nv_lshlrev_b32 v2, 2, v0\nv_add_u32 v2, {FULL}, v2\nv_mov_b32 v3, {FREE}")
        e("v_mov_b32 v6, 0\nv_mov_b32 v7, 0\nv_mov_b32 v8, 0\nv_mov_b32 v4, 1")
        e("s_lshl_b32 s30, s100, 21\ns_mov_b32 s31, 0x200000\ns_waitcnt lgkmcnt(0)")
        self.stamp(0)
        e("s_add_u32 s32, s6, s30\ns_addc_u32 s33, s7, 0\ns_mov_b32 s34, 0x200000\ns_mov_b32 s35, 0x20000")
        for n in range(ng):
            if n == self.eb:
                e("s_barrier")
            e(f"s_mov_b32 m0, {n*4096}\ns_mov_b32 s41, {n*4096}")
            loads()
        e(f"s_mov_b32 s40, {ng}\ns_mov_b32 s41, {ng*4096}\ns_mov_b32 s44, {2*NSLOT}\ns_mov_b32 s45, {lev.index(D) if self.lev0 is None else self.lev0}")
        e(f"s_lshr_b32 s49, s2, 3\ns_lshl_b32 s48, s49, 5\ns_or_b32 s49, s49, s48\ns_bfe_u32 s49, s49, {0x50000 + self.sh0}")
        e(f"s_mov_b32 s50, {WS_CTR}\ns_and_b32 s48, s49, {self.nsh-1}\ns_mul_i32 s48, s48, {self.cst}\ns_add_u32 s48, s48, s50")
        e("s_mov_b32 s52, 0")
        if self.boost:
            self.mlp_ids()
            e(f"s_cselect_b32 s56, 0, {self.boost[0]}")
        if self.mix:
            e("s_lshr_b32 s53, s2, 1" if self.mix == 3 else "s_mov_b32 s53, s2")
        if self.eb >= ng:
            e("s_barrier")
        e("L_ld0:\ns_cmp_lt_u32 s40, s44\ns_cbranch_scc0 L_lds0\nL_ldb0:")
        e(f"s_and_b32 m0, s41, {NSLOT*8192-1}\ns_waitcnt vmcnt({D-4})")
        loads()
        e("ds_write_b32 v2, v4\ns_waitcnt lgkmcnt(1)\nv_min3_u32 v5, v6, v7, v8\nds_read_b96 v[6:8], v3")
        e(f"v_readfirstlane_b32 s44, v5\nv_add_u32 v4, 1, v4\ns_add_u32 s40, s40, 1\ns_add_u32 s41, s41, 4096")
        e(f"s_lshl_b32 s44, s44, 1\ns_add_u32 s44, s44, {2*NSLOT}")
        for k, n in enumerate(self.prog or []):
            e(f"s_cmp_eq_u32 s40, {n}\ns_cbranch_scc1 L_pq{k}\nL_pr{k}:")
        e(f"s_cmp_lt_u32 s40, {self.cstart}\ns_cbranch_scc1 L_ld0")
        depths = sorted(set(lev))
        e("L_lap:\ns_sub_u32 s51, s44, s40")
        for d in depths[:0:-1]:
            e(f"s_cmp_ge_u32 s45, {lev.index(d)}\ns_cbranch_scc1 L_lap{d}")
        stubs = []
        for dd in depths:
            d = dd % 100
            G = self.G
            pub = [m for m in range(0, 128, G) if (m - d + G) % 8 < G]
            e(f"L_lap{dd}:\ns_sub_u32 s43, s40, {-2*((pub[0] - d + G)//8)}\nv_mov_b32 v4, s43")
            for g in range(32):
                if self.fin and g == self.fin[0]:
                    e("s_cmp_eq_u32 s40, 992\ns_cbranch_scc1 L_final")
                if g % 4 == 0:
                    e(f"s_cmp_lt_u32 s51, {g+4}\ns_cbranch_scc1 L_lx{dd}_{g}\nL_lr{dd}_{g}:")
                    stubs.append((dd, g))
                e(f"s_mov_b32 m0, {g*4096}")
                wrote = False
                for k in range(4):
                    if k % G == 0:
                        e(f"s_waitcnt vmcnt({d-G})")
                    e(f"buffer_load_dwordx4 v1, s[32:35], s41 offen offset:{k*1024} {self.kvpol} lds")
                    if k % G == G - 1 and 4 * g + k - G + 1 in pub:
                        e("ds_write_b32 v2, v4\nv_add_u32 v4, 2, v4")
                        wrote = True
                e("s_add_u32 s41, s41, 4096")
                fresh = g < AT or g >= 30
                if g % 8 == 6 and fresh:
                    e("ds_read_b96 v[6:8], v3")
                if g % 8 == 7 and fresh:
                    e(f"s_waitcnt lgkmcnt({1 if wrote and g != 31 else 0})")
                    limit()
                    if g != 31:
                        e("s_sub_u32 s51, s44, s40")
                if g == AT - 1:
                    e("s_mov_b32 s47, 1\ns_atomic_add s47, s[28:29], s48 glc")
            if dd != depths[-1]:
                e("s_branch L_lapend")
        sh = (256 // self.nsh // (len(lev) - (self.boost[2] if self.boost else 0))).bit_length() - 1
        e("L_lapend:")
        if self.pi:
            kp, ki, lk, cen = self.pi
            e(f"s_sub_i32 s47, s47, {128//self.nsh}\ns_ashr_i32 s46, s52, {lk}\ns_sub_i32 s52, s52, s46\ns_add_i32 s52, s52, s47")
            e(f"s_mul_i32 s45, s47, {kp}\ns_mul_i32 s46, s52, {ki}\ns_add_i32 s45, s45, s46\ns_add_i32 s45, s45, {cen}")
            e("s_ashr_i32 s45, s45, 8\ns_max_i32 s45, s45, 0")
        else:
            e(f"s_lshr_b32 s45, s47, {sh}")
        if self.boost:
            e(f"s_cmp_lt_u32 s40, s56\ns_cselect_b32 s46, {self.boost[1]}, 0\ns_add_u32 s45, s45, s46")
        if self.mix:
            e(f"s_sub_u32 s46, s40, {self.mixat}\ns_cmp_lt_u32 s46, {self.mixto-self.mixat}\ns_cselect_b32 s46, s53, 0")
            e(f"s_add_u32 s49, s49, s46\ns_add_u32 s50, s50, {self.cst*self.nsh}")
            if self.mix == 2:
                e("s_sub_u32 s53, 0, s53")
            e(f"s_and_b32 s48, s49, {self.nsh-1}\ns_mul_i32 s48, s48, {self.cst}\ns_add_u32 s48, s48, s50\ns_add_u32 s40, s40, 32")
        elif self.rot:
            e(f"s_lshl_b32 s48, s49, 5\ns_or_b32 s49, s49, s48\ns_bfe_u32 s49, s49, {0x50000 + self.rot}\ns_add_u32 s50, s50, {self.cst*self.nsh}")
            e(f"s_and_b32 s48, s49, {self.nsh-1}\ns_mul_i32 s48, s48, {self.cst}\ns_add_u32 s48, s48, s50\ns_add_u32 s40, s40, 32")
        else:
            e(f"s_add_u32 s48, s48, {self.cst*self.nsh}\ns_add_u32 s40, s40, 32")
        if self.stamps:
            e("s_add_u32 s96, s96, s45")
        for k, n in enumerate(self.prog or []):
            e(f"s_cmp_lg_u32 s40, {n}\ns_cbranch_scc1 L_pg{k}")
            self.stamp(3 + k)
            e(f"L_pg{k}:")
        e("s_cmp_lt_u32 s41, 0x200000\ns_cbranch_scc1 L_lap")
        last = max(lev)
        if self.fin:
            g0, last = self.fin
            e("s_branch L_tov\nL_final:\nv_subrev_u32 v4, 2, v4")
            for g in range(g0, 32):
                if g % 4 == 0:
                    e(f"s_cmp_lt_u32 s51, {g+4}\ns_cbranch_scc1 L_lxf_{g}\nL_lrf_{g}:")
                    stubs.append(("f", g))
                e(f"s_mov_b32 m0, {g*4096}\ns_waitcnt vmcnt({last-4})")
                loads()
                e("s_add_u32 s41, s41, 4096")
                if (g - last // 4 + 1) % 2 == 0:
                    e(f"v_max_u32 v4, {992 + g - last//4 + 1}, v4\nds_write_b32 v2, v4")
        else:
            e("s_cmp_lt_u32 s40, 1024\ns_cbranch_scc1 L_tov")
            e("v_subrev_u32 v4, 2, v4")
        for k in range((last + 3) // 4, -1, -1):
            if k % 2 == 0 and 4 * k < 64:
                e(f"v_max_u32 v4, {1024-k}, v4\ns_waitcnt vmcnt({4*k})\nds_write_b32 v2, v4")
        if self.fin:
            e("s_waitcnt lgkmcnt(0)")
        self.stamp(2)
        e("s_branch L_gtail")
        e("L_tov:\ns_add_u32 s32, s8, s30\ns_addc_u32 s33, s9, 0\ns_mov_b32 s41, 0")
        self.stamp(1)
        e("s_branch L_lap")
        e("L_lds0:\ns_sleep 1\nds_read_b96 v[6:8], v3\ns_waitcnt lgkmcnt(0)")
        limit()
        self.budget()
        if self.stamps:
            e("s_add_u32 s98, s98, 1")
        e("s_cmp_lt_u32 s40, s44\ns_cbranch_scc1 L_ldb0\ns_branch L_lds0")
        for k, n in enumerate(self.prog or []):
            e(f"L_pq{k}:")
            self.stamp(3 + k)
            e(f"s_branch L_pr{k}")
        for d, g in stubs:
            e(f"L_lx{d}_{g}:\ns_mov_b32 s46, {g+4}\ns_call_b64 s[60:61], L_room\ns_branch L_lr{d}_{g}")
        e("L_room:\nds_read_b96 v[6:8], v3\ns_waitcnt lgkmcnt(0)")
        limit()
        self.budget()
        if self.stamps:
            e("s_add_u32 s98, s98, 1")
        e("s_sub_u32 s51, s44, s40\ns_cmp_lt_u32 s51, s46\ns_cbranch_scc1 L_room\ns_setpc_b64 s[60:61]")

    def consumer(self):
        e = self.e
        NP = self.prepull
        BUF = [64 + 32 * u for u in range(NP)]
        QB, DQ, O0, O1, AP, MK, P = 32, 16, 20, 24, 32, 28, 12
        vK, vV, vA, vM, vS, vSL = 3, 4, 5, 6, 7, 8
        vF, vT, vOA = 48, 49, 50

        def pull(buf, vbase, sleep=1):
            e("s_lshl_b32 s43, s40, 1\ns_add_u32 s43, s43, 2")
            self.lds_wait(vM, FULL - MISC, 42, "s43", sleep)
            e(f"s_and_b32 s44, s40, {NSLOT-1}\ns_lshl_b32 s44, s44, 13\nv_add_u32 v{vA}, s44, v{vbase}")
            for k in range(8):
                e(f"ds_read_b128 v[{buf+4*k}:{buf+4*k+3}], v{vA} offset:{(k>>1)*2048+(k&1)*256}")

        def release():
            e(f"v_mov_b32 v1, s41\nds_write_b32 v9, v1")

        def qk(buf, counted):
            for k in range(8):
                if counted:
                    e(f"s_waitcnt lgkmcnt({7-k})")
                c = "0" if k == 0 else f"v[{DQ}:{DQ+3}]"
                e(f"v_mfma_f32_16x16x32_bf16 v[{DQ}:{DQ+3}], v[{buf+4*k}:{buf+4*k+3}], v[{QB+4*k}:{QB+4*k+3}], {c}")
            if counted:
                release()
                e("s_nop 5")
            else:
                e("s_nop 7")
            e(f"v_mov_b32_dpp v10, v{DQ} quad_perm:[0,0,0,0] {DPPF}")
            e(f"v_mov_b32_dpp v11, v{DQ+2} quad_perm:[2,2,2,2] {DPPF}\ns_nop 0")
            e(f"v_add_f32_dpp v10, v{DQ+1}, v10 quad_perm:[1,1,1,1] {DPPF}")
            e(f"v_add_f32_dpp v11, v{DQ+3}, v11 quad_perm:[3,3,3,3] {DPPF}")
            e("v_add_f32 v10, v10, v11")
            self.rbf1(10)

        e("L_consumer:\ns_sub_u32 s30, s3, 1\ns_mov_b32 s31, 0x200000\ns_mov_b32 s42, 0\ns_waitcnt lgkmcnt(0)\ns_barrier")
        if self.l2warm:
            K = NAME + "_kernel"
            e("s_cmp_lg_u32 s30, 1\ns_cbranch_scc1 L_nol2\ns_getpc_b64 s[60:61]\nL_pc:")
            e(f"s_sub_u32 s60, s60, L_pc-{K}\ns_subb_u32 s61, s61, 0\ns_lshr_b32 s62, s2, 3\ns_lshl_b32 s62, s62, 10")
            e(f"v_lshl_add_u32 v10, v0, 4, s62\nv_min_u32 v10, L_last-{K}-16, v10\nv_and_b32 v10, -16, v10")
            e("v_mov_b32 v11, s61\nv_add_co_u32 v10, vcc, s60, v10\ns_nop 1\nv_addc_co_u32 v11, vcc, 0, v11, vcc")
            e("global_load_dwordx4 v[16:19], v[10:11], off\nL_nol2:")
        e(f"v_mov_b32 v{vM}, {MISC}")
        e("v_lshrrev_b32 v13, 4, v0\nv_and_b32 v14, 15, v0\nv_bfe_u32 v15, v0, 2, 2\nv_and_b32 v2, 3, v0")
        e(f"v_lshlrev_b32 v{vK}, 6, v13\nv_lshl_add_u32 v{vK}, v2, 4, v{vK}\nv_mov_b32 v12, v{vK}")
        e(f"v_lshl_add_u32 v{vK}, v15, 9, v{vK}")
        e(f"v_lshlrev_b32 v{vV}, 9, v13\nv_lshl_add_u32 v{vV}, v14, 4, v{vV}")
        e(f"s_mul_i32 s45, s30, {SC_STRIDE}\ns_add_u32 s45, s45, {SC}")
        e(f"v_and_b32 v{vS}, 60, v0\nv_add_u32 v{vS}, s45, v{vS}")
        e(f"v_lshlrev_b32 v{vSL}, 4, v0\nv_add_u32 v{vSL}, s45, v{vSL}")
        e(f"s_lshl_b32 s46, s30, 2\ns_add_u32 s46, s46, {FREE}\nv_mov_b32 v9, s46")
        e("v_and_b32 v1, 1, v0\nv_mov_b32 v10, 0xffff\nv_lshlrev_b32 v1, 4, v1\nv_lshlrev_b32 v10, v1, v10")
        e("v_lshrrev_b32 v1, 1, v14")
        for r in range(4):
            e(f"v_cmp_eq_u32 vcc, {r}, v1\ns_nop 1\nv_cndmask_b32 v{MK+r}, 0, v10, vcc")
        e("s_mov_b32 s40, s30")
        for u in range(NP):
            pull(BUF[u], vK)
            e("s_add_u32 s41, s40, 3\ns_waitcnt lgkmcnt(0)")
            release()
            e("s_mov_b32 s40, s41")
        e("s_mov_b32 s47, 0")
        self.stamp(0)
        self.lds_wait(vM, QRDY - MISC, 47, 1, 1)
        self.stamp(1)
        e(f"v_add_u32 v12, {QV}, v12")
        e(f"ds_read_b128 v[{O0}:{O0+3}], v12\nds_read_b128 v[{O0+4}:{O0+7}], v12 offset:256\ns_waitcnt vmcnt(0)")
        for r in range(4):
            e(f"v_mov_b32 v{DQ+r}, 0xff800000")
        e(f"ds_write_b128 v{vSL}, v[{DQ}:{DQ+3}] offset:5120\ns_waitcnt lgkmcnt(0)")
        for t in range(4):
            e(f"v_cmp_eq_u32 vcc, {t}, v15\ns_nop 1")
            for k in range(8):
                e(f"v_cndmask_b32 v{QB+8*t+k}, 0, v{O0+k}, vcc")
        for r in range(8):
            e(f"v_mov_b32 v{O0+r}, 0")
        qk(BUF[0], False)
        e(f"ds_write_b32 v{vS}, v10")
        e(f"v_add_u32 v2, {64*NP}, v{vS}\ns_add_u32 s48, s30, 256")
        e("L_kloop:")
        e("s_add_u32 s41, s40, 3\ns_cmp_lt_u32 s41, 256\ns_cselect_b32 s41, s41, s48")
        pull(BUF[0], vK)
        qk(BUF[0], True)
        e("ds_write_b32 v2, v10\nv_add_u32 v2, 64, v2")
        e("s_mov_b32 s40, s41\ns_cmp_lt_u32 s40, 256\ns_cbranch_scc1 L_kloop")
        for u in range(1, NP):
            qk(BUF[u], False)
            e(f"ds_write_b32 v{vS}, v10 offset:{64*u}")
        self.stamp(2)
        S = BUF[0]
        for k in range(6):
            e(f"ds_read_b128 v[{S+4*k}:{S+4*k+3}], v{vSL} offset:{1024*k}")
        e("s_waitcnt lgkmcnt(0)")
        e(f"v_max_f32 v10, v{S}, v{S+1}")
        for k in range(2, 24, 2):
            e(f"v_max3_f32 v10, v10, v{S+k}, v{S+k+1}")
        self.wave_reduce("v_max_f32", [10])
        e(f"v_readlane_b32 s50, v10, 63\ns_mov_b32 s51, {hex(C2)}\ns_nop 0")
        for k in range(24):
            e(f"v_subrev_f32 v{S+k}, s50, v{S+k}")
        for k in range(24):
            e(f"v_mul_f32 v{S+k}, s51, v{S+k}")
        for k in range(24):
            e(f"v_exp_f32 v{S+k}, v{S+k}")
        e(f"v_add_f32 v10, v{S}, v{S+1}")
        for k in range(2, 24):
            e(f"v_add_f32 v10, v10, v{S+k}")
        for k in range(24):
            e(f"v_cvt_pk_bf16_f32 v{S+k}, v{S+k}, v{S+k}")
        for k in range(6):
            e(f"ds_write_b128 v{vSL}, v[{S+4*k}:{S+4*k+3}] offset:{1024*k}")
        self.wave_reduce("v_add_f32", [10])
        e(f"v_readlane_b32 s52, v10, 63\nv_mov_b32 v{DQ}, s50\nv_mov_b32 v{DQ+2}, 1\nv_mov_b32 v{DQ+3}, 1")
        e(f"v_mov_b32 v{DQ+1}, s52\ns_lshl_b32 s46, s30, 4\ns_add_u32 s46, s46, {ML}\nv_mov_b32 v1, s46")
        e(f"ds_write_b128 v1, v[{DQ}:{DQ+3}]\nv_mov_b32 v2, v{vS}\ns_mov_b32 s49, 460")
        self.srd(32, 28, WS_SIZE)
        e(f"s_mov_b32 s53, 0xffffff00\ns_lshl_b32 s54, s100, 10\ns_add_u32 s54, s54, {WS_OP}")
        e(f"v_lshlrev_b32 v{vOA}, 4, v0")
        self.stamp(3)
        T = BUF[1]

        def partials():
            e(f"ds_read_b64 v[10:11], v{vM} offset:{PF-MISC}")
            e(f"ds_read_b128 v[{T}:{T+3}], v{vSL} offset:{SC_STRIDE}\nds_read_b128 v[{T+4}:{T+7}], v{vSL} offset:{2*SC_STRIDE}")

        def pv(last):
            e(f"s_add_u32 s41, s40, 3\nds_read_b32 v{P}, v2\nv_add_u32 v2, 64, v2\ns_waitcnt lgkmcnt(0)")
            for t in range(4):
                for r in range(4):
                    e(f"v_and_b32_dpp v{AP+4*t+r}, v{P}, v{MK+r} row_newbcast:{4*t} {DPPF}")
            pull(BUF[0], vV, self.csleep if last else 1)
            if last:
                partials()
            for k in range(8):
                o = O0 if k % 2 == 0 else O1
                a = AP + 4 * (k >> 1)
                e(f"s_waitcnt lgkmcnt({7-k+3*last})")
                e(f"v_mfma_f32_16x16x32_bf16 v[{o}:{o+3}], v[{a}:{a+3}], v[{BUF[0]+4*k}:{BUF[0]+4*k+3}], v[{o}:{o+3}]")

        e("L_vloop:")
        pv(False)
        release()
        e("s_mov_b32 s40, s41\ns_cmp_lt_u32 s40, s49\ns_cbranch_scc1 L_vloop")
        e("s_cmp_lt_u32 s40, 511\ns_cbranch_scc1 L_vmid")
        e("s_cmp_lg_u32 s30, 0\ns_cbranch_scc1 L_cpart")
        pv(True)
        e("L_csum:\ns_waitcnt lgkmcnt(0)\nv_and_b32 v10, v10, v11")
        self.pk("add", T, T, T + 4)
        self.pk("add", T + 2, T + 2, T + 6)
        e("v_readfirstlane_b32 s46, v10\ns_cmp_eq_u32 s46, 0\ns_cbranch_scc1 L_cretry\ns_nop 0")
        for r in range(4):
            e(f"v_permlane32_swap_b32 v{O0+r}, v{O1+r}")
        for r in range(4):
            e(f"v_fmac_f32 v{T+r}, v{O0+r}, v{vF}")
        e(f"v_and_or_b32 v{T}, v{T}, s53, v{vT}")
        if self.fast:
            e("s_cmp_lg_u32 s47, 2\ns_cbranch_scc1 L_cfar")
            e(f"buffer_store_dwordx4 v[{T}:{T+3}], v{vOA}, s[32:35], s54 offen {self.npol}")
            self.stamp(4)
            e("s_branch L_gtail\nL_cfar:")
        e(f"buffer_store_dwordx4 v[{T}:{T+3}], v{vOA}, s[32:35], s54 offen sc1")
        self.stamp(4)
        e("s_branch L_gtail")
        e("L_cretry:")
        self.budget()
        partials()
        e("s_branch L_csum")
        e("L_cpart:")
        for r in range(4):
            e(f"v_permlane32_swap_b32 v{O0+r}, v{O1+r}")
        for r in range(4):
            e(f"v_mul_f32 v{O0+r}, v{O0+r}, v{vF}")
        e(f"v_mov_b32 v1, 1\nds_write_b128 v{vSL}, v[{O0}:{O0+3}]\nds_write_b32 v9, v1 offset:{PF-4-FREE}\ns_branch L_gtail")
        e("L_vmid:\ns_mov_b32 s47, 0")
        self.lds_wait(vM, FS + 12 - MISC, 47, 1, 2)
        e(f"ds_read_b32 v{vF}, v9 offset:{FS-FREE}\nds_read_b32 v{vT}, v{vM} offset:{TAG-MISC}")
        e(f"s_mov_b32 s49, 511\ns_waitcnt lgkmcnt(0)\nv_and_b32 v{vT}, 0xff, v{vT}")
        e("s_branch L_vloop")

    def unit_mfma_lds(self, B, A, vA, nsteps, D, off=0):
        for s in range(nsteps):
            self.e(f"ds_read_b128 v[{A+4*s}:{A+4*s+3}], v{vA} offset:{off+64*s}")
        for s in range(nsteps):
            self.e(f"s_waitcnt lgkmcnt({nsteps-1-s})")
            c = "0" if s == 0 else f"v[{D}:{D+3}]"
            self.e(f"v_mfma_f32_16x16x32_bf16 v[{D}:{D+3}], v[{A+4*s}:{A+4*s+3}], v[{B+4*s}:{B+4*s+3}], {c}")
        self.e("s_nop 7")

    def unit_mfma_dpp(self, B, src, A, D):
        def bc(s):
            for r in (0, 2):
                d = A + 4 * (s % 3) + r
                self.e(f"v_mov_b64_dpp v[{d}:{d+1}], v[{src+r}:{src+r+1}] row_newbcast:{s} {DPPF}")
        self.e("s_nop 1")
        bc(0)
        for s in range(14):
            if s < 13:
                bc(s + 1)
            else:
                self.e("s_nop 0")
            a = A + 4 * (s % 3)
            c = "0" if s == 0 else f"v[{D}:{D+3}]"
            self.e(f"v_mfma_f32_16x16x32_bf16 v[{D}:{D+3}], v[{a}:{a+3}], v[{B+4*s}:{B+4*s+3}], {c}")
        self.e("s_nop 7")

    def soft_barrier(self, vM):
        self.e(f"s_add_u32 s45, s45, 4\nv_mov_b32 v1, 1\ns_mov_b64 exec, 1\n"
               f"ds_add_u32 v{vM}, v1 offset:{BAR-MISC}\ns_mov_b64 exec, -1")
        self.lds_wait(vM, BAR - MISC, 44, "s45", 2)

    def unit_load(self, dst, rounds, srd, stride, advance, vM, pol):
        e = self.e
        e(f"s_lshl_b32 s60, s30, 4\nv_add_u32 v9, s60, v6\nv_mul_u32_u24 v9, {stride}, v9\nv_add_u32 v9, v9, v7")
        e(f"v_add_u32 v14, {8*stride}, v9")
        for rd in range(rounds):
            self.dma_step(9, srd, "s57", pol)
            self.dma_step(14, srd, "s59", pol)
            e(f"s_add_u32 s58, s58, {advance}\ns_waitcnt vmcnt(0)")
            self.soft_barrier(vM)
            self.tr_reads(dst + 8 * rd, 8, 0)
            self.tr_reads(dst + 8 * rd + 4, 8, 4096)
            e("s_waitcnt lgkmcnt(0)")
            self.soft_barrier(vM)

    def sum_round(self, a, b, n, tmp):
        for k in range(n):
            self.e(f"v_add_f32 v{a+k}, v{a+k}, v{b+k}")
        if n == 1:
            self.rbf1(a)
        else:
            self.rbf_pairs(list(range(a, a + n)), tmp)

    def mlp_ids(self):
        e = self.e
        e("s_and_b32 s60, s100, 7")
        if not self.xl:
            e("s_bfe_u32 s54, s2, 0x10005\ns_bfe_u32 s55, s2, 0x20003\ns_lshl_b32 s61, s60, 2\ns_add_u32 s55, s55, s61")
            e("s_lshr_b32 s61, s2, 6\ns_cmp_eq_u32 s61, 1")
        elif self.xm:
            e("s_bfe_u32 s54, s2, 0x10002\ns_lshr_b32 s55, s2, 6\ns_mul_i32 s55, s55, 7\ns_add_u32 s55, s55, s60")
            e("s_and_b32 s61, s2, 3\ns_cmp_eq_u32 s61, 2")
        else:
            e("s_bfe_u32 s54, s2, 0x10006\ns_bfe_u32 s55, s2, 0x20001\ns_mul_i32 s55, s55, 7\ns_add_u32 s55, s55, s60")
            e("s_and_b32 s61, s2, 0x81\ns_cmp_eq_u32 s61, 0")
        e("s_cselect_b32 s60, s60, 7\ns_lshl_b32 s101, s54, 5\ns_add_u32 s101, s101, s55")
        e("s_cmp_eq_u32 s60, 7\ns_cselect_b32 s101, 64, s101")

    def service(self):
        e = self.e
        WO, W1, W2 = 32, 64, 120
        OCB, SB, GA, XP, GB, F = 176, 184, 192, 194, 196, 240
        RAW, AD, DD = 200, 232, 244
        vT8, vT16, vM, vT3 = 10, 11, 12, 252
        LM, HM = "s[50:51]", "s[52:53]"
        e("L_service:\ns_sub_u32 s30, s3, 4\ns_mov_b32 s31, 0x80000")
        e("s_and_b32 s48, s100, 7\ns_lshr_b32 s49, s100, 3")
        e("s_mov_b32 s50, 0x3fff3fff\ns_mov_b32 s51, 0x3fff3fff\ns_mov_b32 s52, 0x0fffffff\ns_mov_b32 s53, 0x0fffffff")
        e("v_mov_b32 v2, 0\nv_lshrrev_b32 v3, 4, v0\nv_and_b32 v4, 15, v0")
        e("v_lshlrev_b32 v5, 6, v4\nv_lshl_add_u32 v5, v3, 4, v5")
        e("v_lshrrev_b32 v6, 3, v0\nv_and_b32 v7, 7, v0\nv_lshlrev_b32 v7, 4, v7")
        e("v_lshlrev_b32 v8, 10, v3\nv_bfe_u32 v1, v0, 2, 2\nv_lshl_add_u32 v8, v1, 7, v8")
        e("v_and_b32 v1, 3, v0\nv_lshl_add_u32 v8, v1, 3, v8")
        e(f"v_mov_b32 v{vM}, {MISC}\ns_mov_b32 s47, 0\ns_waitcnt lgkmcnt(0)\ns_barrier")
        self.srd(32, 28, WS_SIZE)
        e("s_cmp_eq_u32 s30, 0\ns_cbranch_scc1 L_pro")
        self.lds_wait(vM, QRDY - MISC, 47, 1, 8)
        if self.vtouch:
            e("s_lshl_b32 s60, s100, 21\ns_add_u32 s36, s8, s60\ns_addc_u32 s37, s9, 0\ns_mov_b32 s38, 0x200000\ns_mov_b32 s39, 0x20000")
            e("s_cmp_lg_u32 s30, 1\ns_cbranch_scc1 L_notouch\nbuffer_load_dword v16, v2, s[36:39], 0 offen nt\nL_notouch:")
        e(f"ds_read_b32 v1, v{vM} offset:{TAG-MISC}\ns_waitcnt lgkmcnt(0)\nv_readfirstlane_b32 s56, v1")
        e(f"v_and_b32 v{vT8}, 0xff, v1\nv_and_b32 v{vT16}, 0xffff, v1\nv_and_b32 v{vT3}, 7, v1\ns_branch L_bg")

        PB, PA, PRAW, PCL, PN, PC, PD = 32, 144, 144, 176, 208, 224, 232
        e("L_pro:")
        self.stamp(0)
        e("s_load_dword s56, s[28:29], 0")
        e("s_cmp_ge_u32 s2, 128\ns_cselect_b32 s55, s100, s2" if self.qloc else "s_mov_b32 s55, s2")
        e("s_and_b32 s54, s55, 1\ns_bfe_u32 s55, s55, 0x60001")
        e("s_cmp_ge_u32 s2, 128")
        e("s_cselect_b32 s36, s4, s20\ns_cselect_b32 s37, s5, s21\ns_mov_b32 s38, 1792\ns_mov_b32 s39, 0x20000")
        e("s_cselect_b32 s40, s10, s22\ns_cselect_b32 s41, s11, s23\ns_mov_b32 s43, 0x20000")
        e(f"s_mov_b32 s46, 5376\ns_cselect_b32 s46, 8192, s46\ns_mul_i32 s42, s46, 448")
        e("s_cbranch_scc1 L_unit\ns_cmp_lt_u32 s2, 84\ns_cbranch_scc1 L_unit")
        e("s_waitcnt lgkmcnt(0)\ns_add_u32 s56, s56, 1")
        e(f"s_and_b32 s60, s56, 0xff\nv_mov_b32 v{vT8}, s60\ns_and_b32 s60, s56, 0xffff\nv_mov_b32 v{vT16}, s60\nv_and_b32 v{vT3}, 7, v{vT8}")
        e("s_branch L_getq")
        e("L_unit:")
        for k in range(8):
            e(f"v_mov_b32 v{PC+k}, 0")
        if self.lev:
            per = -(-((1024 - 64) // self.period * self.nsh) // 28)
            assert per <= 64 and per * 28 * self.cst <= WS_SIZE - WS_CTR
            e(f"s_cmp_ge_u32 s2, 28\ns_cbranch_scc1 L_noz\ns_mul_i32 s58, s2, {per*self.cst}\ns_add_u32 s58, s58, {WS_CTR}")
            for k in range(0, per, 16):
                e(f"v_lshrrev_b32 v1, 2, v0\nv_add_u32 v1, {k}, v1\nv_and_b32 v9, 3, v0\nv_lshlrev_b32 v9, 4, v9")
                e(f"v_mul_u32_u24 v13, {self.cst}, v1\nv_add_u32 v9, v9, v13")
                e(f"v_cmp_gt_u32 vcc, {per}, v1\ns_and_saveexec_b64 s[62:63], vcc")
                if self.ctouch:
                    e("buffer_load_dword v16, v9, s[32:35], s58 offen")
                e(f"buffer_store_dwordx4 v[{PC}:{PC+3}], v9, s[32:35], s58 offen sc1\ns_mov_b64 exec, -1")
            e("L_noz:")
        e("v_lshrrev_b32 v1, 5, v0\nv_and_b32 v15, 31, v0\nv_mul_u32_u24 v13, 896, v1\nv_lshl_add_u32 v13, v15, 4, v13")
        e("s_mul_i32 s58, s54, 448\ns_sub_u32 s59, 448, s58")
        e(f"s_mov_b64 exec, {HM}")
        e(f"buffer_load_dwordx4 v[{PC}:{PC+3}], v13, s[36:39], s58 offen")
        e(f"buffer_load_dwordx4 v[{PC+4}:{PC+7}], v13, s[36:39], s59 offen")
        e("s_mov_b64 exec, -1")
        e("v_mul_u32_u24 v9, s46, v6\nv_add_u32 v9, v9, v7")
        e("s_mul_i32 s58, s54, 224\ns_mul_i32 s58, s58, s46\ns_lshl_b32 s60, s55, 7\ns_add_u32 s58, s58, s60\ns_lshl_b32 s59, s46, 3")
        for n in range(28):
            self.dma_step(9, 40, PST + 1024 * n, self.wpol)
            e("s_add_u32 s58, s58, s59")
        e(f"v_mul_u32_u24 v9, {2688*4}, v1\nv_lshl_add_u32 v9, v15, 5, v9")
        e(f"v_mul_u32_u24 v13, 448, v1\nv_lshl_add_u32 v13, v15, 4, v13\nv_add_u32 v13, {AIM}, v13")
        e(f"v_bfe_u32 v1, v0, 2, 1\nv_mul_u32_u24 v14, 448, v1\nv_lshl_add_u32 v14, v3, 4, v14\nv_add_u32 v14, {AIM}, v14")
        e(f"v_add_u32 v15, {PST}, v8")
        e("s_waitcnt lgkmcnt(0)\ns_add_u32 s56, s56, 1")
        e(f"s_and_b32 s60, s56, 0xff\nv_mov_b32 v{vT8}, s60\ns_and_b32 s60, s56, 0xffff\nv_mov_b32 v{vT16}, s60\nv_and_b32 v{vT3}, 7, v{vT8}")
        e("s_waitcnt vmcnt(28)")
        X = list(range(PN, PN + 8))
        self.unpack(list(range(PC, PC + 8)), list(range(PN, PN + 16)))
        e("s_cmp_ge_u32 s2, 128\ns_cbranch_scc1 L_ln1")
        self.silu(X, list(range(PN + 8, PN + 16)))
        for k in range(4):
            e(f"v_cvt_pk_bf16_f32 v{PC+k}, v{X[2*k]}, v{X[2*k+1]}")
        e("s_branch L_frag\nL_ln1:")
        self.layernorm(X, list(range(16, 26)), extra=list(range(PN + 8, PN + 16)))
        e("L_frag:\ns_waitcnt vmcnt(0)")
        self.stamp(1)
        for st in range(7):
            for u in range(4):
                self.tr_reads(PB + 16 * st + 4 * u, 15, 4096 * st + 32 * u)
        self.stamp(2)
        e("s_cmp_lt_u32 s2, 128\ns_cbranch_scc1 L_mm")
        e(f"s_mul_i32 s58, s54, 896\ns_add_u32 s58, s58, {WS_MOD}\ns_add_u32 s59, s58, {2*2688*4}")
        loads = []
        for p in range(2):
            for m in range(2):
                for hf in range(2):
                    k = (p * 2 + m) * 2 + hf
                    loads.append((4, PRAW + 4 * k, PCL + 4 * k, 9, f"s{58+p}", m * 448 * 4 + hf * 16))
        if self.mat:
            self.lds_wait(vM, FULL - MISC, 47, self.mat, 2)
        self.gather(loads, vT3, 7, HM, pairs=True, sleep=self.msleep)
        self.stamp(3)
        self.sum_round(PCL, PCL + 16, 16, list(range(16, 24)))
        CA = list(range(PCL + 8, PCL + 16))
        for r in CA:
            e(f"v_add_f32 v{r}, 1.0, v{r}")
        self.rbf_pairs(CA, list(range(16, 20)))
        self.modulate(X, CA, list(range(PCL, PCL + 8)), list(range(PC, PC + 4)), list(range(16, 20)))
        e("L_mm:")
        e(f"s_mov_b64 exec, {HM}\nds_write_b128 v13, v[{PC}:{PC+3}]\ns_mov_b64 exec, -1\ns_waitcnt lgkmcnt(0)")
        for st in range(7):
            e(f"ds_read_b128 v[{PA+4*st}:{PA+4*st+3}], v14 offset:{64*st}")
        e("s_lshl_b32 s46, s46, 1\nv_and_b32 v1, 1, v3\nv_mul_u32_u24 v9, s46, v1\nv_lshrrev_b32 v1, 5, v0")
        e("v_lshl_add_u32 v9, v1, 6, v9\nv_lshl_add_u32 v9, v4, 2, v9")
        e(f"s_mul_i32 s58, s54, s46\ns_lshl_b32 s58, s58, 1\ns_lshl_b32 s60, s55, 8\ns_add_u32 s58, s58, s60")
        e(f"s_mov_b32 s60, {WS_MOD}\ns_cmp_ge_u32 s2, 128\ns_cselect_b32 s60, {WS_Q}, s60\ns_add_u32 s58, s58, s60")
        for st in range(7):
            e(f"s_waitcnt lgkmcnt({6-st})")
            for u in range(4):
                d, b = PD + 4 * u, PB + 16 * st + 4 * u
                c = "0" if st == 0 else f"v[{d}:{d+3}]"
                e(f"v_mfma_f32_16x16x32_bf16 v[{d}:{d+3}], v[{PA+4*st}:{PA+4*st+3}], v[{b}:{b+3}], {c}")
        e("s_nop 7")
        for v in range(2):
            e(f"v_mov_b32_dpp v{PD+8*v}, v{PD+8*v+4} quad_perm:[0,1,2,3] row_mask:0xc bank_mask:0xf")
        for v in range(2):
            e(f"v_and_or_b32 v{PD+8*v}, v{PD+8*v}, -8, v{vT3}")
            e(f"buffer_store_dword v{PD+8*v}, v9, s[32:35], s58 offen offset:{128*v} sc1")
        self.stamp(4)
        e("L_getq:")
        if self.qat:
            self.lds_wait(vM, FULL - MISC, 47, self.qat, 2)
        e(f"v_lshlrev_b32 v9, 4, v0\ns_lshl_b32 s58, s49, 10\ns_add_u32 s58, s58, {WS_Q}\ns_add_u32 s59, s58, 0x8000")
        self.gather([(4, PRAW, PCL, 9, "s58", 0), (4, PRAW + 4, PCL + 4, 9, "s59", 0)], vT3, 7, "-1",
                    sleep=self.qsleep)
        for k in range(4):
            e(f"v_add_f32 v{PCL+k}, v{PCL+k}, v{PCL+4+k}")
        e(f"v_cvt_pk_bf16_f32 v16, v{PCL}, v{PCL+1}\nv_cvt_pk_bf16_f32 v17, v{PCL+2}, v{PCL+3}")
        e(f"v_lshl_add_u32 v1, v0, 3, v{vM}\nds_write_b64 v1, v[16:17] offset:{QV-MISC}")
        e(f"v_mov_b32 v18, 1\nv_mov_b32 v19, s56\nds_write_b64 v{vM}, v[18:19] offset:{QRDY-MISC}")
        self.stamp(5)

        e("L_bg:")
        e(f"s_lshl_b32 s57, s30, 11\ns_add_u32 s57, s57, {STG}\ns_add_u32 s59, s57, 1024")
        e(f"s_lshl_b32 s60, s30, 5\ns_add_u32 s60, s60, {STG}\nv_add_u32 v8, s60, v8\ns_mov_b32 s44, 0\ns_mov_b32 s45, 0")
        self.mlp_ids()
        e("s_cmp_eq_u32 s48, 7\ns_cbranch_scc1 L_bgdone")
        if self.wdelay:
            e("s_mov_b32 s47, 0")
            self.lds_wait(vM, FULL - MISC, 47, self.wdelay, 4)
        self.srd(36, 12, 4096 * 896)
        e(f"s_and_b32 s58, s49, 15\ns_mul_i32 s58, s58, {256*896}\ns_lshl_b32 s60, s48, 7\ns_add_u32 s58, s58, s60")
        if self.bgst:
            self.stamp(1)
        self.unit_load(WO, 4, 36, 896, 64 * 896, vM, self.opol)
        if self.bgst:
            self.stamp(2)
        e("s_cmp_ge_u32 s101, 64\ns_cbranch_scc1 L_bgdone")
        if self.mdelay:
            e(f"s_mul_i32 s46, s54, {self.mdelay}\ns_mov_b32 s47, 0")
            self.lds_wait(vM, FULL - MISC, 47, "s46", 32)
        self.srd(36, 16, 448 * 3584)
        e("s_lshl_b32 s58, s55, 7")
        self.unit_load(W1, 7, 36, 3584, 64 * 3584, vM, self.mpol)
        if self.bgst:
            self.stamp(3)
        self.srd(36, 18, 1792 * 896)
        e(f"s_mul_i32 s58, s55, {64*896}")
        self.unit_load(W2, 7, 36, 896, 128, vM, self.mpol)
        if self.bgst:
            self.stamp(4)
        e("v_and_b32 v1, 31, v0\nv_lshlrev_b32 v13, 2, v1\nv_lshrrev_b32 v1, 5, v0\nv_lshl_add_u32 v13, v1, 1, v13")
        e("s_mul_i32 s60, s30, 112\nv_add_u32 v13, s60, v13")
        self.srd(36, 4, 1792)
        e(f"v_lshlrev_b32 v14, 1, v13\ns_mul_i32 s58, s54, 896\nbuffer_load_dword v{XP}, v14, s[36:39], s58 offen")
        e(f"s_mul_i32 s58, s54, {2688*4}\ns_add_u32 s58, s58, {WS_MOD+896*4}\ns_add_u32 s59, s58, {2*2688*4}\nv_lshlrev_b32 v9, 2, v13")
        self.gather([(2, RAW, GA, 9, "s58", 0), (2, RAW + 2, 16, 9, "s59", 0)], vT3, 7, HM, sleep=8)
        self.sum_round(GA, 16, 2, [18])
        e(f"v_and_b32 v{XP+1}, 0xffff0000, v{XP}\nv_lshlrev_b32 v{XP}, 16, v{XP}")
        e("v_lshlrev_b32 v9, 1, v5")
        loads = []
        for p in range(2):
            for m, dst in enumerate((SB, OCB)):
                for hf in range(2):
                    k = (p * 2 + m) * 2 + hf
                    cl = dst + 4 * hf if p == 0 else AD + 8 * (1 - m) + 4 * hf
                    loads.append((4, RAW + 4 * k, cl, 9, f"s{58+p}", (m + 1) * 448 * 4 + hf * 16))
        self.gather(loads, vT3, 7, LM, sleep=8, pairs=True)
        self.sum_round(OCB, AD, 16, list(range(16, 24)))
        e(f"s_lshl_b32 s60, s55, 6\ns_add_u32 s58, s58, s60\ns_add_u32 s58, s58, {1344*4}\ns_add_u32 s59, s58, {2*2688*4}")
        e("v_lshlrev_b32 v9, 2, v4")
        self.gather([(1, RAW, GB, 9, "s58", 0), (1, RAW + 1, 16, 9, "s59", 0)], vT3, 7, "-1", sleep=8)
        self.sum_round(GB, 16, 1, None)
        for k in range(8):
            e(f"v_add_f32 v{OCB+k}, 1.0, v{OCB+k}")
        self.rbf_pairs(list(range(OCB, OCB + 8)), list(range(16, 20)))
        e(f"s_lshl_b32 s60, s30, 10\ns_add_u32 s60, s60, {GX}\nv_lshl_add_u32 v13, v0, 4, s60\nds_write_b128 v13, v[{GA}:{GA+3}]")
        e(f"v_lshlrev_b32 v13, 2, v0\nv_add_u32 v13, {GBL}, v13\nds_write_b32 v13, v{GB}\ns_waitcnt lgkmcnt(0)")
        self.soft_barrier(vM)
        e("L_bgdone:")
        if self.stamps:
            e("s_cmp_eq_u32 s30, 0\ns_cbranch_scc1 L_st0")
            self.stamp(0)
            e("L_st0:")
        if self.warm:
            e("s_cmp_lg_u32 s30, 1\ns_cbranch_scc1 L_warmed\ns_mov_b32 s60, 2\nL_warm:\ns_mov_b64 exec, 0\ns_branch L_pad0")
            e("L_padret:\ns_mov_b64 exec, -1\ns_sub_u32 s60, s60, 1\ns_cmp_lg_u32 s60, 0\ns_cbranch_scc1 L_warm\nL_warmed:")
        e("s_cmp_lg_u32 s30, 0\ns_cbranch_scc1 L_tail0")

        top, go = self.lab("ml"), self.lab("mlgo")
        e(f"{top}:")
        for i in range(3):
            e(f"ds_read_b128 v[{16+4*i}:{19+4*i}], v{vM} offset:{ML-MISC+16*i}")
        e("s_waitcnt lgkmcnt(0)\nv_min3_u32 v1, v18, v22, v26\ns_nop 0\nv_readfirstlane_b32 s60, v1")
        e(f"s_cmp_lg_u32 s60, 0\ns_cbranch_scc1 {go}")
        self.budget()
        e(f"s_sleep 32\ns_branch {top}\n{go}:")
        e(f"s_mov_b32 s61, {hex(C2)}\nv_max3_f32 v28, v16, v20, v24")
        for i in range(3):
            e(f"v_sub_f32 v{18+4*i}, v{16+4*i}, v28\nv_mul_f32 v{18+4*i}, s61, v{18+4*i}\nv_exp_f32 v{18+4*i}, v{18+4*i}")
        e("s_nop 0\nv_mul_f32 v29, v17, v18\nv_fmac_f32 v29, v21, v22\nv_fmac_f32 v29, v25, v26")
        e(f"v_or_b32 v{RAW}, v28, v{vT16}\nv_and_b32 v1, 0xffff0000, v29\nv_or_b32 v{RAW+1}, v1, v{vT16}")
        e(f"v_lshlrev_b32 v1, 16, v29\nv_or_b32 v{RAW+2}, v1, v{vT16}")
        e(f"s_getreg_b32 s46, hwreg(HW_REG_XCC_ID, 0, 4)\ns_lshl_b32 s46, s46, 16\nv_or_b32 v{RAW+3}, s46, v{vT16}")
        if self.xl:
            e("s_and_b32 s58, s2, 7\ns_lshr_b32 s59, s2, 3")
        else:
            e("s_lshr_b32 s58, s2, 5\ns_and_b32 s59, s2, 31")
        e(f"s_lshl_b32 s58, s58, 9\ns_add_u32 s58, s58, {WS_ML}\ns_lshl_b32 s60, s59, 4\nv_mov_b32 v1, s60")
        e(f"s_mov_b64 exec, 1\nbuffer_store_dwordx4 v[{RAW}:{RAW+3}], v1, s[32:35], s58 offen sc1\ns_mov_b64 exec, -1")
        e("s_mov_b32 s47, 0")
        self.lds_wait(vM, FULL - MISC, 47, 640, 32)
        e(f"s_and_b32 s59, s59, 24\nv_and_b32 v9, {31 if self.fast else 7}, v0\nv_xor_b32 v9, s59, v9\nv_lshlrev_b32 v9, 4, v9")
        self.gather([(4, RAW + 4, RAW + 8, 9, "s58", 0)], vT16, "WORD_0", "-1", sleep=16)
        m, l = RAW + 8, RAW + 9
        e(f"v_lshrrev_b32 v{l+1}, 16, v{l+1}\nv_or_b32 v{l}, v{l}, v{l+1}\nv_mov_b32 v28, v{m}")
        oct_steps = ["quad_perm:[1,0,3,2]", "quad_perm:[2,3,0,1]", "row_half_mirror"]
        for st in oct_steps:
            e(f"s_nop 1\nv_max_f32_dpp v28, v28, v28 {st} {DPPF}")
        e(f"v_sub_f32 v{m}, v{m}, v28\nv_mul_f32 v{m}, s61, v{m}\nv_exp_f32 v{m}, v{m}\ns_nop 0\nv_mul_f32 v29, v{m}, v{l}")
        for st in oct_steps:
            e(f"s_nop 1\nv_add_f32_dpp v29, v29, v29 {st} {DPPF}")
        e("v_rcp_f32 v29, v29")
        for i in range(3):
            e(f"v_sub_f32 v{F+i}, v{16+4*i}, v28\nv_mul_f32 v{F+i}, s61, v{F+i}\nv_exp_f32 v{F+i}, v{F+i}\ns_nop 0")
            e(f"v_mul_f32 v{F+i}, v{F+i}, v29")
        if self.fast:
            e(f"v_cmp_ne_u32 vcc, s46, v{RAW+11}\ns_cmp_eq_u64 vcc, 0\ns_cselect_b32 s60, 2, 1\nv_mov_b32 v{F+3}, s60")
        else:
            e(f"v_mov_b32 v{F+3}, 1")
        e(f"s_mov_b64 exec, 1\nds_write_b128 v{vM}, v[{F}:{F+3}] offset:{FS-MISC}\ns_mov_b64 exec, -1")
        e("L_tail0:\ns_cmp_eq_u32 s48, 7\ns_cbranch_scc1 L_fin")

        def stamp_s(k):
            if self.stamps and not self.bgst:
                e(f"s_cmp_eq_u32 s30, 0\ns_cbranch_scc1 L_st{k}")
                self.stamp(k)
                e(f"L_st{k}:")

        e(f"s_lshl_b32 s58, s49, 13\ns_lshl_b32 s60, s30, 8\ns_add_u32 s58, s58, s60\ns_add_u32 s58, s58, {WS_OP}")
        e("s_add_u32 s59, s58, 4096\nv_lshlrev_b32 v9, 2, v0")
        e(f"v_lshlrev_b32 v255, 10, v3\nv_lshl_add_u32 v255, v4, 4, v255\nv_lshl_add_u32 v1, v4, 3, v3")
        e("s_lshr_b32 s60, s30, 1\ns_lshl_b32 s60, s60, 8\ns_and_b32 s61, s30, 1\ns_lshl_b32 s61, s61, 3\ns_add_u32 s60, s60, s61")
        e(f"s_add_u32 s60, s60, {QV}\nv_lshl_add_u32 v14, v1, 1, s60")
        e(f"v_lshl_add_u32 v15, v3, 4, v{vM}\nv_add_u32 v13, v5, v{vM}")
        e(f"s_mul_i32 s40, s49, {448*4}\ns_lshl_b32 s60, s48, 8\ns_add_u32 s40, s40, s60")
        e(f"s_lshl_b32 s60, s30, 6\ns_add_u32 s40, s40, {WS_Y}")
        if self.ymerge:
            e(f"v_lshl_add_u32 v29, v4, 2, v{vM}\nv_add_u32 v29, s60, v29\nv_add_u32 v28, v9, v{vM}")
        else:
            e("s_add_u32 s40, s40, s60")
        vYM, vYT = 253, 254
        e(f"v_and_b32 v1, 3, v0\nv_cmp_eq_u32 vcc, 0, v1\nv_mov_b32 v1, 0xffffff00\ns_mov_b32 s43, 0xffffff00")
        e(f"v_cndmask_b32 v{vYM}, -1, v1, vcc\nv_cndmask_b32 v{vYT}, 0, v{vT8}, vcc")
        e(f"s_lshl_b32 s60, s30, 5\ns_add_u32 s60, s60, {RED}\nv_lshl_add_u32 v30, v4, 1, s60")
        ZB = 1792 << self.zpad
        e(f"s_mul_i32 s41, s54, {28*ZB}\ns_mul_i32 s60, s30, {ZB}\ns_add_u32 s41, s41, s60")
        e(f"s_lshl_b32 s60, s55, {6+self.zpad}\ns_add_u32 s41, s41, s60\ns_add_u32 s41, s41, {WS_Z}\ns_add_u32 s42, s41, {16*ZB}")
        e(f"v_mul_u32_u24 v31, {4*ZB}, v3\nv_lshl_add_u32 v31, v4, 2, v31")
        for k in range(4):
            e(f"v_mov_b32 v{248+k}, 0")
        ol = [(4, 20 + 4 * k, 255, f"s{58+k}", 0) for k in range(2)]
        e("s_mov_b32 s47, 0\ns_mov_b32 s46, 0")
        self.lds_wait(vM, FULL - MISC, 47, self.pstart - 40, 64)
        self.lds_wait(vM, FS + 12 - MISC, 46, 1, 2)
        self.lds_wait(vM, FULL - MISC, 47, self.pstart, 3)
        e("s_setprio 2")
        self.L.append("@WARM_BEGIN")

        self.gather8(ol, vT8, ["-1", "-1"], False)
        self.pk("add", 22, 22, 26)
        self.pk("add", 20, 20, 24)
        e("s_nop 1\nv_permlane32_swap_b32 v20, v22\nv_permlane32_swap_b32 v21, v23")
        self.pk("add", 20, 20, 22)
        e("s_nop 1\nv_permlane16_swap_b32 v20, v21\nv_add_f32 v20, v20, v21")
        e("v_cvt_pk_bf16_f32 v20, v20, v20\nds_write_b16 v14, v20")
        stamp_s(1)
        e("s_waitcnt lgkmcnt(0)\ns_barrier")
        self.unit_mfma_lds(WO, RAW, 15, 8, DD, QV - MISC)
        e(f"v_and_or_b32 v{DD}, v{DD}, v{vYM}, v{vYT}")
        if self.ymerge:
            e(f"ds_write_b32 v29, v{DD} offset:{RED+128-MISC}\ns_waitcnt lgkmcnt(0)\ns_barrier")
            e(f"s_cmp_lg_u32 s30, 1\ns_cbranch_scc1 L_ydone\nds_read_b32 v{DD}, v28 offset:{RED+128-MISC}\ns_waitcnt lgkmcnt(0)")
            e(f"buffer_store_dword v{DD}, v9, s[32:35], s40 offen sc1\nL_ydone:")
        else:
            e(f"s_mov_b64 exec, 0xffff\nbuffer_store_dword v{DD}, v9, s[32:35], s40 offen sc1")
        stamp_s(2)
        e(f"s_cmp_ge_u32 s101, 64\ns_cbranch_scc1 L_fin\ns_mov_b64 exec, {LM}\ns_barrier")

        e(f"ds_read_b128 v[248:251], v13 offset:{AIM-MISC}\ns_mov_b64 exec, -1")
        stamp_s(3)
        e("s_waitcnt lgkmcnt(0)")
        X = list(range(WO, WO + 8))
        self.unpack([248, 249, 250, 251], X)
        self.layernorm(X, list(range(16, 26)), rounded=not self.lnfast)
        self.modulate(X, list(range(OCB, OCB + 8)), list(range(SB, SB + 8)), [248, 249, 250, 251], list(range(16, 20)),
                      rounded=not self.lnfast)
        self.unit_mfma_dpp(W1, 248, AD, DD)
        self.rbf1(DD)
        self.silu([DD], [16])
        e(f"v_cvt_pk_bf16_f32 v{DD}, v{DD}, v{DD}\nds_write_b16 v30, v{DD}\ns_waitcnt lgkmcnt(0)\ns_barrier")
        e(f"ds_read_b128 v[{AD}:{AD+3}], v15 offset:{RED-MISC}\nds_read_b128 v[{AD+4}:{AD+7}], v15 offset:{RED-MISC+64}")
        stamp_s(4)
        def mm(rho, st):
            d, b = RAW + 4 * rho, W2 + 8 * rho + 4 * st
            c = "0" if st == 0 else f"v[{d}:{d+3}]"
            e(f"v_mfma_f32_16x16x32_bf16 v[{d}:{d+3}], v[{AD+4*st}:{AD+4*st+3}], v[{b}:{b+3}], {c}")

        def sel(dst, g):
            e(f"v_mov_b32_dpp v{dst}, v{dst+4*g} quad_perm:[0,1,2,3] row_mask:{hex(1<<g)} bank_mask:0xf")
        e("s_waitcnt lgkmcnt(1)")
        for rho in range(4):
            mm(rho, 0)
        e("s_waitcnt lgkmcnt(0)")
        for rho in range(4):
            mm(rho, 1)
        for st in range(2):
            for rho in range(4, 7):
                mm(rho, st)
        sel(RAW, 1)
        e("s_nop 1")
        sel(RAW, 2)
        e("s_nop 1")
        sel(RAW, 3)
        e(f"v_and_or_b32 v{RAW}, v{RAW}, v{vYM}, v{vYT}")
        sel(RAW + 16, 1)
        near = self.fast and self.xm
        if near:
            e("s_cmp_lg_u32 s46, 2\ns_cbranch_scc1 L_zfar")
        for pol in ([self.npol, "sc1"] if near else ["sc1"]):
            e(f"buffer_store_dword v{RAW}, v31, s[32:35], s41 offen {pol}\ns_nop 0")
            e(f"v_mov_b32_dpp v{RAW+16}, v{RAW+24} quad_perm:[0,1,2,3] row_mask:0x4 bank_mask:0xf")
            e(f"v_and_or_b32 v{RAW+16}, v{RAW+16}, v{vYM}, v{vYT}\ns_mov_b32 exec_hi, 0xffff")
            e(f"buffer_store_dword v{RAW+16}, v31, s[32:35], s42 offen {pol}")
            if self.stamps and not self.bgst:
                e("s_cmp_eq_u32 s30, 0\ns_cbranch_scc1 L_fin")
                self.stamp(5)
            e("s_branch L_fin")
            if pol != "sc1":
                e("L_zfar:")

    def gtail(self):
        e = self.e
        vM, vT8, GA, XP, GB, R = 12, 10, 4, 6, 8, 32
        HM = "s[52:53]"
        e("L_gtail:")
        self.mlp_ids()
        e("s_cbranch_scc1 L_leave")
        e(f"s_setprio 0\nv_mov_b32 v{vM}, {MISC}\nv_mov_b32 v2, 0\ns_mov_b32 s47, 0\ns_mov_b32 s31, 0x80000")
        self.srd(32, 28, WS_SIZE)
        e("s_mov_b32 s52, 0x0fffffff\ns_mov_b32 s53, 0x0fffffff")
        e(f"s_mul_i32 s40, s54, {16*448*4}\ns_add_u32 s40, s40, {WS_Y}")
        for k in range(1, 4):
            e(f"s_add_u32 s{40+k}, s40, {k*2*448*4}")
        e("v_and_b32 v1, 31, v0\nv_lshrrev_b32 v3, 5, v0\ns_mul_i32 s60, s3, 448\nv_lshl_add_u32 v9, v1, 4, s60")
        e(f"v_lshrrev_b32 v14, 1, v9\nv_lshl_add_u32 v14, v3, 2, v14\nv_add_u32 v14, {AIM}, v14")
        e(f"v_mul_u32_u24 v3, {8*448*4}, v3\nv_add_u32 v9, v9, v3")
        yl = [(4, R + 4 * k, 9, f"s{40+(k>>1)}", (k & 1) * 448 * 4) for k in range(8)]
        zl = [(4, 20 + 4 * k, 13, "s58", 1024 * k) for k in range(2)]
        self.lds_wait(vM, FS + 12 - MISC, 47, 1, 2)
        e(f"ds_read_b32 v11, v{vM} offset:{TAG-MISC}")
        e(f"s_lshl_b32 s60, s3, 10\ns_add_u32 s60, s60, {GX}\nv_lshl_add_u32 v1, v0, 4, s60\nds_read_b128 v[{GA}:{GA+3}], v1")
        e("v_and_b32 v15, 3, v0\nv_lshrrev_b32 v1, 4, v0\nv_lshl_add_u32 v15, v15, 2, v1")
        e(f"v_lshlrev_b32 v13, 4, v0\nv_lshlrev_b32 v1, 2, v15\nv_add_u32 v1, {GBL}, v1\nds_read_b32 v{GB}, v1")
        e(f"s_waitcnt lgkmcnt(0)\nv_and_b32 v{vT8}, 0xff, v11")
        e(f"s_mov_b64 exec, {HM}")
        for ld in yl if self.prewarm & 1 else []:
            self.issue(ld)
        e("s_barrier")
        if self.ymerge:
            e("s_barrier")
        if self.ystage:
            top = self.lab("ys")
            e(f"{top}:")
            self.budget()
            self.issue(yl[self.ystage - 1])
            e(f"s_waitcnt vmcnt(0)\nv_cmp_ne_u32_sdwa vcc, v{yl[self.ystage-1][1]}, v{vT8} src0_sel:BYTE_0 src1_sel:DWORD")
            e(f"s_cmp_lg_u64 vcc, 0\ns_cbranch_scc1 {top}")
        self.gather8(yl, vT8, [HM] * 8, True)
        if self.stamps and not self.prog:
            e("s_cmp_lg_u32 s3, 0\ns_cbranch_scc1 L_sg3")
            self.stamp(3)
            e("L_sg3:")
        for st in (16, 8, 4):
            for k in range(0, st, 2):
                e(f"v_pk_add_f32 v[{R+k}:{R+k+1}], v[{R+k}:{R+k+1}], v[{R+st+k}:{R+st+k+1}]")
        e(f"s_nop 1\nv_permlane32_swap_b32 v{R}, v{R+2}\nv_permlane32_swap_b32 v{R+1}, v{R+3}")
        e(f"v_pk_add_f32 v[{R}:{R+1}], v[{R}:{R+1}], v[{R+2}:{R+3}]")
        self.rbf_pairs([R, R + 1], [16])
        e(f"v_pk_mul_f32 v[{R}:{R+1}], v[{R}:{R+1}], v[{GA}:{GA+1}]")
        self.rbf_pairs([R, R + 1], [16])
        e(f"v_pk_add_f32 v[{R}:{R+1}], v[{R}:{R+1}], v[{XP}:{XP+1}]")
        e(f"v_cvt_pk_bf16_f32 v16, v{R}, v{R+1}")
        e(f"s_mov_b64 exec, {HM}\nds_write_b32 v14, v16\ns_waitcnt lgkmcnt(0)\ns_barrier")
        e("s_cmp_lg_u32 s3, 0\ns_cbranch_scc1 L_epoch\ns_mov_b64 exec, -1")
        e(f"s_mul_i32 s58, s54, 28\ns_add_u32 s58, s58, s55\ns_mul_i32 s58, s58, {1792 << self.zpad}\ns_add_u32 s58, s58, {WS_Z}")
        ZM = "s[50:51]"
        e("s_mov_b32 s50, -1\ns_mov_b32 s51, 0xffff")
        for k in range(4):
            e(f"v_mov_b32 v{24+k}, 0")
        if self.prewarm & 2:
            self.issue(zl[0])
            e(f"s_mov_b64 exec, {ZM}")
            self.issue(zl[1])
            e("s_mov_b64 exec, -1")
        e(f"s_lshl_b32 s60, s55, 5\ns_add_u32 s41, s60, {AIM}\nv_lshl_add_u32 v1, v15, 1, s41\nds_read_u16 v31, v1")
        self.srd(36, 24, 1792)
        e("s_mul_i32 s41, s54, 896\ns_add_u32 s41, s41, s60\nv_lshlrev_b32 v14, 1, v15")
        e("s_mov_b32 s42, 0x000f000f\ns_mov_b32 s43, 0x000f000f")
        e("s_waitcnt lgkmcnt(0)\nv_lshlrev_b32 v31, 16, v31\ns_barrier")
        self.gather8(zl, vT8, ["-1", ZM], False)
        if not self.prog:
            self.stamp(4)
        self.pk("add", 22, 22, 26)
        self.pk("add", 20, 20, 24)
        e("s_nop 1\nv_permlane32_swap_b32 v20, v22\nv_permlane32_swap_b32 v21, v23")
        self.pk("add", 20, 20, 22)
        e("s_nop 1\nv_permlane16_swap_b32 v20, v21\nv_add_f32 v16, v20, v21")
        for rr in (4, 8):
            e(f"s_nop 1\nv_add_f32_dpp v16, v16, v16 row_ror:{rr} {DPPF}")
        self.rbf1(16)
        e(f"v_mul_f32 v16, v16, v{GB}")
        self.rbf1(16)
        e("v_add_f32 v16, v16, v31\nv_cvt_pk_bf16_f32 v16, v16, v16")
        e("s_mov_b64 exec, s[42:43]\nbuffer_store_short v16, v14, s[36:39], s41 offen")
        if not self.prog:
            self.stamp(5)
        self.L.append("@WARM_END")
        e("L_fin:")
        self.end()
        e("L_epoch:\ns_add_u32 s60, s101, s3\ns_cmp_lg_u32 s60, 1\ns_cbranch_scc1 L_leave")
        e("s_mov_b64 exec, 1\nbuffer_store_dword v11, v2, s[32:35], 0 offen sc1")
        e("L_leave:\ns_barrier\ns_branch L_fin")

    def build(self, header):
        e = self.e
        K = NAME + "_kernel"
        self.L.append(header.rstrip("\n"))
        self.L.append(f"; @launch grid=(256,1,1) block=(512,1,1) lds={LDS_BYTES}")
        self.L.append('.amdgcn_target "amdgcn-amd-amdhsa--gfx950"\n.text')
        self.L.append(f".globl {K}\n.p2align 8\n.type {K},@function\n{K}:")
        e("s_cmp_ge_u32 s2, 256\ns_cbranch_scc1 L_end")
        e("s_load_dwordx16 s[4:19], s[0:1], 0\ns_load_dwordx8 s[20:27], s[0:1], 64\ns_load_dwordx2 s[28:29], s[0:1], 96")
        e("v_lshrrev_b32 v1, 6, v0\nv_and_b32 v0, 63, v0\nv_readfirstlane_b32 s3, v1")
        if self.xl == 2:
            e("s_and_b32 s100, s2, 7\ns_lshl_b32 s100, s100, 3\ns_bfe_u32 s101, s2, 0x30003\ns_or_b32 s100, s100, s101")
            e("s_and_b32 s101, s2, 192\ns_or_b32 s100, s100, s101")
            if self.xf:
                e(f"s_bitcmp1_b32 s2, 6\ns_cselect_b32 s101, {self.xf << 3}, 0\ns_xor_b32 s100, s100, s101")
            if self.xg:
                e(f"s_bitcmp1_b32 s2, 7\ns_cselect_b32 s101, {self.xg << 3}, 0\ns_xor_b32 s100, s100, s101")
        elif self.xl:
            e("s_and_b32 s100, s2, 7\ns_lshl_b32 s100, s100, 4\ns_bfe_u32 s101, s2, 0x40003\ns_or_b32 s100, s100, s101")
            e("s_and_b32 s101, s2, 128\ns_or_b32 s100, s100, s101")
        else:
            e("s_mov_b32 s100, s2")
        self.stamp_init()
        e("s_cmp_eq_u32 s3, 0\ns_cbranch_scc1 L_loader")
        e(f"v_lshlrev_b32 v1, 3, v0\nv_add_u32 v1, {MISC}, v1\nv_mov_b32 v2, 0\nv_mov_b32 v3, 0\nds_write_b64 v1, v[2:3]")
        e("s_cmp_ge_u32 s3, 4\ns_cbranch_scc1 L_service\ns_branch L_consumer")
        self.loader()
        e("L_end:\ns_endpgm")
        self.consumer()
        self.service()
        self.gtail()
        e("L_last:")
        self.L.append(f""".section .rodata,"a"
.p2align 6
.amdhsa_kernel {K}
  .amdhsa_next_free_vgpr 256
  .amdhsa_next_free_sgpr 102
  .amdhsa_accum_offset 256
  .amdhsa_group_segment_fixed_size 0
  .amdhsa_kernarg_size 104
  .amdhsa_user_sgpr_count 2
  .amdhsa_user_sgpr_kernarg_segment_ptr 1
  .amdhsa_system_sgpr_workgroup_id_x 1
  .amdhsa_float_denorm_mode_32 3
.end_amdhsa_kernel""")
        return "\n".join(self.place_pads()) + "\n"

    def place_pads(self):
        out, inside, count, npad, masked = [], False, 0, 0, False
        def pad(op):
            nonlocal npad, count
            out.append(f"L_pad{npad}:\n    {op} @PAD{npad+1}@")
            npad += 1
            count = 0
        for line in self.L:
            if line == "@WARM_BEGIN":
                inside = bool(self.warm)
                if inside:
                    pad("s_cbranch_execz")
                continue
            if line == "@WARM_END":
                inside = False
                continue
            out.append(line)
            if inside and line.startswith("    "):
                count += 1
                if "s_cselect_b64 exec" in line:
                    masked = True
                elif "s_mov_b64 exec" in line:
                    masked = False
                if line.strip().startswith("s_branch "):
                    pad("s_branch")
                elif count >= self.warm and not masked:
                    pad("s_cbranch_execz")
        text = "\n".join(out)
        for k in range(1, npad + 1):
            text = text.replace(f"@PAD{k}@", f"L_pad{k}" if k < npad else "L_padret")
        return text.split("\n")


HEADER = """; Fused adaLN-conditioned block: cached multi-head attention (decode) + SiLU MLP, gfx950.
"""


def generate(**kw):
    return Gen(**kw).build(HEADER)


if __name__ == "__main__":
    import json
    kw = json.loads(sys.argv[2]) if len(sys.argv) > 2 else {}
    open(sys.argv[1], "w").write(generate(**kw))
```

```python
import struct
import sys

NAME = "adaLN_cond__mha_block_cached__dense_activation_silu__decode"

WS_EPOCH, WS_MOD, WS_Q, WS_OP, WS_Y, WS_ML, WS_Z, WS_CTR, WS_SIZE = (
    0, 0x1000, 0x10000, 0x20000, 0x60000, 0x6E000, 0x70000, 0xB0000, 0x1E0000)
WS_STAMP = 0x1E0000
RING, NSLOT = 0, 16
SC, SC_STRIDE = 131072, 6144
STG = 149504
PST = 131072
MISC = 159744
FULL, FREE, QRDY, TAG, BAR, ML, QV, AIM, RED = (MISC, MISC + 256, MISC + 272, MISC + 276, MISC + 280,
                                                MISC + 288, MISC + 512, MISC + 1024, MISC + 2816)
FS, PF = MISC + 336, MISC + 352
GX, GBL = STG, STG + 4096
LDS_BYTES = 163840


STAMPS = [("ld start", 0, 0), ("S0 start", 4, 0), ("S0 weights landed", 4, 1), ("S0 frags read", 4, 2),
          ("S0 mod gathered", 4, 3), ("S0 unit pub", 4, 4), ("S0 q ready", 4, 5), ("C prepull done", 1, 0),
          ("C q seen", 1, 1), ("bg done", 5, 0), ("ld K issued", 0, 1), ("C K done", 1, 2), ("C softmax done", 1, 3),
          ("ld done", 0, 2), ("opart pub", 1, 4), ("o gathered", 5, 1), ("y pub", 5, 2), ("y gathered", 0, 3),
          ("x1 barrier", 5, 3), ("hid barrier", 5, 4), ("z pub", 5, 5), ("z gathered", 0, 4), ("end", 0, 5)]
END_STAMP = (0, 5)


def f2u(x):
    return struct.unpack("<I", struct.pack("<f", x))[0]


LOG2E = 1.4426950408889634
C2 = f2u(LOG2E / 16.0)
DPPF = "row_mask:0xf bank_mask:0xf"


class Gen:
    def __init__(self, D=20, lev=(18, 20, 22, 24, 28), nsh=4, cst=8448, cstart=64, atpos=16, wpol="nt", kvpol="nt",
                 prepull=6, qsleep=0, warm=0, pstart=1016, zpad=0, prewarm=2, vtouch=0, stamps=False, prog=None, bgst=0, l2warm=1, G=2, lev0=None, pi=None, xl=2, xm=1, fast=1, eb=8, mpol="", sh0=3, rot=0, qloc=1, qat=46, mat=22, msleep=0, xf=4, xg=0, ymerge=0, ystage=1, fin=(24, 40), npol="", csleep=0, lnfast=0, mix=0, mixat=0, mixto=2048, ctouch=0, mdelay=0, wdelay=0, opol="", boost=None, talign=0, esc=(0, 32, 2, 0, 0), t=(12, 13, 14, 15, 11, 16, 10), jb=(21, 22, 23), xk=((), (10,), (11,))):
        self.L = []
        self.n = 0
        self.D, self.lev, self.nsh, self.cst, self.cstart, self.atpos = D, list(lev), nsh, cst, cstart, atpos
        self.period = 32
        self.talign = talign
        self.stage_pols = set()
        self.t = list(t) + [b for b in range(10, 24) if b not in t and b not in jb]
        self.jb, self.xk = jb, xk
        assert sorted(self.t + list(jb)) == list(range(10, 24)) and self.t[1] > 10
        assert not any(set(m) & (set(self.t[:2]) | set(jb)) for m in xk)
        self.boost, self.esc = boost, esc
        assert cstart + atpos > 2 * (NSLOT + 3 * prepull)
        self.mdelay, self.wdelay = mdelay, wdelay
        self.opol = wpol if opol is None else opol
        self.mix, self.mixat, self.mixto, self.ctouch = mix, mixat, mixto, ctouch
        self.csleep, self.lnfast = csleep, lnfast
        self.fin, self.npol = fin, npol
        self.ymerge, self.ystage = ymerge, ystage
        self.xf, self.xg = xf, xg
        self.qat, self.mat, self.msleep = qat, mat, msleep
        self.qloc = qloc
        self.sh0, self.rot = sh0, rot
        self.xl, self.xm, self.fast, self.eb = xl, xm, fast, eb
        self.mpol = wpol if mpol is None else mpol
        assert xl or not (xm or fast)
        self.pi = pi
        self.G, self.lev0 = G, lev0
        self.l2warm = l2warm
        assert cstart >= 64 and cstart % 32 == 0 and atpos % 8 != 7
        self.wpol, self.kvpol = wpol, kvpol
        self.prepull, self.qsleep, self.warm = prepull, qsleep, warm
        self.pstart, self.zpad, self.prewarm, self.vtouch = pstart, zpad, prewarm, vtouch
        self.stamps, self.prog, self.bgst = stamps, prog, bgst

    def e(self, s):
        for line in s.split("\n"):
            line = line.strip()
            if not line:
                continue
            self.L.append(line if line.endswith(":") or line.startswith(";") else "    " + line)

    def lab(self, p):
        self.n += 1
        return f"L_{p}_{self.n}"

    def srd(self, d, base, size):
        self.e(f"s_mov_b32 s{d}, s{base}\ns_mov_b32 s{d+1}, s{base+1}\n"
               f"s_mov_b32 s{d+2}, {size}\ns_mov_b32 s{d+3}, 0x20000")

    def stamp(self, k):
        if self.stamps:
            self.e(f"s_memrealtime s[{84+2*k}:{85+2*k}]")

    def stamp_init(self):
        if self.stamps:
            for k in range(8):
                self.e(f"s_mov_b64 s[{84+2*k}:{85+2*k}], 0")

    def stamp_flush(self):
        if self.stamps:
            self.e("s_mov_b64 exec, -1\ns_waitcnt lgkmcnt(0)")
            self.srd(80, 28, WS_STAMP + 0x20000)
            for k in range(8):
                self.e(f"v_mov_b32 v{8+k}, s{84+2*k}")
            self.e(f"s_lshl_b32 s30, s2, 3\ns_add_u32 s30, s30, s3\ns_lshl_b32 s30, s30, 5\n"
                   f"s_add_u32 s30, s30, {WS_STAMP}\nv_mov_b32 v1, s30\ns_mov_b64 exec, 1\n"
                   "buffer_store_dwordx4 v[8:11], v1, s[80:83], 0 offen\n"
                   "buffer_store_dwordx4 v[12:15], v1, s[80:83], 0 offen offset:16")

    def end(self):
        self.stamp_flush()
        self.e("s_endpgm")

    def budget(self):
        self.e("s_sub_u32 s31, s31, 1\ns_cbranch_scc1 L_end")

    def wave_reduce(self, op, regs, nsteps=6):
        steps = ["quad_perm:[1,0,3,2] " + DPPF, "quad_perm:[2,3,0,1] " + DPPF, "row_half_mirror " + DPPF,
                 "row_mirror " + DPPF, "row_bcast:15 row_mask:0xa bank_mask:0xf",
                 "row_bcast:31 row_mask:0xc bank_mask:0xf"]
        for st in steps[:nsteps]:
            pad = 3 - len(regs) if st is not steps[0] else 2
            if pad > 0:
                self.e(f"s_nop {pad-1}")
            for r in regs:
                self.e(f"{op}_dpp v{r}, v{r}, v{r} {st}")
        self.e("s_nop 0")

    def rbf_pairs(self, regs, tmp):
        for k in range(0, len(regs), 2):
            self.e(f"v_cvt_pk_bf16_f32 v{tmp[k//2]}, v{regs[k]}, v{regs[k+1]}")
        self.unpack(tmp[:len(regs)//2], regs)

    def unpack(self, packed, regs):
        for k, p in enumerate(packed):
            self.e(f"v_lshlrev_b32 v{regs[2*k]}, 16, v{p}\nv_and_b32 v{regs[2*k+1]}, 0xffff0000, v{p}")

    def rbf1(self, r):
        self.e(f"v_cvt_pk_bf16_f32 v{r}, v{r}, v{r}\nv_and_b32 v{r}, 0xffff0000, v{r}")

    def silu(self, regs, tmp):
        for r, t in zip(regs, tmp):
            self.e(f"v_mul_f32 v{t}, {hex(f2u(-LOG2E))}, v{r}")
        for t in tmp[:len(regs)]:
            self.e(f"v_exp_f32 v{t}, v{t}")
        self.e("s_nop 0")
        for t in tmp[:len(regs)]:
            self.e(f"v_add_f32 v{t}, 1.0, v{t}")
        for t in tmp[:len(regs)]:
            self.e(f"v_rcp_f32 v{t}, v{t}")
        self.e("s_nop 0")
        for r, t in zip(regs, tmp):
            self.e(f"v_mul_f32 v{r}, v{r}, v{t}")

    def pk(self, op, d, a, b, mods=""):
        self.e(f"v_pk_{op}_f32 v[{d}:{d+1}], v[{a}:{a+1}], v[{b}:{b+1}] {mods}")

    def layernorm(self, X, t, extra=None, rounded=True):
        e = self.e
        S = X[::2] + (extra[::2] if extra else [])
        a, b, m, r = t[0], t[2], t[6], t[8]
        self.pk("add", a, S[0], S[1])
        self.pk("mul", b, S[0], S[0])
        e(f"v_pk_fma_f32 v[{b}:{b+1}], v[{S[1]}:{S[1]+1}], v[{S[1]}:{S[1]+1}], v[{b}:{b+1}]")
        for q in S[2:]:
            self.pk("add", a, a, q)
            e(f"v_pk_fma_f32 v[{b}:{b+1}], v[{q}:{q+1}], v[{q}:{q+1}], v[{b}:{b+1}]")
        e(f"v_add_f32 v{a}, v{a}, v{a+1}\nv_add_f32 v{b}, v{b}, v{b+1}")
        inv = hex(f2u(1.0 / 448))
        if extra is None:
            self.wave_reduce("v_add_f32", [a, b])
            e(f"v_readlane_b32 s60, v{a}, 63\nv_readlane_b32 s61, v{b}, 63\nv_mov_b32 v{a+1}, {inv}")
            e(f"v_mul_f32 v{a}, s60, v{a+1}\nv_mul_f32 v{b}, s61, v{a+1}")
        else:
            self.wave_reduce("v_add_f32", [a, b], nsteps=4)
            e(f"v_mov_b32 v{a+1}, v{a}\nv_mov_b32 v{b+1}, v{b}\ns_nop 1")
            e(f"v_permlane16_swap_b32 v{a}, v{a+1}\nv_permlane16_swap_b32 v{b}, v{b+1}")
            e(f"v_add_f32 v{a}, v{a}, v{a+1}\nv_add_f32 v{b}, v{b}, v{b+1}")
            e(f"v_mul_f32 v{a}, {inv}, v{a}\nv_mul_f32 v{b}, {inv}, v{b}")
        e(f"v_fma_f32 v{b}, -v{a}, v{a}, v{b}\nv_max_f32 v{b}, 0, v{b}")
        e(f"v_cvt_pk_bf16_f32 v{a}, v{a}, v{b}")
        e(f"v_and_b32 v{r}, 0xffff0000, v{a}\nv_lshlrev_b32 v{m}, 16, v{a}")
        e(f"v_add_f32 v{r}, {hex(f2u(1e-5))}, v{r}")
        self.rbf1(r)
        e(f"v_sqrt_f32 v{r}, v{r}")
        for q in X[::2]:
            self.pk("add", q, q, m, "op_sel_hi:[1,0] neg_lo:[0,1] neg_hi:[0,1]")
        self.rbf1(r)
        e(f"v_rcp_f32 v{r}, v{r}")
        if rounded:
            self.rbf_pairs(X, t[2:6])
        else:
            e("s_nop 0")
        for q in X[::2]:
            self.pk("mul", q, q, r, "op_sel_hi:[1,0]")
        if rounded:
            self.rbf_pairs(X, t[2:6])

    def modulate(self, X, OC, SH, out, t, rounded=True):
        if rounded:
            for k in range(0, 8, 2):
                self.pk("mul", X[k], X[k], OC[k])
            self.rbf_pairs(X, t)
            for k in range(0, 8, 2):
                self.pk("add", X[k], X[k], SH[k])
        else:
            for k in range(0, 8, 2):
                self.e(f"v_pk_fma_f32 v[{X[k]}:{X[k]+1}], v[{X[k]}:{X[k]+1}], v[{OC[k]}:{OC[k]+1}], v[{SH[k]}:{SH[k]+1}]")
        for k in range(4):
            self.e(f"v_cvt_pk_bf16_f32 v{out[k]}, v{X[2*k]}, v{X[2*k+1]}")

    def gather(self, loads, vtag, sel, active, sleep=0, pairs=False):
        e = self.e
        top, done = self.lab("gat"), self.lab("gdone")
        for k in range(len(loads)):
            e(f"s_mov_b64 s[{64+2*k}:{65+2*k}], 1")
        e(f"s_mov_b64 exec, {active}\n{top}:")
        for k, (nd, raw, clean, va, so, imm) in enumerate(loads):
            sk = self.lab("gs")
            dst = f"v{raw}" if nd == 1 else f"v[{raw}:{raw+nd-1}]"
            suf = "" if nd == 1 else f"x{nd}"
            if len(loads) > 1:
                e(f"s_cmp_eq_u64 s[{64+2*k}:{65+2*k}], 0\ns_cbranch_scc1 {sk}")
            e(f"buffer_load_dword{suf} {dst}, v{va}, s[32:35], {so} offen offset:{imm} sc1")
            e(f"{sk}:")
        e("s_waitcnt vmcnt(0)")
        for k, (nd, raw, clean, va, so, imm) in enumerate(loads):
            for j in range(nd):
                e(f"v_xor_b32 v{clean+j}, v{raw+j}, v{vtag}")
            if nd == 1:
                chk = clean
            elif nd == 2:
                chk = 1
                e(f"v_or_b32 v1, v{clean}, v{clean+1}")
            else:
                chk = 1
                e(f"v_or3_b32 v1, v{clean}, v{clean+1}, v{clean+2}\nv_or_b32 v1, v1, v{clean+3}")
            if isinstance(sel, int):
                e(f"v_and_b32 v1, {sel}, v{chk}\nv_cmp_ne_u32 s[{64+2*k}:{65+2*k}], 0, v1")
            else:
                e(f"v_cmp_ne_u32_sdwa s[{64+2*k}:{65+2*k}], v{chk}, v2 src0_sel:{sel} src1_sel:DWORD")
        if pairs:
            for k in range(0, len(loads), 2):
                e(f"s_or_b64 s[{64+2*k}:{65+2*k}], s[{64+2*k}:{65+2*k}], s[{66+2*k}:{67+2*k}]")
                e(f"s_mov_b64 s[{66+2*k}:{67+2*k}], s[{64+2*k}:{65+2*k}]")
        e("s_or_b64 s[62:63], s[64:65], s[64:65]")
        for k in range(1, len(loads)):
            e(f"s_or_b64 s[62:63], s[62:63], s[{64+2*k}:{65+2*k}]")
        e(f"s_cbranch_scc0 {done}")
        self.budget()
        if sleep:
            e(f"s_sleep {sleep}")
        e(f"s_branch {top}\n{done}:\ns_mov_b64 exec, -1")

    def issue(self, ld):
        nd, raw, va, so, imm = ld
        dst = f"v{raw}" if nd == 1 else f"v[{raw}:{raw+nd-1}]"
        suf = "" if nd == 1 else f"x{nd}"
        self.e(f"buffer_load_dword{suf} {dst}, v{va}, s[32:35], {so} offen offset:{imm} sc1")

    def gather8(self, loads, vtag, active, skip):
        e = self.e
        top, chk = self.lab("gat"), self.lab("gchk")
        cur = [None]

        def lanes(m):
            if cur[0] != m:
                e(f"s_mov_b64 exec, {m}")
                cur[0] = m
        if skip:
            for ld, m in zip(loads, active):
                lanes(m)
                self.issue(ld)
            e(f"s_branch {chk}")
        e(f"{top}:")
        self.budget()
        cur[0] = None if len(set(active)) > 1 or active[0] != "-1" else "-1"
        for k, (ld, m) in enumerate(zip(loads, active)):
            if skip:
                e(f"s_cmp_lg_u64 s[{64+2*k}:{65+2*k}], 0\ns_cselect_b64 exec, {m}, 0")
            else:
                lanes(m)
            self.issue(ld)
        e(f"{chk}:")
        if skip:
            cur[0] = None
        order = list(range(len(loads)))[::-1]
        lanes(active[order[0]])
        e("s_waitcnt vmcnt(0)")
        for k in order:
            lanes(active[k])
            e(f"v_cmp_ne_u32_sdwa s[{64+2*k}:{65+2*k}], v{loads[k][1]}, v{vtag} src0_sel:BYTE_0 src1_sel:DWORD")
        e("s_or_b64 s[62:63], s[64:65], s[66:67]")
        for k in range(2, len(loads)):
            e(f"s_or_b64 s[62:63], s[62:63], s[{64+2*k}:{65+2*k}]")
        e(f"s_cbranch_scc1 {top}")
        lanes("-1")
        for ld in loads:
            e(f"v_and_b32 v{ld[1]}, 0xffffff00, v{ld[1]}")

    def lds_wait(self, vaddr, off, sreg, need, sleep):
        e = self.e
        top, go = self.lab("lw"), self.lab("lgo")
        e(f"s_cmp_ge_u32 s{sreg}, {need}\ns_cbranch_scc1 {go}\n{top}:")
        e(f"ds_read_b32 v1, v{vaddr} offset:{off}\ns_waitcnt lgkmcnt(0)\nv_readfirstlane_b32 s{sreg}, v1")
        e(f"s_cmp_ge_u32 s{sreg}, {need}\ns_cbranch_scc1 {go}")
        self.budget()
        if sleep:
            e(f"s_sleep {sleep}")
        e(f"s_branch {top}\n{go}:")

    def dma_step(self, vaddr, srd, lds_sreg_or_imm, pol):
        self.e(f"s_mov_b32 m0, {lds_sreg_or_imm}\ns_nop 0")
        self.e(f"buffer_load_dwordx4 v{vaddr}, s[{srd}:{srd+3}], s58 offen {pol} lds")

    def tr_reads(self, dst, vtr, off):
        self.e(f"ds_read_b64_tr_b16 v[{dst}:{dst+1}], v{vtr} offset:{off}")
        self.e(f"ds_read_b64_tr_b16 v[{dst+2}:{dst+3}], v{vtr} offset:{off+512}")

    def loader(self):
        e, D, lev = self.e, self.D, self.lev
        ng = D // 4
        AT = self.atpos
        T = self.t

        def addr(m):
            return sum(1 << T[b] for b in range(11) if m >> b & 1)

        def unit(n):
            return addr(4 * n)

        def scatter(dst, lo, hi):
            src, b = 58, lo
            while b < hi:
                n = 1
                while b + n < hi and T[b + n + 2] == T[b + 2] + n:
                    n += 1
                e(f"s_bfe_u32 s59, s40, {b | n << 16}\ns_lshl_b32 s59, s59, {T[b+2]}\ns_xor_b32 s{dst}, s{src}, s59")
                src, b = dst, b + n

        def load(k):
            e(f"buffer_load_dwordx4 v{10+k}, s[32:35], s41 offen offset:{k*1024} {self.kvpol} lds")

        def loads():
            for k in range(4):
                load(k)

        def limit():
            e(f"v_min3_u32 v5, v6, v7, v8\ns_nop 0\nv_readfirstlane_b32 s44, v5\ns_lshl_b32 s44, s44, 1\ns_add_u32 s44, s44, {2*NSLOT}")

        e("L_loader:\ns_setprio 3")
        e(f"v_lshlrev_b32 v1, 4, v0\nv_lshlrev_b32 v2, 2, v0\nv_add_u32 v2, {FULL}, v2\nv_mov_b32 v3, {FREE}")
        e("v_mov_b32 v6, 0\nv_mov_b32 v7, 0\nv_mov_b32 v8, 0\nv_mov_b32 v4, 1")
        for k in range(4):
            e(f"v_add_u32 v{10+k}, {addr(k) - 1024*k}, v1")
        e("s_lshr_b32 s30, s100, 3\ns_lshl_b32 s30, s30, 24\ns_mov_b32 s58, 0")
        for b in range(8):
            m = (1 << self.jb[b] if b < 3 else 0) | (sum(1 << q for q in self.xk[b]) if b < len(self.xk) else 0)
            if m:
                e(f"s_bitcmp1_b32 s100, {b}\ns_cselect_b32 s59, {m}, 0\ns_xor_b32 s58, s58, s59")
        e("s_mov_b32 s31, 0x200000\ns_waitcnt lgkmcnt(0)")
        self.stamp(0)
        e(f"s_add_u32 s32, s6, s30\ns_addc_u32 s33, s7, 0\ns_mov_b32 s34, 0x1000000\ns_mov_b32 s35, 0x20000")
        for n in range(ng):
            if n == self.eb:
                e("s_barrier")
            e(f"s_mov_b32 m0, {n*4096}\ns_xor_b32 s41, s58, {unit(n)}")
            loads()
        e(f"s_mov_b32 s40, {ng}\ns_mov_b32 s57, {ng*4096}\ns_mov_b32 s44, {2*NSLOT}\ns_mov_b32 s45, {lev.index(D) if self.lev0 is None else self.lev0}")
        e(f"s_lshr_b32 s49, s2, 3\ns_lshl_b32 s48, s49, 5\ns_or_b32 s49, s49, s48\ns_bfe_u32 s49, s49, {0x50000 + self.sh0}")
        e(f"s_mov_b32 s50, {WS_CTR}\ns_and_b32 s48, s49, {self.nsh-1}\ns_mul_i32 s48, s48, {self.cst}\ns_add_u32 s48, s48, s50")
        e("s_mov_b32 s52, 0\ns_mov_b32 s62, 0")
        if self.boost:
            self.mlp_ids()
            e(f"s_cselect_b32 s56, 0, {self.boost[0]}")
        if self.mix:
            e("s_lshr_b32 s53, s2, 1" if self.mix == 3 else "s_mov_b32 s53, s2")
        if self.eb >= ng:
            e("s_barrier")
        e("L_ld0:\ns_cmp_lt_u32 s40, s44\ns_cbranch_scc0 L_lds0\nL_ldb0:")
        scatter(41, 0, (self.cstart - 1).bit_length())
        e(f"s_and_b32 m0, s57, {NSLOT*8192-1}\ns_waitcnt vmcnt({D-4})")
        loads()
        e("ds_write_b32 v2, v4\ns_waitcnt lgkmcnt(1)\nv_min3_u32 v5, v6, v7, v8\nds_read_b96 v[6:8], v3")
        e(f"v_readfirstlane_b32 s44, v5\nv_add_u32 v4, 1, v4\ns_add_u32 s40, s40, 1\ns_add_u32 s57, s57, 4096")
        e(f"s_lshl_b32 s44, s44, 1\ns_add_u32 s44, s44, {2*NSLOT}")
        for k, n in enumerate(self.prog or []):
            e(f"s_cmp_eq_u32 s40, {n}\ns_cbranch_scc1 L_pq{k}\nL_pr{k}:")
        e(f"s_cmp_lt_u32 s40, {self.cstart}\ns_cbranch_scc1 L_ld0")
        depths = sorted(set(lev))
        e("L_lap:\ns_sub_u32 s51, s44, s40")
        scatter(42, 5, 9)
        for d in depths[:0:-1]:
            e(f"s_cmp_ge_u32 s45, {lev.index(d)}\ns_cbranch_scc1 L_lap{d}")
        stubs = []
        for dd in depths:
            d = dd % 100
            G = self.G
            pub = [m for m in range(0, 128, G) if (m - d + G) % 8 < G]
            e(f"L_lap{dd}:\ns_sub_u32 s43, s40, {-2*((pub[0] - d + G)//8)}\nv_mov_b32 v4, s43")
            for g in range(32):
                if self.fin and g == self.fin[0]:
                    e("s_cmp_eq_u32 s40, 992\ns_cbranch_scc1 L_final")
                if g % 4 == 0:
                    e(f"s_cmp_lt_u32 s51, {g+4}\ns_cbranch_scc1 L_lx{dd}_{g}\nL_lr{dd}_{g}:")
                    stubs.append((dd, g))
                e(f"s_mov_b32 m0, {g*4096}\ns_xor_b32 s41, s42, {unit(g)}")
                wrote = False
                for k in range(4):
                    if k % G == 0:
                        e(f"s_waitcnt vmcnt({d-G})")
                    load(k)
                    if k % G == G - 1 and 4 * g + k - G + 1 in pub:
                        e("ds_write_b32 v2, v4\nv_add_u32 v4, 2, v4")
                        wrote = True
                fresh = g < AT or g >= 30
                if g % 8 == 6 and fresh:
                    e("ds_read_b96 v[6:8], v3")
                if g % 8 == 7 and fresh:
                    e(f"s_waitcnt lgkmcnt({1 if wrote and g != 31 else 0})")
                    limit()
                    if g != 31:
                        e("s_sub_u32 s51, s44, s40")
                if g == AT - 1:
                    e("s_mov_b32 s47, 1\ns_atomic_add s47, s[28:29], s48 glc")
            if dd != depths[-1]:
                e("s_branch L_lapend")
        nq = 4 if self.esc else len(lev) - (self.boost[2] if self.boost else 0)
        sh = (256 // self.nsh // nq).bit_length() - 1
        e("L_lapend:")
        if self.pi:
            kp, ki, lk, cen = self.pi
            e(f"s_sub_i32 s47, s47, {128//self.nsh}\ns_ashr_i32 s46, s52, {lk}\ns_sub_i32 s52, s52, s46\ns_add_i32 s52, s52, s47")
            e(f"s_mul_i32 s45, s47, {kp}\ns_mul_i32 s46, s52, {ki}\ns_add_i32 s45, s45, s46\ns_add_i32 s45, s45, {cen}")
            e("s_ashr_i32 s45, s45, 8\ns_max_i32 s45, s45, 0")
        else:
            e(f"s_lshr_b32 s45, s47, {sh}")
        if self.esc:
            lo, uth, ush, dth, dn = self.esc
            e(f"s_add_u32 s52, s52, 1\ns_cmp_ge_u32 s47, {uth}\ns_cselect_b32 s52, s52, 0\ns_lshr_b32 s46, s52, {ush}\ns_add_u32 s45, s45, s46")
            if lo:
                e(f"s_add_u32 s62, s62, 1\ns_cmp_lt_u32 s47, {dth}\ns_cselect_b32 s62, s62, 0")
                e(f"s_cmp_lt_u32 s62, {dn}\ns_addc_u32 s45, s45, 0")
        if self.boost:
            e(f"s_cmp_lt_u32 s40, s56\ns_cselect_b32 s46, {self.boost[1]}, 0\ns_add_u32 s45, s45, s46")
        if self.mix:
            e(f"s_sub_u32 s46, s40, {self.mixat}\ns_cmp_lt_u32 s46, {self.mixto-self.mixat}\ns_cselect_b32 s46, s53, 0")
            e(f"s_add_u32 s49, s49, s46\ns_add_u32 s50, s50, {self.cst*self.nsh}")
            if self.mix == 2:
                e("s_sub_u32 s53, 0, s53")
            e(f"s_and_b32 s48, s49, {self.nsh-1}\ns_mul_i32 s48, s48, {self.cst}\ns_add_u32 s48, s48, s50\ns_add_u32 s40, s40, 32")
        elif self.rot:
            e(f"s_lshl_b32 s48, s49, 5\ns_or_b32 s49, s49, s48\ns_bfe_u32 s49, s49, {0x50000 + self.rot}\ns_add_u32 s50, s50, {self.cst*self.nsh}")
            e(f"s_and_b32 s48, s49, {self.nsh-1}\ns_mul_i32 s48, s48, {self.cst}\ns_add_u32 s48, s48, s50\ns_add_u32 s40, s40, 32")
        else:
            e(f"s_add_u32 s48, s48, {self.cst*self.nsh}\ns_add_u32 s40, s40, 32")
        if self.stamps:
            e("s_add_u32 s96, s96, s45")
        for k, n in enumerate(self.prog or []):
            e(f"s_cmp_lg_u32 s40, {n}\ns_cbranch_scc1 L_pg{k}")
            self.stamp(3 + k)
            e(f"L_pg{k}:")
        e("s_and_b32 s46, s40, 511\ns_cbranch_scc1 L_lap")
        last = max(lev)
        if self.fin:
            g0, last = self.fin
            e("s_branch L_tov")
            self.L.append("@SPOT")
            e("L_final:\nv_subrev_u32 v4, 2, v4")
            for g in range(g0, 32):
                if g % 4 == 0:
                    e(f"s_cmp_lt_u32 s51, {g+4}\ns_cbranch_scc1 L_lxf_{g}\nL_lrf_{g}:")
                    stubs.append(("f", g))
                e(f"s_mov_b32 m0, {g*4096}\ns_xor_b32 s41, s42, {unit(g)}\ns_waitcnt vmcnt({last-4})")
                loads()
                if (g - last // 4 + 1) % 2 == 0:
                    e(f"v_max_u32 v4, {992 + g - last//4 + 1}, v4\nds_write_b32 v2, v4")
        else:
            e("s_cmp_lt_u32 s40, 1024\ns_cbranch_scc1 L_tov")
            e("v_subrev_u32 v4, 2, v4")
        for k in range((last + 3) // 4, -1, -1):
            if k % 2 == 0 and 4 * k < 64:
                e(f"v_max_u32 v4, {1024-k}, v4\ns_waitcnt vmcnt({4*k})\nds_write_b32 v2, v4")
        if self.fin:
            e("s_waitcnt lgkmcnt(0)")
        self.stamp(2)
        e("s_branch L_gtail")
        self.L.append("@SPOT")
        e("L_tov:\ns_add_u32 s32, s8, s30\ns_addc_u32 s33, s9, 0")
        self.stamp(1)
        e("s_branch L_lap")
        e("L_lds0:\ns_sleep 1\nds_read_b96 v[6:8], v3\ns_waitcnt lgkmcnt(0)")
        limit()
        self.budget()
        if self.stamps:
            e("s_add_u32 s98, s98, 1")
        e("s_cmp_lt_u32 s40, s44\ns_cbranch_scc1 L_ldb0\ns_branch L_lds0")
        for k, n in enumerate(self.prog or []):
            e(f"L_pq{k}:")
            self.stamp(3 + k)
            e(f"s_branch L_pr{k}")
        for d, g in stubs:
            e(f"L_lx{d}_{g}:\ns_mov_b32 s46, {g+4}\ns_call_b64 s[60:61], L_room\ns_branch L_lr{d}_{g}")
        e("L_room:\nds_read_b96 v[6:8], v3\ns_waitcnt lgkmcnt(0)")
        limit()
        self.budget()
        if self.stamps:
            e("s_add_u32 s98, s98, 1")
        e("s_sub_u32 s51, s44, s40\ns_cmp_lt_u32 s51, s46\ns_cbranch_scc1 L_room\ns_setpc_b64 s[60:61]")

    def consumer(self):
        e = self.e
        NP = self.prepull
        BUF = [64 + 32 * u for u in range(NP)]
        QB, DQ, O0, O1, AP, MK, P = 32, 16, 20, 24, 32, 28, 12
        vK, vV, vA, vM, vS, vSL = 3, 4, 5, 6, 7, 8
        vF, vT, vOA = 48, 49, 50

        def pull(buf, vbase, sleep=1):
            e("s_lshl_b32 s43, s40, 1\ns_add_u32 s43, s43, 2")
            self.lds_wait(vM, FULL - MISC, 42, "s43", sleep)
            e(f"s_and_b32 s44, s40, {NSLOT-1}\ns_lshl_b32 s44, s44, 13\nv_add_u32 v{vA}, s44, v{vbase}")
            for k in range(8):
                e(f"ds_read_b128 v[{buf+4*k}:{buf+4*k+3}], v{vA} offset:{(k>>1)*2048+(k&1)*256}")

        def release():
            e(f"v_mov_b32 v1, s41\nds_write_b32 v9, v1")

        def qk(buf, counted):
            for k in range(8):
                if counted:
                    e(f"s_waitcnt lgkmcnt({7-k})")
                c = "0" if k == 0 else f"v[{DQ}:{DQ+3}]"
                e(f"v_mfma_f32_16x16x32_bf16 v[{DQ}:{DQ+3}], v[{buf+4*k}:{buf+4*k+3}], v[{QB+4*k}:{QB+4*k+3}], {c}")
            if counted:
                release()
                e("s_nop 5")
            else:
                e("s_nop 7")
            e(f"v_mov_b32_dpp v10, v{DQ} quad_perm:[0,0,0,0] {DPPF}")
            e(f"v_mov_b32_dpp v11, v{DQ+2} quad_perm:[2,2,2,2] {DPPF}\ns_nop 0")
            e(f"v_add_f32_dpp v10, v{DQ+1}, v10 quad_perm:[1,1,1,1] {DPPF}")
            e(f"v_add_f32_dpp v11, v{DQ+3}, v11 quad_perm:[3,3,3,3] {DPPF}")
            e("v_add_f32 v10, v10, v11")
            self.rbf1(10)

        e("L_consumer:\ns_sub_u32 s30, s3, 1\ns_mov_b32 s31, 0x200000\ns_mov_b32 s42, 0\ns_waitcnt lgkmcnt(0)\ns_barrier")
        if self.l2warm:
            K = NAME + "_kernel"
            e("s_cmp_lg_u32 s30, 1\ns_cbranch_scc1 L_nol2\ns_getpc_b64 s[60:61]\nL_pc:")
            e(f"s_sub_u32 s60, s60, L_pc-{K}\ns_subb_u32 s61, s61, 0\ns_lshr_b32 s62, s2, 3\ns_lshl_b32 s62, s62, 10")
            e(f"v_lshl_add_u32 v10, v0, 4, s62\nv_min_u32 v10, L_last-{K}-16, v10\nv_and_b32 v10, -16, v10")
            e("v_mov_b32 v11, s61\nv_add_co_u32 v10, vcc, s60, v10\ns_nop 1\nv_addc_co_u32 v11, vcc, 0, v11, vcc")
            e("global_load_dwordx4 v[16:19], v[10:11], off\nL_nol2:")
        e(f"v_mov_b32 v{vM}, {MISC}")
        e("v_lshrrev_b32 v13, 4, v0\nv_and_b32 v14, 15, v0\nv_bfe_u32 v15, v0, 2, 2\nv_and_b32 v2, 3, v0")
        e(f"v_lshlrev_b32 v{vK}, 6, v13\nv_lshl_add_u32 v{vK}, v2, 4, v{vK}\nv_mov_b32 v12, v{vK}")
        e(f"v_lshl_add_u32 v{vK}, v15, 9, v{vK}")
        e(f"v_lshlrev_b32 v{vV}, 9, v13\nv_lshl_add_u32 v{vV}, v14, 4, v{vV}")
        e(f"s_mul_i32 s45, s30, {SC_STRIDE}\ns_add_u32 s45, s45, {SC}")
        e(f"v_and_b32 v{vS}, 60, v0\nv_add_u32 v{vS}, s45, v{vS}")
        e(f"v_lshlrev_b32 v{vSL}, 4, v0\nv_add_u32 v{vSL}, s45, v{vSL}")
        e(f"s_lshl_b32 s46, s30, 2\ns_add_u32 s46, s46, {FREE}\nv_mov_b32 v9, s46")
        e("v_and_b32 v1, 1, v0\nv_mov_b32 v10, 0xffff\nv_lshlrev_b32 v1, 4, v1\nv_lshlrev_b32 v10, v1, v10")
        e("v_lshrrev_b32 v1, 1, v14")
        for r in range(4):
            e(f"v_cmp_eq_u32 vcc, {r}, v1\ns_nop 1\nv_cndmask_b32 v{MK+r}, 0, v10, vcc")
        e("s_mov_b32 s40, s30")
        for u in range(NP):
            pull(BUF[u], vK)
            e("s_add_u32 s41, s40, 3\ns_waitcnt lgkmcnt(0)")
            release()
            e("s_mov_b32 s40, s41")
        e("s_mov_b32 s47, 0")
        self.stamp(0)
        self.lds_wait(vM, QRDY - MISC, 47, 1, 1)
        self.stamp(1)
        e(f"v_add_u32 v12, {QV}, v12")
        e(f"ds_read_b128 v[{O0}:{O0+3}], v12\nds_read_b128 v[{O0+4}:{O0+7}], v12 offset:256\ns_waitcnt vmcnt(0)")
        for r in range(4):
            e(f"v_mov_b32 v{DQ+r}, 0xff800000")
        e(f"ds_write_b128 v{vSL}, v[{DQ}:{DQ+3}] offset:5120\ns_waitcnt lgkmcnt(0)")
        for t in range(4):
            e(f"v_cmp_eq_u32 vcc, {t}, v15\ns_nop 1")
            for k in range(8):
                e(f"v_cndmask_b32 v{QB+8*t+k}, 0, v{O0+k}, vcc")
        for r in range(8):
            e(f"v_mov_b32 v{O0+r}, 0")
        qk(BUF[0], False)
        e(f"ds_write_b32 v{vS}, v10")
        e(f"v_add_u32 v2, {64*NP}, v{vS}\ns_add_u32 s48, s30, 256")
        e("L_kloop:")
        e("s_add_u32 s41, s40, 3\ns_cmp_lt_u32 s41, 256\ns_cselect_b32 s41, s41, s48")
        pull(BUF[0], vK)
        qk(BUF[0], True)
        e("ds_write_b32 v2, v10\nv_add_u32 v2, 64, v2")
        e("s_mov_b32 s40, s41\ns_cmp_lt_u32 s40, 256\ns_cbranch_scc1 L_kloop")
        for u in range(1, NP):
            qk(BUF[u], False)
            e(f"ds_write_b32 v{vS}, v10 offset:{64*u}")
        self.stamp(2)
        S = BUF[0]
        for k in range(6):
            e(f"ds_read_b128 v[{S+4*k}:{S+4*k+3}], v{vSL} offset:{1024*k}")
        e("s_waitcnt lgkmcnt(0)")
        e(f"v_max_f32 v10, v{S}, v{S+1}")
        for k in range(2, 24, 2):
            e(f"v_max3_f32 v10, v10, v{S+k}, v{S+k+1}")
        self.wave_reduce("v_max_f32", [10])
        e(f"v_readlane_b32 s50, v10, 63\ns_mov_b32 s51, {hex(C2)}\ns_nop 0")
        for k in range(24):
            e(f"v_subrev_f32 v{S+k}, s50, v{S+k}")
        for k in range(24):
            e(f"v_mul_f32 v{S+k}, s51, v{S+k}")
        for k in range(24):
            e(f"v_exp_f32 v{S+k}, v{S+k}")
        e(f"v_add_f32 v10, v{S}, v{S+1}")
        for k in range(2, 24):
            e(f"v_add_f32 v10, v10, v{S+k}")
        for k in range(24):
            e(f"v_cvt_pk_bf16_f32 v{S+k}, v{S+k}, v{S+k}")
        for k in range(6):
            e(f"ds_write_b128 v{vSL}, v[{S+4*k}:{S+4*k+3}] offset:{1024*k}")
        self.wave_reduce("v_add_f32", [10])
        e(f"v_readlane_b32 s52, v10, 63\nv_mov_b32 v{DQ}, s50\nv_mov_b32 v{DQ+2}, 1\nv_mov_b32 v{DQ+3}, 1")
        e(f"v_mov_b32 v{DQ+1}, s52\ns_lshl_b32 s46, s30, 4\ns_add_u32 s46, s46, {ML}\nv_mov_b32 v1, s46")
        e(f"ds_write_b128 v1, v[{DQ}:{DQ+3}]\nv_mov_b32 v2, v{vS}\ns_mov_b32 s49, 460")
        self.srd(32, 28, WS_SIZE)
        e(f"s_mov_b32 s53, 0xffffff00\ns_lshl_b32 s54, s100, 10\ns_add_u32 s54, s54, {WS_OP}")
        e(f"v_lshlrev_b32 v{vOA}, 4, v0")
        self.stamp(3)
        T = BUF[1]

        def partials():
            e(f"ds_read_b64 v[10:11], v{vM} offset:{PF-MISC}")
            e(f"ds_read_b128 v[{T}:{T+3}], v{vSL} offset:{SC_STRIDE}\nds_read_b128 v[{T+4}:{T+7}], v{vSL} offset:{2*SC_STRIDE}")

        def pv(last):
            e(f"s_add_u32 s41, s40, 3\nds_read_b32 v{P}, v2\nv_add_u32 v2, 64, v2\ns_waitcnt lgkmcnt(0)")
            for t in range(4):
                for r in range(4):
                    e(f"v_and_b32_dpp v{AP+4*t+r}, v{P}, v{MK+r} row_newbcast:{4*t} {DPPF}")
            pull(BUF[0], vV, self.csleep if last else 1)
            if last:
                partials()
            for k in range(8):
                o = O0 if k % 2 == 0 else O1
                a = AP + 4 * (k >> 1)
                e(f"s_waitcnt lgkmcnt({7-k+3*last})")
                e(f"v_mfma_f32_16x16x32_bf16 v[{o}:{o+3}], v[{a}:{a+3}], v[{BUF[0]+4*k}:{BUF[0]+4*k+3}], v[{o}:{o+3}]")

        e("L_vloop:")
        pv(False)
        release()
        e("s_mov_b32 s40, s41\ns_cmp_lt_u32 s40, s49\ns_cbranch_scc1 L_vloop")
        e("s_cmp_lt_u32 s40, 511\ns_cbranch_scc1 L_vmid")
        e("s_cmp_lg_u32 s30, 0\ns_cbranch_scc1 L_cpart")
        pv(True)
        e("L_csum:\ns_waitcnt lgkmcnt(0)\nv_and_b32 v10, v10, v11")
        self.pk("add", T, T, T + 4)
        self.pk("add", T + 2, T + 2, T + 6)
        e("v_readfirstlane_b32 s46, v10\ns_cmp_eq_u32 s46, 0\ns_cbranch_scc1 L_cretry\ns_nop 0")
        for r in range(4):
            e(f"v_permlane32_swap_b32 v{O0+r}, v{O1+r}")
        for r in range(4):
            e(f"v_fmac_f32 v{T+r}, v{O0+r}, v{vF}")
        e(f"v_and_or_b32 v{T}, v{T}, s53, v{vT}")
        if self.fast:
            e("s_cmp_lg_u32 s47, 2\ns_cbranch_scc1 L_cfar")
            e(f"buffer_store_dwordx4 v[{T}:{T+3}], v{vOA}, s[32:35], s54 offen {self.npol}")
            self.stamp(4)
            e("s_branch L_gtail\nL_cfar:")
        e(f"buffer_store_dwordx4 v[{T}:{T+3}], v{vOA}, s[32:35], s54 offen sc1")
        self.stamp(4)
        e("s_branch L_gtail")
        e("L_cretry:")
        self.budget()
        partials()
        e("s_branch L_csum")
        self.L.append("@SPOT")
        e("L_cpart:")
        for r in range(4):
            e(f"v_permlane32_swap_b32 v{O0+r}, v{O1+r}")
        for r in range(4):
            e(f"v_mul_f32 v{O0+r}, v{O0+r}, v{vF}")
        e(f"v_mov_b32 v1, 1\nds_write_b128 v{vSL}, v[{O0}:{O0+3}]\nds_write_b32 v9, v1 offset:{PF-4-FREE}\ns_branch L_gtail")
        e("L_vmid:\ns_mov_b32 s47, 0")
        self.lds_wait(vM, FS + 12 - MISC, 47, 1, 2)
        e(f"ds_read_b32 v{vF}, v9 offset:{FS-FREE}\nds_read_b32 v{vT}, v{vM} offset:{TAG-MISC}")
        e(f"s_mov_b32 s49, 511\ns_waitcnt lgkmcnt(0)\nv_and_b32 v{vT}, 0xff, v{vT}")
        e("s_branch L_vloop")

    def unit_mfma_lds(self, B, A, vA, nsteps, D, off=0):
        for s in range(nsteps):
            self.e(f"ds_read_b128 v[{A+4*s}:{A+4*s+3}], v{vA} offset:{off+64*s}")
        for s in range(nsteps):
            self.e(f"s_waitcnt lgkmcnt({nsteps-1-s})")
            c = "0" if s == 0 else f"v[{D}:{D+3}]"
            self.e(f"v_mfma_f32_16x16x32_bf16 v[{D}:{D+3}], v[{A+4*s}:{A+4*s+3}], v[{B+4*s}:{B+4*s+3}], {c}")
        self.e("s_nop 7")

    def unit_mfma_dpp(self, B, src, A, D):
        def bc(s):
            for r in (0, 2):
                d = A + 4 * (s % 3) + r
                self.e(f"v_mov_b64_dpp v[{d}:{d+1}], v[{src+r}:{src+r+1}] row_newbcast:{s} {DPPF}")
        self.e("s_nop 1")
        bc(0)
        for s in range(14):
            if s < 13:
                bc(s + 1)
            else:
                self.e("s_nop 0")
            a = A + 4 * (s % 3)
            c = "0" if s == 0 else f"v[{D}:{D+3}]"
            self.e(f"v_mfma_f32_16x16x32_bf16 v[{D}:{D+3}], v[{a}:{a+3}], v[{B+4*s}:{B+4*s+3}], {c}")
        self.e("s_nop 7")

    def soft_barrier(self, vM):
        self.e(f"s_add_u32 s45, s45, 4\nv_mov_b32 v1, 1\ns_mov_b64 exec, 1\n"
               f"ds_add_u32 v{vM}, v1 offset:{BAR-MISC}\ns_mov_b64 exec, -1")
        self.lds_wait(vM, BAR - MISC, 44, "s45", 2)

    def unit_load(self, dst, rounds, stride, advance, pol):
        e = self.e
        e(f"s_lshl_b32 s60, s30, 4\nv_add_u32 v9, s60, v6\nv_mul_u32_u24 v9, {stride}, v9\nv_add_u32 v9, v9, v7")
        e(f"v_add_u32 v14, {8*stride}, v9\ns_mov_b32 s40, {advance}")
        self.stage_pols.add(pol)
        for rd in range(rounds):
            e(f"s_call_b64 s[42:43], L_stage{pol}")
            self.tr_reads(dst + 8 * rd, 8, 0)
            self.tr_reads(dst + 8 * rd + 4, 8, 4096)

    def stage_subs(self, vM):
        e = self.e
        for pol in sorted(self.stage_pols):
            e(f"L_stage{pol}:\ns_waitcnt lgkmcnt(0)")
            self.soft_barrier(vM)
            self.dma_step(9, 36, "s57", pol)
            self.dma_step(14, 36, "s59", pol)
            e("s_add_u32 s58, s58, s40\ns_waitcnt vmcnt(0)")
            self.soft_barrier(vM)
            e("s_setpc_b64 s[42:43]")

    def sum_round(self, a, b, n, tmp):
        for k in range(n):
            self.e(f"v_add_f32 v{a+k}, v{a+k}, v{b+k}")
        if n == 1:
            self.rbf1(a)
        else:
            self.rbf_pairs(list(range(a, a + n)), tmp)

    def mlp_ids(self):
        e = self.e
        e("s_and_b32 s60, s100, 7")
        if not self.xl:
            e("s_bfe_u32 s54, s2, 0x10005\ns_bfe_u32 s55, s2, 0x20003\ns_lshl_b32 s61, s60, 2\ns_add_u32 s55, s55, s61")
            e("s_lshr_b32 s61, s2, 6\ns_cmp_eq_u32 s61, 1")
        elif self.xm:
            e("s_bfe_u32 s54, s2, 0x10002\ns_lshr_b32 s55, s2, 6\ns_mul_i32 s55, s55, 7\ns_add_u32 s55, s55, s60")
            e("s_and_b32 s61, s2, 3\ns_cmp_eq_u32 s61, 2")
        else:
            e("s_bfe_u32 s54, s2, 0x10006\ns_bfe_u32 s55, s2, 0x20001\ns_mul_i32 s55, s55, 7\ns_add_u32 s55, s55, s60")
            e("s_and_b32 s61, s2, 0x81\ns_cmp_eq_u32 s61, 0")
        e("s_cselect_b32 s60, s60, 7\ns_lshl_b32 s101, s54, 5\ns_add_u32 s101, s101, s55")
        e("s_cmp_eq_u32 s60, 7\ns_cselect_b32 s101, 64, s101")

    def service(self):
        e = self.e
        WO, W1, W2 = 32, 64, 120
        OCB, SB, GA, XP, GB, F = 176, 184, 192, 194, 196, 240
        RAW, AD, DD = 200, 232, 244
        vT8, vT16, vM, vT3 = 10, 11, 12, 252
        LM, HM = "s[50:51]", "s[52:53]"
        e("L_service:\ns_sub_u32 s30, s3, 4\ns_mov_b32 s31, 0x80000")
        e("s_and_b32 s48, s100, 7\ns_lshr_b32 s49, s100, 3")
        e("s_mov_b32 s50, 0x3fff3fff\ns_mov_b32 s51, 0x3fff3fff\ns_mov_b32 s52, 0x0fffffff\ns_mov_b32 s53, 0x0fffffff")
        e("v_mov_b32 v2, 0\nv_lshrrev_b32 v3, 4, v0\nv_and_b32 v4, 15, v0")
        e("v_lshlrev_b32 v5, 6, v4\nv_lshl_add_u32 v5, v3, 4, v5")
        e("v_lshrrev_b32 v6, 3, v0\nv_and_b32 v7, 7, v0\nv_lshlrev_b32 v7, 4, v7")
        e("v_lshlrev_b32 v8, 10, v3\nv_bfe_u32 v1, v0, 2, 2\nv_lshl_add_u32 v8, v1, 7, v8")
        e("v_and_b32 v1, 3, v0\nv_lshl_add_u32 v8, v1, 3, v8")
        e(f"v_mov_b32 v{vM}, {MISC}\ns_mov_b32 s47, 0\ns_waitcnt lgkmcnt(0)\ns_barrier")
        self.srd(32, 28, WS_SIZE)
        e("s_cmp_eq_u32 s30, 0\ns_cbranch_scc1 L_pro")
        self.lds_wait(vM, QRDY - MISC, 47, 1, 8)
        if self.vtouch:
            e("s_lshl_b32 s60, s100, 21\ns_add_u32 s36, s8, s60\ns_addc_u32 s37, s9, 0\ns_mov_b32 s38, 0x200000\ns_mov_b32 s39, 0x20000")
            e("s_cmp_lg_u32 s30, 1\ns_cbranch_scc1 L_notouch\nbuffer_load_dword v16, v2, s[36:39], 0 offen nt\nL_notouch:")
        e(f"ds_read_b32 v1, v{vM} offset:{TAG-MISC}\ns_waitcnt lgkmcnt(0)\nv_readfirstlane_b32 s56, v1")
        e(f"v_and_b32 v{vT8}, 0xff, v1\nv_and_b32 v{vT16}, 0xffff, v1\nv_and_b32 v{vT3}, 7, v1\ns_branch L_bg")

        PB, PA, PRAW, PCL, PN, PC, PD = 32, 144, 144, 176, 208, 224, 232
        e("L_pro:")
        self.stamp(0)
        e("s_load_dword s56, s[28:29], 0")
        e("s_cmp_ge_u32 s2, 128\ns_cselect_b32 s55, s100, s2" if self.qloc else "s_mov_b32 s55, s2")
        e("s_and_b32 s54, s55, 1\ns_bfe_u32 s55, s55, 0x60001")
        e("s_cmp_ge_u32 s2, 128")
        e("s_cselect_b32 s36, s4, s20\ns_cselect_b32 s37, s5, s21\ns_mov_b32 s38, 1792\ns_mov_b32 s39, 0x20000")
        e("s_cselect_b32 s40, s10, s22\ns_cselect_b32 s41, s11, s23\ns_mov_b32 s43, 0x20000")
        e(f"s_mov_b32 s46, 5376\ns_cselect_b32 s46, 8192, s46\ns_mul_i32 s42, s46, 448")
        e("s_cbranch_scc1 L_unit\ns_cmp_lt_u32 s2, 84\ns_cbranch_scc1 L_unit")
        e("s_waitcnt lgkmcnt(0)\ns_add_u32 s56, s56, 1")
        e(f"s_and_b32 s60, s56, 0xff\nv_mov_b32 v{vT8}, s60\ns_and_b32 s60, s56, 0xffff\nv_mov_b32 v{vT16}, s60\nv_and_b32 v{vT3}, 7, v{vT8}")
        e("s_branch L_getq")
        e("L_unit:")
        for k in range(8):
            e(f"v_mov_b32 v{PC+k}, 0")
        if self.lev:
            per = -(-((1024 - 64) // self.period * self.nsh) // 28)
            assert per <= 64 and per * 28 * self.cst <= WS_SIZE - WS_CTR
            e(f"s_cmp_ge_u32 s2, 28\ns_cbranch_scc1 L_noz\ns_mul_i32 s58, s2, {per*self.cst}\ns_add_u32 s58, s58, {WS_CTR}")
            for k in range(0, per, 16):
                e(f"v_lshrrev_b32 v1, 2, v0\nv_add_u32 v1, {k}, v1\nv_and_b32 v9, 3, v0\nv_lshlrev_b32 v9, 4, v9")
                e(f"v_mul_u32_u24 v13, {self.cst}, v1\nv_add_u32 v9, v9, v13")
                e(f"v_cmp_gt_u32 vcc, {per}, v1\ns_and_saveexec_b64 s[62:63], vcc")
                if self.ctouch:
                    e("buffer_load_dword v16, v9, s[32:35], s58 offen")
                e(f"buffer_store_dwordx4 v[{PC}:{PC+3}], v9, s[32:35], s58 offen sc1\ns_mov_b64 exec, -1")
            e("L_noz:")
        e("v_lshrrev_b32 v1, 5, v0\nv_and_b32 v15, 31, v0\nv_mul_u32_u24 v13, 896, v1\nv_lshl_add_u32 v13, v15, 4, v13")
        e("s_mul_i32 s58, s54, 448\ns_sub_u32 s59, 448, s58")
        e(f"s_mov_b64 exec, {HM}")
        e(f"buffer_load_dwordx4 v[{PC}:{PC+3}], v13, s[36:39], s58 offen")
        e(f"buffer_load_dwordx4 v[{PC+4}:{PC+7}], v13, s[36:39], s59 offen")
        e("s_mov_b64 exec, -1")
        e("v_mul_u32_u24 v9, s46, v6\nv_add_u32 v9, v9, v7")
        e("s_mul_i32 s58, s54, 224\ns_mul_i32 s58, s58, s46\ns_lshl_b32 s60, s55, 7\ns_add_u32 s58, s58, s60\ns_lshl_b32 s59, s46, 3")
        for n in range(28):
            self.dma_step(9, 40, PST + 1024 * n, self.wpol)
            e("s_add_u32 s58, s58, s59")
        e(f"v_mul_u32_u24 v9, {2688*4}, v1\nv_lshl_add_u32 v9, v15, 5, v9")
        e(f"v_mul_u32_u24 v13, 448, v1\nv_lshl_add_u32 v13, v15, 4, v13\nv_add_u32 v13, {AIM}, v13")
        e(f"v_bfe_u32 v1, v0, 2, 1\nv_mul_u32_u24 v14, 448, v1\nv_lshl_add_u32 v14, v3, 4, v14\nv_add_u32 v14, {AIM}, v14")
        e(f"v_add_u32 v15, {PST}, v8")
        e("s_waitcnt lgkmcnt(0)\ns_add_u32 s56, s56, 1")
        e(f"s_and_b32 s60, s56, 0xff\nv_mov_b32 v{vT8}, s60\ns_and_b32 s60, s56, 0xffff\nv_mov_b32 v{vT16}, s60\nv_and_b32 v{vT3}, 7, v{vT8}")
        e("s_waitcnt vmcnt(28)")
        X = list(range(PN, PN + 8))
        self.unpack(list(range(PC, PC + 8)), list(range(PN, PN + 16)))
        e("s_cmp_ge_u32 s2, 128\ns_cbranch_scc1 L_ln1")
        self.silu(X, list(range(PN + 8, PN + 16)))
        for k in range(4):
            e(f"v_cvt_pk_bf16_f32 v{PC+k}, v{X[2*k]}, v{X[2*k+1]}")
        e("s_branch L_frag\nL_ln1:")
        self.layernorm(X, list(range(16, 26)), extra=list(range(PN + 8, PN + 16)))
        e("L_frag:\ns_waitcnt vmcnt(0)")
        self.stamp(1)
        for st in range(7):
            for u in range(4):
                self.tr_reads(PB + 16 * st + 4 * u, 15, 4096 * st + 32 * u)
        self.stamp(2)
        e("s_cmp_lt_u32 s2, 128\ns_cbranch_scc1 L_mm")
        e(f"s_mul_i32 s58, s54, 896\ns_add_u32 s58, s58, {WS_MOD}\ns_add_u32 s59, s58, {2*2688*4}")
        loads = []
        for p in range(2):
            for m in range(2):
                for hf in range(2):
                    k = (p * 2 + m) * 2 + hf
                    loads.append((4, PRAW + 4 * k, PCL + 4 * k, 9, f"s{58+p}", m * 448 * 4 + hf * 16))
        if self.mat:
            self.lds_wait(vM, FULL - MISC, 47, self.mat, 2)
        self.gather(loads, vT3, 7, HM, pairs=True, sleep=self.msleep)
        self.stamp(3)
        self.sum_round(PCL, PCL + 16, 16, list(range(16, 24)))
        CA = list(range(PCL + 8, PCL + 16))
        for r in CA:
            e(f"v_add_f32 v{r}, 1.0, v{r}")
        self.rbf_pairs(CA, list(range(16, 20)))
        self.modulate(X, CA, list(range(PCL, PCL + 8)), list(range(PC, PC + 4)), list(range(16, 20)))
        e("L_mm:")
        e(f"s_mov_b64 exec, {HM}\nds_write_b128 v13, v[{PC}:{PC+3}]\ns_mov_b64 exec, -1\ns_waitcnt lgkmcnt(0)")
        for st in range(7):
            e(f"ds_read_b128 v[{PA+4*st}:{PA+4*st+3}], v14 offset:{64*st}")
        e("s_lshl_b32 s46, s46, 1\nv_and_b32 v1, 1, v3\nv_mul_u32_u24 v9, s46, v1\nv_lshrrev_b32 v1, 5, v0")
        e("v_lshl_add_u32 v9, v1, 6, v9\nv_lshl_add_u32 v9, v4, 2, v9")
        e(f"s_mul_i32 s58, s54, s46\ns_lshl_b32 s58, s58, 1\ns_lshl_b32 s60, s55, 8\ns_add_u32 s58, s58, s60")
        e(f"s_mov_b32 s60, {WS_MOD}\ns_cmp_ge_u32 s2, 128\ns_cselect_b32 s60, {WS_Q}, s60\ns_add_u32 s58, s58, s60")
        for st in range(7):
            e(f"s_waitcnt lgkmcnt({6-st})")
            for u in range(4):
                d, b = PD + 4 * u, PB + 16 * st + 4 * u
                c = "0" if st == 0 else f"v[{d}:{d+3}]"
                e(f"v_mfma_f32_16x16x32_bf16 v[{d}:{d+3}], v[{PA+4*st}:{PA+4*st+3}], v[{b}:{b+3}], {c}")
        e("s_nop 7")
        for v in range(2):
            e(f"v_mov_b32_dpp v{PD+8*v}, v{PD+8*v+4} quad_perm:[0,1,2,3] row_mask:0xc bank_mask:0xf")
        for v in range(2):
            e(f"v_and_or_b32 v{PD+8*v}, v{PD+8*v}, -8, v{vT3}")
            e(f"buffer_store_dword v{PD+8*v}, v9, s[32:35], s58 offen offset:{128*v} sc1")
        self.stamp(4)
        e("L_getq:")
        if self.qat:
            self.lds_wait(vM, FULL - MISC, 47, self.qat, 2)
        e(f"v_lshlrev_b32 v9, 4, v0\ns_lshl_b32 s58, s49, 10\ns_add_u32 s58, s58, {WS_Q}\ns_add_u32 s59, s58, 0x8000")
        self.gather([(4, PRAW, PCL, 9, "s58", 0), (4, PRAW + 4, PCL + 4, 9, "s59", 0)], vT3, 7, "-1",
                    sleep=self.qsleep)
        for k in range(4):
            e(f"v_add_f32 v{PCL+k}, v{PCL+k}, v{PCL+4+k}")
        e(f"v_cvt_pk_bf16_f32 v16, v{PCL}, v{PCL+1}\nv_cvt_pk_bf16_f32 v17, v{PCL+2}, v{PCL+3}")
        e(f"v_lshl_add_u32 v1, v0, 3, v{vM}\nds_write_b64 v1, v[16:17] offset:{QV-MISC}")
        e(f"v_mov_b32 v18, 1\nv_mov_b32 v19, s56\nds_write_b64 v{vM}, v[18:19] offset:{QRDY-MISC}")
        self.stamp(5)

        e("L_bg:")
        e(f"s_lshl_b32 s57, s30, 11\ns_add_u32 s57, s57, {STG}\ns_add_u32 s59, s57, 1024")
        e(f"s_lshl_b32 s60, s30, 5\ns_add_u32 s60, s60, {STG}\nv_add_u32 v8, s60, v8\ns_mov_b32 s44, 0\ns_mov_b32 s45, 0")
        self.mlp_ids()
        e("s_cmp_eq_u32 s48, 7\ns_cbranch_scc1 L_bgdone")
        if self.wdelay:
            e("s_mov_b32 s47, 0")
            self.lds_wait(vM, FULL - MISC, 47, self.wdelay, 4)
        self.srd(36, 12, 4096 * 896)
        e(f"s_and_b32 s58, s49, 15\ns_mul_i32 s58, s58, {256*896}\ns_lshl_b32 s60, s48, 7\ns_add_u32 s58, s58, s60")
        if self.bgst:
            self.stamp(1)
        self.unit_load(WO, 4, 896, 64 * 896, self.opol)
        if self.bgst:
            self.stamp(2)
        e("s_cmp_ge_u32 s101, 64\ns_cbranch_scc1 L_bgdone")
        if self.mdelay:
            e(f"s_mul_i32 s46, s54, {self.mdelay}\ns_mov_b32 s47, 0")
            self.lds_wait(vM, FULL - MISC, 47, "s46", 32)
        self.srd(36, 16, 448 * 3584)
        e("s_lshl_b32 s58, s55, 7")
        self.unit_load(W1, 7, 3584, 64 * 3584, self.mpol)
        if self.bgst:
            self.stamp(3)
        self.srd(36, 18, 1792 * 896)
        e(f"s_mul_i32 s58, s55, {64*896}")
        self.unit_load(W2, 7, 896, 128, self.mpol)
        e("s_waitcnt lgkmcnt(0)")
        self.soft_barrier(vM)
        if self.bgst:
            self.stamp(4)
        e("v_and_b32 v1, 31, v0\nv_lshlrev_b32 v13, 2, v1\nv_lshrrev_b32 v1, 5, v0\nv_lshl_add_u32 v13, v1, 1, v13")
        e("s_mul_i32 s60, s30, 112\nv_add_u32 v13, s60, v13")
        self.srd(36, 4, 1792)
        e(f"v_lshlrev_b32 v14, 1, v13\ns_mul_i32 s58, s54, 896\nbuffer_load_dword v{XP}, v14, s[36:39], s58 offen")
        e(f"s_mul_i32 s58, s54, {2688*4}\ns_add_u32 s58, s58, {WS_MOD+896*4}\ns_add_u32 s59, s58, {2*2688*4}\nv_lshlrev_b32 v9, 2, v13")
        self.gather([(2, RAW, GA, 9, "s58", 0), (2, RAW + 2, 16, 9, "s59", 0)], vT3, 7, HM, sleep=8)
        self.sum_round(GA, 16, 2, [18])
        e(f"v_and_b32 v{XP+1}, 0xffff0000, v{XP}\nv_lshlrev_b32 v{XP}, 16, v{XP}")
        e("v_lshlrev_b32 v9, 1, v5")
        loads = []
        for p in range(2):
            for m, dst in enumerate((SB, OCB)):
                for hf in range(2):
                    k = (p * 2 + m) * 2 + hf
                    cl = dst + 4 * hf if p == 0 else AD + 8 * (1 - m) + 4 * hf
                    loads.append((4, RAW + 4 * k, cl, 9, f"s{58+p}", (m + 1) * 448 * 4 + hf * 16))
        self.gather(loads, vT3, 7, LM, sleep=8, pairs=True)
        self.sum_round(OCB, AD, 16, list(range(16, 24)))
        e(f"s_lshl_b32 s60, s55, 6\ns_add_u32 s58, s58, s60\ns_add_u32 s58, s58, {1344*4}\ns_add_u32 s59, s58, {2*2688*4}")
        e("v_lshlrev_b32 v9, 2, v4")
        self.gather([(1, RAW, GB, 9, "s58", 0), (1, RAW + 1, 16, 9, "s59", 0)], vT3, 7, "-1", sleep=8)
        self.sum_round(GB, 16, 1, None)
        for k in range(8):
            e(f"v_add_f32 v{OCB+k}, 1.0, v{OCB+k}")
        self.rbf_pairs(list(range(OCB, OCB + 8)), list(range(16, 20)))
        e(f"s_lshl_b32 s60, s30, 10\ns_add_u32 s60, s60, {GX}\nv_lshl_add_u32 v13, v0, 4, s60\nds_write_b128 v13, v[{GA}:{GA+3}]")
        e(f"v_lshlrev_b32 v13, 2, v0\nv_add_u32 v13, {GBL}, v13\nds_write_b32 v13, v{GB}\ns_waitcnt lgkmcnt(0)")
        self.soft_barrier(vM)
        e("L_bgdone:")
        if self.stamps:
            e("s_cmp_eq_u32 s30, 0\ns_cbranch_scc1 L_st0")
            self.stamp(0)
            e("L_st0:")
        if self.warm:
            e("s_cmp_lg_u32 s30, 1\ns_cbranch_scc1 L_warmed\ns_mov_b32 s60, 2\nL_warm:\ns_mov_b64 exec, 0\ns_branch L_pad0")
            e("L_padret:\ns_mov_b64 exec, -1\ns_sub_u32 s60, s60, 1\ns_cmp_lg_u32 s60, 0\ns_cbranch_scc1 L_warm\nL_warmed:")
        e("s_cmp_lg_u32 s30, 0\ns_cbranch_scc1 L_tail0")

        top, go = self.lab("ml"), self.lab("mlgo")
        e(f"{top}:")
        for i in range(3):
            e(f"ds_read_b128 v[{16+4*i}:{19+4*i}], v{vM} offset:{ML-MISC+16*i}")
        e("s_waitcnt lgkmcnt(0)\nv_min3_u32 v1, v18, v22, v26\ns_nop 0\nv_readfirstlane_b32 s60, v1")
        e(f"s_cmp_lg_u32 s60, 0\ns_cbranch_scc1 {go}")
        self.budget()
        e(f"s_sleep 32\ns_branch {top}\n{go}:")
        e(f"s_mov_b32 s61, {hex(C2)}\nv_max3_f32 v28, v16, v20, v24")
        for i in range(3):
            e(f"v_sub_f32 v{18+4*i}, v{16+4*i}, v28\nv_mul_f32 v{18+4*i}, s61, v{18+4*i}\nv_exp_f32 v{18+4*i}, v{18+4*i}")
        e("s_nop 0\nv_mul_f32 v29, v17, v18\nv_fmac_f32 v29, v21, v22\nv_fmac_f32 v29, v25, v26")
        e(f"v_or_b32 v{RAW}, v28, v{vT16}\nv_and_b32 v1, 0xffff0000, v29\nv_or_b32 v{RAW+1}, v1, v{vT16}")
        e(f"v_lshlrev_b32 v1, 16, v29\nv_or_b32 v{RAW+2}, v1, v{vT16}")
        e(f"s_getreg_b32 s46, hwreg(HW_REG_XCC_ID, 0, 4)\ns_lshl_b32 s46, s46, 16\nv_or_b32 v{RAW+3}, s46, v{vT16}")
        if self.xl:
            e("s_and_b32 s58, s2, 7\ns_lshr_b32 s59, s2, 3")
        else:
            e("s_lshr_b32 s58, s2, 5\ns_and_b32 s59, s2, 31")
        e(f"s_lshl_b32 s58, s58, 9\ns_add_u32 s58, s58, {WS_ML}\ns_lshl_b32 s60, s59, 4\nv_mov_b32 v1, s60")
        e(f"s_mov_b64 exec, 1\nbuffer_store_dwordx4 v[{RAW}:{RAW+3}], v1, s[32:35], s58 offen sc1\ns_mov_b64 exec, -1")
        e("s_mov_b32 s47, 0")
        self.lds_wait(vM, FULL - MISC, 47, 640, 32)
        e(f"s_and_b32 s59, s59, 24\nv_and_b32 v9, {31 if self.fast else 7}, v0\nv_xor_b32 v9, s59, v9\nv_lshlrev_b32 v9, 4, v9")
        self.gather([(4, RAW + 4, RAW + 8, 9, "s58", 0)], vT16, "WORD_0", "-1", sleep=16)
        m, l = RAW + 8, RAW + 9
        e(f"v_lshrrev_b32 v{l+1}, 16, v{l+1}\nv_or_b32 v{l}, v{l}, v{l+1}\nv_mov_b32 v28, v{m}")
        oct_steps = ["quad_perm:[1,0,3,2]", "quad_perm:[2,3,0,1]", "row_half_mirror"]
        for st in oct_steps:
            e(f"s_nop 1\nv_max_f32_dpp v28, v28, v28 {st} {DPPF}")
        e(f"v_sub_f32 v{m}, v{m}, v28\nv_mul_f32 v{m}, s61, v{m}\nv_exp_f32 v{m}, v{m}\ns_nop 0\nv_mul_f32 v29, v{m}, v{l}")
        for st in oct_steps:
            e(f"s_nop 1\nv_add_f32_dpp v29, v29, v29 {st} {DPPF}")
        e("v_rcp_f32 v29, v29")
        for i in range(3):
            e(f"v_sub_f32 v{F+i}, v{16+4*i}, v28\nv_mul_f32 v{F+i}, s61, v{F+i}\nv_exp_f32 v{F+i}, v{F+i}\ns_nop 0")
            e(f"v_mul_f32 v{F+i}, v{F+i}, v29")
        if self.fast:
            e(f"v_cmp_ne_u32 vcc, s46, v{RAW+11}\ns_cmp_eq_u64 vcc, 0\ns_cselect_b32 s60, 2, 1\nv_mov_b32 v{F+3}, s60")
        else:
            e(f"v_mov_b32 v{F+3}, 1")
        e(f"s_mov_b64 exec, 1\nds_write_b128 v{vM}, v[{F}:{F+3}] offset:{FS-MISC}\ns_mov_b64 exec, -1")
        e("L_tail0:\ns_cmp_eq_u32 s48, 7\ns_cbranch_scc1 L_fin")

        def stamp_s(k):
            if self.stamps and not self.bgst:
                e(f"s_cmp_eq_u32 s30, 0\ns_cbranch_scc1 L_st{k}")
                self.stamp(k)
                e(f"L_st{k}:")

        e(f"s_lshl_b32 s58, s49, 13\ns_lshl_b32 s60, s30, 8\ns_add_u32 s58, s58, s60\ns_add_u32 s58, s58, {WS_OP}")
        e("s_add_u32 s59, s58, 4096\nv_lshlrev_b32 v9, 2, v0")
        e(f"v_lshlrev_b32 v255, 10, v3\nv_lshl_add_u32 v255, v4, 4, v255\nv_lshl_add_u32 v1, v4, 3, v3")
        e("s_lshr_b32 s60, s30, 1\ns_lshl_b32 s60, s60, 8\ns_and_b32 s61, s30, 1\ns_lshl_b32 s61, s61, 3\ns_add_u32 s60, s60, s61")
        e(f"s_add_u32 s60, s60, {QV}\nv_lshl_add_u32 v14, v1, 1, s60")
        e(f"v_lshl_add_u32 v15, v3, 4, v{vM}\nv_add_u32 v13, v5, v{vM}")
        e(f"s_mul_i32 s40, s49, {448*4}\ns_lshl_b32 s60, s48, 8\ns_add_u32 s40, s40, s60")
        e(f"s_lshl_b32 s60, s30, 6\ns_add_u32 s40, s40, {WS_Y}")
        if self.ymerge:
            e(f"v_lshl_add_u32 v29, v4, 2, v{vM}\nv_add_u32 v29, s60, v29\nv_add_u32 v28, v9, v{vM}")
        else:
            e("s_add_u32 s40, s40, s60")
        vYM, vYT = 253, 254
        e(f"v_and_b32 v1, 3, v0\nv_cmp_eq_u32 vcc, 0, v1\nv_mov_b32 v1, 0xffffff00\ns_mov_b32 s43, 0xffffff00")
        e(f"v_cndmask_b32 v{vYM}, -1, v1, vcc\nv_cndmask_b32 v{vYT}, 0, v{vT8}, vcc")
        e(f"s_lshl_b32 s60, s30, 5\ns_add_u32 s60, s60, {RED}\nv_lshl_add_u32 v30, v4, 1, s60")
        ZB = 1792 << self.zpad
        e(f"s_mul_i32 s41, s54, {28*ZB}\ns_mul_i32 s60, s30, {ZB}\ns_add_u32 s41, s41, s60")
        e(f"s_lshl_b32 s60, s55, {6+self.zpad}\ns_add_u32 s41, s41, s60\ns_add_u32 s41, s41, {WS_Z}\ns_add_u32 s42, s41, {16*ZB}")
        e(f"v_mul_u32_u24 v31, {4*ZB}, v3\nv_lshl_add_u32 v31, v4, 2, v31")
        for k in range(4):
            e(f"v_mov_b32 v{248+k}, 0")
        ol = [(4, 20 + 4 * k, 255, f"s{58+k}", 0) for k in range(2)]
        e("s_mov_b32 s47, 0\ns_mov_b32 s46, 0")
        self.lds_wait(vM, FULL - MISC, 47, self.pstart - 40, 64)
        self.lds_wait(vM, FS + 12 - MISC, 46, 1, 2)
        if self.talign is not None:
            e("s_branch L_closing")
            self.L.append(".p2align 12")
            if self.talign:
                self.L.append(f".fill {self.talign//4}, 4, 0xbf800000")
            e("L_closing:")
        self.lds_wait(vM, FULL - MISC, 47, self.pstart, 3)
        e("s_setprio 2")
        self.L.append("@WARM_BEGIN")

        self.gather8(ol, vT8, ["-1", "-1"], False)
        self.pk("add", 22, 22, 26)
        self.pk("add", 20, 20, 24)
        e("s_nop 1\nv_permlane32_swap_b32 v20, v22\nv_permlane32_swap_b32 v21, v23")
        self.pk("add", 20, 20, 22)
        e("s_nop 1\nv_permlane16_swap_b32 v20, v21\nv_add_f32 v20, v20, v21")
        e("v_cvt_pk_bf16_f32 v20, v20, v20\nds_write_b16 v14, v20")
        stamp_s(1)
        e("s_waitcnt lgkmcnt(0)\ns_barrier")
        self.unit_mfma_lds(WO, RAW, 15, 8, DD, QV - MISC)
        e(f"v_and_or_b32 v{DD}, v{DD}, v{vYM}, v{vYT}")
        if self.ymerge:
            e(f"ds_write_b32 v29, v{DD} offset:{RED+128-MISC}\ns_waitcnt lgkmcnt(0)\ns_barrier")
            e(f"s_cmp_lg_u32 s30, 1\ns_cbranch_scc1 L_ydone\nds_read_b32 v{DD}, v28 offset:{RED+128-MISC}\ns_waitcnt lgkmcnt(0)")
            e(f"buffer_store_dword v{DD}, v9, s[32:35], s40 offen sc1\nL_ydone:")
        else:
            e(f"s_mov_b64 exec, 0xffff\nbuffer_store_dword v{DD}, v9, s[32:35], s40 offen sc1")
        stamp_s(2)
        e(f"s_cmp_ge_u32 s101, 64\ns_cbranch_scc1 L_fin\ns_mov_b64 exec, {LM}\ns_barrier")

        e(f"ds_read_b128 v[248:251], v13 offset:{AIM-MISC}\ns_mov_b64 exec, -1")
        stamp_s(3)
        e("s_waitcnt lgkmcnt(0)")
        X = list(range(WO, WO + 8))
        self.unpack([248, 249, 250, 251], X)
        self.layernorm(X, list(range(16, 26)), rounded=not self.lnfast)
        self.modulate(X, list(range(OCB, OCB + 8)), list(range(SB, SB + 8)), [248, 249, 250, 251], list(range(16, 20)),
                      rounded=not self.lnfast)
        self.unit_mfma_dpp(W1, 248, AD, DD)
        self.rbf1(DD)
        self.silu([DD], [16])
        e(f"v_cvt_pk_bf16_f32 v{DD}, v{DD}, v{DD}\nds_write_b16 v30, v{DD}\ns_waitcnt lgkmcnt(0)\ns_barrier")
        e(f"ds_read_b128 v[{AD}:{AD+3}], v15 offset:{RED-MISC}\nds_read_b128 v[{AD+4}:{AD+7}], v15 offset:{RED-MISC+64}")
        stamp_s(4)
        def mm(rho, st):
            d, b = RAW + 4 * rho, W2 + 8 * rho + 4 * st
            c = "0" if st == 0 else f"v[{d}:{d+3}]"
            e(f"v_mfma_f32_16x16x32_bf16 v[{d}:{d+3}], v[{AD+4*st}:{AD+4*st+3}], v[{b}:{b+3}], {c}")

        def sel(dst, g):
            e(f"v_mov_b32_dpp v{dst}, v{dst+4*g} quad_perm:[0,1,2,3] row_mask:{hex(1<<g)} bank_mask:0xf")
        e("s_waitcnt lgkmcnt(1)")
        for rho in range(4):
            mm(rho, 0)
        e("s_waitcnt lgkmcnt(0)")
        for rho in range(4):
            mm(rho, 1)
        for st in range(2):
            for rho in range(4, 7):
                mm(rho, st)
        sel(RAW, 1)
        e("s_nop 1")
        sel(RAW, 2)
        e("s_nop 1")
        sel(RAW, 3)
        e(f"v_and_or_b32 v{RAW}, v{RAW}, v{vYM}, v{vYT}")
        sel(RAW + 16, 1)
        near = self.fast and self.xm
        if near:
            e("s_cmp_lg_u32 s46, 2\ns_cbranch_scc1 L_zfar")
        for pol in ([self.npol, "sc1"] if near else ["sc1"]):
            e(f"buffer_store_dword v{RAW}, v31, s[32:35], s41 offen {pol}\ns_nop 0")
            e(f"v_mov_b32_dpp v{RAW+16}, v{RAW+24} quad_perm:[0,1,2,3] row_mask:0x4 bank_mask:0xf")
            e(f"v_and_or_b32 v{RAW+16}, v{RAW+16}, v{vYM}, v{vYT}\ns_mov_b32 exec_hi, 0xffff")
            e(f"buffer_store_dword v{RAW+16}, v31, s[32:35], s42 offen {pol}")
            if self.stamps and not self.bgst:
                e("s_cmp_eq_u32 s30, 0\ns_cbranch_scc1 L_fin")
                self.stamp(5)
            e("s_branch L_fin")
            if pol != "sc1":
                e("L_zfar:")

    def gtail(self):
        e = self.e
        vM, vT8, GA, XP, GB, R = 12, 10, 4, 6, 8, 32
        HM = "s[52:53]"
        e("L_gtail:")
        self.mlp_ids()
        e("s_cbranch_scc1 L_leave")
        e(f"s_setprio 0\nv_mov_b32 v{vM}, {MISC}\nv_mov_b32 v2, 0\ns_mov_b32 s47, 0\ns_mov_b32 s31, 0x80000")
        self.srd(32, 28, WS_SIZE)
        e("s_mov_b32 s52, 0x0fffffff\ns_mov_b32 s53, 0x0fffffff")
        e(f"s_mul_i32 s40, s54, {16*448*4}\ns_add_u32 s40, s40, {WS_Y}")
        for k in range(1, 4):
            e(f"s_add_u32 s{40+k}, s40, {k*2*448*4}")
        e("v_and_b32 v1, 31, v0\nv_lshrrev_b32 v3, 5, v0\ns_mul_i32 s60, s3, 448\nv_lshl_add_u32 v9, v1, 4, s60")
        e(f"v_lshrrev_b32 v14, 1, v9\nv_lshl_add_u32 v14, v3, 2, v14\nv_add_u32 v14, {AIM}, v14")
        e(f"v_mul_u32_u24 v3, {8*448*4}, v3\nv_add_u32 v9, v9, v3")
        yl = [(4, R + 4 * k, 9, f"s{40+(k>>1)}", (k & 1) * 448 * 4) for k in range(8)]
        zl = [(4, 20 + 4 * k, 13, "s58", 1024 * k) for k in range(2)]
        self.lds_wait(vM, FS + 12 - MISC, 47, 1, 2)
        e(f"ds_read_b32 v11, v{vM} offset:{TAG-MISC}")
        e(f"s_lshl_b32 s60, s3, 10\ns_add_u32 s60, s60, {GX}\nv_lshl_add_u32 v1, v0, 4, s60\nds_read_b128 v[{GA}:{GA+3}], v1")
        e("v_and_b32 v15, 3, v0\nv_lshrrev_b32 v1, 4, v0\nv_lshl_add_u32 v15, v15, 2, v1")
        e(f"v_lshlrev_b32 v13, 4, v0\nv_lshlrev_b32 v1, 2, v15\nv_add_u32 v1, {GBL}, v1\nds_read_b32 v{GB}, v1")
        e(f"s_waitcnt lgkmcnt(0)\nv_and_b32 v{vT8}, 0xff, v11")
        e(f"s_mov_b64 exec, {HM}")
        for ld in yl if self.prewarm & 1 else []:
            self.issue(ld)
        e("s_barrier")
        if self.ymerge:
            e("s_barrier")
        if self.ystage:
            top = self.lab("ys")
            e(f"{top}:")
            self.budget()
            self.issue(yl[self.ystage - 1])
            e(f"s_waitcnt vmcnt(0)\nv_cmp_ne_u32_sdwa vcc, v{yl[self.ystage-1][1]}, v{vT8} src0_sel:BYTE_0 src1_sel:DWORD")
            e(f"s_cmp_lg_u64 vcc, 0\ns_cbranch_scc1 {top}")
        self.gather8(yl, vT8, [HM] * 8, True)
        if self.stamps and not self.prog:
            e("s_cmp_lg_u32 s3, 0\ns_cbranch_scc1 L_sg3")
            self.stamp(3)
            e("L_sg3:")
        for st in (16, 8, 4):
            for k in range(0, st, 2):
                e(f"v_pk_add_f32 v[{R+k}:{R+k+1}], v[{R+k}:{R+k+1}], v[{R+st+k}:{R+st+k+1}]")
        e(f"s_nop 1\nv_permlane32_swap_b32 v{R}, v{R+2}\nv_permlane32_swap_b32 v{R+1}, v{R+3}")
        e(f"v_pk_add_f32 v[{R}:{R+1}], v[{R}:{R+1}], v[{R+2}:{R+3}]")
        self.rbf_pairs([R, R + 1], [16])
        e(f"v_pk_mul_f32 v[{R}:{R+1}], v[{R}:{R+1}], v[{GA}:{GA+1}]")
        self.rbf_pairs([R, R + 1], [16])
        e(f"v_pk_add_f32 v[{R}:{R+1}], v[{R}:{R+1}], v[{XP}:{XP+1}]")
        e(f"v_cvt_pk_bf16_f32 v16, v{R}, v{R+1}")
        e(f"s_mov_b64 exec, {HM}\nds_write_b32 v14, v16\ns_waitcnt lgkmcnt(0)\ns_barrier")
        e("s_cmp_lg_u32 s3, 0\ns_cbranch_scc1 L_epoch\ns_mov_b64 exec, -1")
        e(f"s_mul_i32 s58, s54, 28\ns_add_u32 s58, s58, s55\ns_mul_i32 s58, s58, {1792 << self.zpad}\ns_add_u32 s58, s58, {WS_Z}")
        ZM = "s[50:51]"
        e("s_mov_b32 s50, -1\ns_mov_b32 s51, 0xffff")
        for k in range(4):
            e(f"v_mov_b32 v{24+k}, 0")
        if self.prewarm & 2:
            self.issue(zl[0])
            e(f"s_mov_b64 exec, {ZM}")
            self.issue(zl[1])
            e("s_mov_b64 exec, -1")
        e(f"s_lshl_b32 s60, s55, 5\ns_add_u32 s41, s60, {AIM}\nv_lshl_add_u32 v1, v15, 1, s41\nds_read_u16 v31, v1")
        self.srd(36, 24, 1792)
        e("s_mul_i32 s41, s54, 896\ns_add_u32 s41, s41, s60\nv_lshlrev_b32 v14, 1, v15")
        e("s_mov_b32 s42, 0x000f000f\ns_mov_b32 s43, 0x000f000f")
        e("s_waitcnt lgkmcnt(0)\nv_lshlrev_b32 v31, 16, v31\ns_barrier")
        self.gather8(zl, vT8, ["-1", ZM], False)
        if not self.prog:
            self.stamp(4)
        self.pk("add", 22, 22, 26)
        self.pk("add", 20, 20, 24)
        e("s_nop 1\nv_permlane32_swap_b32 v20, v22\nv_permlane32_swap_b32 v21, v23")
        self.pk("add", 20, 20, 22)
        e("s_nop 1\nv_permlane16_swap_b32 v20, v21\nv_add_f32 v16, v20, v21")
        for rr in (4, 8):
            e(f"s_nop 1\nv_add_f32_dpp v16, v16, v16 row_ror:{rr} {DPPF}")
        self.rbf1(16)
        e(f"v_mul_f32 v16, v16, v{GB}")
        self.rbf1(16)
        e("v_add_f32 v16, v16, v31\nv_cvt_pk_bf16_f32 v16, v16, v16")
        e("s_mov_b64 exec, s[42:43]\nbuffer_store_short v16, v14, s[36:39], s41 offen")
        if not self.prog:
            self.stamp(5)
        self.L.append("@WARM_END")
        e("L_fin:")
        self.end()
        e("L_epoch:\ns_add_u32 s60, s101, s3\ns_cmp_lg_u32 s60, 1\ns_cbranch_scc1 L_leave")
        e("s_mov_b64 exec, 1\nbuffer_store_dword v11, v2, s[32:35], 0 offen sc1")
        e("L_leave:\ns_barrier\ns_branch L_fin")

    def build(self, header):
        e = self.e
        K = NAME + "_kernel"
        self.L.append(header.rstrip("\n"))
        self.L.append(f"; @launch grid=(256,1,1) block=(512,1,1) lds={LDS_BYTES}")
        self.L.append('.amdgcn_target "amdgcn-amd-amdhsa--gfx950"\n.text')
        self.L.append(f".globl {K}\n.p2align 8\n.type {K},@function\n{K}:")
        e("s_cmp_ge_u32 s2, 256\ns_cbranch_scc1 L_end")
        e("s_load_dwordx16 s[4:19], s[0:1], 0\ns_load_dwordx8 s[20:27], s[0:1], 64\ns_load_dwordx2 s[28:29], s[0:1], 96")
        e("v_lshrrev_b32 v1, 6, v0\nv_and_b32 v0, 63, v0\nv_readfirstlane_b32 s3, v1")
        if self.xl == 2:
            e("s_and_b32 s100, s2, 7\ns_lshl_b32 s100, s100, 3\ns_bfe_u32 s101, s2, 0x30003\ns_or_b32 s100, s100, s101")
            e("s_and_b32 s101, s2, 192\ns_or_b32 s100, s100, s101")
            if self.xf:
                e(f"s_bitcmp1_b32 s2, 6\ns_cselect_b32 s101, {self.xf << 3}, 0\ns_xor_b32 s100, s100, s101")
            if self.xg:
                e(f"s_bitcmp1_b32 s2, 7\ns_cselect_b32 s101, {self.xg << 3}, 0\ns_xor_b32 s100, s100, s101")
        elif self.xl:
            e("s_and_b32 s100, s2, 7\ns_lshl_b32 s100, s100, 4\ns_bfe_u32 s101, s2, 0x40003\ns_or_b32 s100, s100, s101")
            e("s_and_b32 s101, s2, 128\ns_or_b32 s100, s100, s101")
        else:
            e("s_mov_b32 s100, s2")
        self.stamp_init()
        e("s_cmp_eq_u32 s3, 0\ns_cbranch_scc1 L_loader")
        e(f"v_lshlrev_b32 v1, 3, v0\nv_add_u32 v1, {MISC}, v1\nv_mov_b32 v2, 0\nv_mov_b32 v3, 0\nds_write_b64 v1, v[2:3]")
        e("s_cmp_ge_u32 s3, 4\ns_cbranch_scc1 L_service\ns_branch L_consumer")
        self.loader()
        e("L_end:\ns_endpgm")
        self.consumer()
        self.service()
        self.gtail()
        self.stage_subs(12)
        e("L_last:")
        self.L.append(f""".section .rodata,"a"
.p2align 6
.amdhsa_kernel {K}
  .amdhsa_next_free_vgpr 256
  .amdhsa_next_free_sgpr 102
  .amdhsa_accum_offset 256
  .amdhsa_group_segment_fixed_size 0
  .amdhsa_kernarg_size 104
  .amdhsa_user_sgpr_count 2
  .amdhsa_user_sgpr_kernarg_segment_ptr 1
  .amdhsa_system_sgpr_workgroup_id_x 1
  .amdhsa_float_denorm_mode_32 3
.end_amdhsa_kernel""")
        return "\n".join(self.place_pads()) + "\n"

    def place_pads(self):
        out, inside, count, npad, masked = [], False, 0, 0, False
        def pad(op):
            nonlocal npad, count
            out.append(f"L_pad{npad}:\n    {op} @PAD{npad+1}@")
            npad += 1
            count = 0
        for line in self.L:
            if line == "@WARM_BEGIN":
                inside = bool(self.warm)
                if inside:
                    pad("s_cbranch_execz")
                continue
            if line == "@SPOT":
                if self.warm:
                    pad("s_branch")
                continue
            if line == "@WARM_END":
                inside = False
                continue
            out.append(line)
            if inside and line.startswith("    "):
                count += 1
                if "s_cselect_b64 exec" in line:
                    masked = True
                elif "s_mov_b64 exec" in line:
                    masked = False
                if line.strip().startswith("s_branch "):
                    pad("s_branch")
                elif count >= self.warm and not masked:
                    pad("s_cbranch_execz")
        text = "\n".join(out)
        for k in range(1, npad + 1):
            text = text.replace(f"@PAD{k}@", f"L_pad{k}" if k < npad else "L_padret")
        return text.split("\n")


HEADER = """; Fused adaLN-conditioned block: cached multi-head attention (decode) + SiLU MLP, gfx950.
"""


def generate(**kw):
    return Gen(**kw).build(HEADER)


if __name__ == "__main__":
    import json
    kw = json.loads(sys.argv[2]) if len(sys.argv) > 2 else {}
    open(sys.argv[1], "w").write(generate(**kw))
```

```python
import struct
import sys

NAME = "adaLN_cond__mha_block_cached__dense_activation_silu__decode"

WS_EPOCH, WS_MOD, WS_Q, WS_OP, WS_Y, WS_ML, WS_Z, WS_CTR, WS_SIZE = (
    0, 0x1000, 0x10000, 0x20000, 0x60000, 0x6E000, 0x70000, 0xB0000, 0x1E0000)
WS_STAMP = 0x1E0000
RING, NSLOT = 0, 16
SC, SC_STRIDE = 131072, 6144
STG = 149504
PST = 131072
MISC = 159744
FULL, FREE, QRDY, TAG, BAR, ML, QV, AIM, RED = (MISC, MISC + 256, MISC + 272, MISC + 276, MISC + 280,
                                                MISC + 288, MISC + 512, MISC + 1024, MISC + 2816)
FS, PF = MISC + 336, MISC + 352
GX, GBL = STG, STG + 4096
LDS_BYTES = 163840


STAMPS = [("ld start", 0, 0), ("S0 start", 4, 0), ("S0 weights landed", 4, 1), ("S0 frags read", 4, 2),
          ("S0 mod gathered", 4, 3), ("S0 unit pub", 4, 4), ("S0 q ready", 4, 5), ("C prepull done", 1, 0),
          ("C q seen", 1, 1), ("bg done", 5, 0), ("ld K issued", 0, 1), ("C K done", 1, 2), ("C softmax done", 1, 3),
          ("ld done", 0, 2), ("opart pub", 1, 4), ("o gathered", 5, 1), ("y pub", 5, 2), ("y gathered", 0, 3),
          ("x1 barrier", 5, 3), ("hid barrier", 5, 4), ("z pub", 5, 5), ("z gathered", 0, 4), ("end", 0, 5)]
END_STAMP = (0, 5)


def f2u(x):
    return struct.unpack("<I", struct.pack("<f", x))[0]


LOG2E = 1.4426950408889634
C2 = f2u(LOG2E / 16.0)
DPPF = "row_mask:0xf bank_mask:0xf"


class Gen:
    def __init__(self, D=20, lev=(18, 20, 22, 24, 28), nsh=4, cst=8448, cstart=64, atpos=16, wpol="nt", kvpol="nt",
                 prepull=6, qsleep=0, warm=0, pstart=1016, zpad=0, prewarm=2, vtouch=0, stamps=False, prog=None, bgst=0, l2warm=1, G=2, lev0=None, pi=None, xl=2, xm=1, fast=1, eb=8, mpol="", sh0=3, rot=0, qloc=1, qat=46, mat=22, msleep=0, xf=4, xg=0, ymerge=0, ystage=1, fin=(24, 40), npol="", csleep=0, lnfast=0, mix=0, mixat=0, mixto=2048, ctouch=0, mdelay=0, wdelay=0, opol="", boost=None, diagmap=0, talign=0, esc=(0, 32, 2, 0, 0), t=(12, 13, 14, 15, 11, 16, 10), jb=(21, 22, 23), xk=((), (10,), (11,))):
        self.L = []
        self.n = 0
        self.D, self.lev, self.nsh, self.cst, self.cstart, self.atpos = D, list(lev), nsh, cst, cstart, atpos
        self.period = 32
        self.diagmap = diagmap
        self.talign = talign
        self.stage_pols = set()
        self.t = list(t) + [b for b in range(10, 24) if b not in t and b not in jb]
        self.jb, self.xk = jb, xk
        assert sorted(self.t + list(jb)) == list(range(10, 24)) and self.t[1] > 10
        assert not any(set(m) & (set(self.t[:2]) | set(jb)) for m in xk)
        self.boost, self.esc = boost, esc
        assert cstart + atpos > 2 * (NSLOT + 3 * prepull)
        self.mdelay, self.wdelay = mdelay, wdelay
        self.opol = wpol if opol is None else opol
        self.mix, self.mixat, self.mixto, self.ctouch = mix, mixat, mixto, ctouch
        self.csleep, self.lnfast = csleep, lnfast
        self.fin, self.npol = fin, npol
        self.ymerge, self.ystage = ymerge, ystage
        self.xf, self.xg = xf, xg
        self.qat, self.mat, self.msleep = qat, mat, msleep
        self.qloc = qloc
        self.sh0, self.rot = sh0, rot
        self.xl, self.xm, self.fast, self.eb = xl, xm, fast, eb
        self.mpol = wpol if mpol is None else mpol
        assert xl or not (xm or fast)
        self.pi = pi
        self.G, self.lev0 = G, lev0
        self.l2warm = l2warm
        assert cstart >= 64 and cstart % 32 == 0 and atpos % 8 != 7
        self.wpol, self.kvpol = wpol, kvpol
        self.prepull, self.qsleep, self.warm = prepull, qsleep, warm
        self.pstart, self.zpad, self.prewarm, self.vtouch = pstart, zpad, prewarm, vtouch
        self.stamps, self.prog, self.bgst = stamps, prog, bgst

    def e(self, s):
        for line in s.split("\n"):
            line = line.strip()
            if not line:
                continue
            self.L.append(line if line.endswith(":") or line.startswith(";") else "    " + line)

    def lab(self, p):
        self.n += 1
        return f"L_{p}_{self.n}"

    def srd(self, d, base, size):
        self.e(f"s_mov_b32 s{d}, s{base}\ns_mov_b32 s{d+1}, s{base+1}\n"
               f"s_mov_b32 s{d+2}, {size}\ns_mov_b32 s{d+3}, 0x20000")

    def stamp(self, k):
        if self.stamps:
            self.e(f"s_memrealtime s[{84+2*k}:{85+2*k}]")

    def stamp_init(self):
        if self.stamps:
            for k in range(8):
                self.e(f"s_mov_b64 s[{84+2*k}:{85+2*k}], 0")

    def stamp_flush(self):
        if self.stamps:
            self.e("s_mov_b64 exec, -1\ns_waitcnt lgkmcnt(0)")
            self.srd(80, 28, WS_STAMP + 0x20000)
            for k in range(8):
                self.e(f"v_mov_b32 v{8+k}, s{84+2*k}")
            self.e(f"s_lshl_b32 s30, s2, 3\ns_add_u32 s30, s30, s3\ns_lshl_b32 s30, s30, 5\n"
                   f"s_add_u32 s30, s30, {WS_STAMP}\nv_mov_b32 v1, s30\ns_mov_b64 exec, 1\n"
                   "buffer_store_dwordx4 v[8:11], v1, s[80:83], 0 offen\n"
                   "buffer_store_dwordx4 v[12:15], v1, s[80:83], 0 offen offset:16")

    def end(self):
        self.stamp_flush()
        self.e("s_endpgm")

    def budget(self):
        self.e("s_sub_u32 s31, s31, 1\ns_cbranch_scc1 L_end")

    def wave_reduce(self, op, regs, nsteps=6):
        steps = ["quad_perm:[1,0,3,2] " + DPPF, "quad_perm:[2,3,0,1] " + DPPF, "row_half_mirror " + DPPF,
                 "row_mirror " + DPPF, "row_bcast:15 row_mask:0xa bank_mask:0xf",
                 "row_bcast:31 row_mask:0xc bank_mask:0xf"]
        for st in steps[:nsteps]:
            pad = 3 - len(regs) if st is not steps[0] else 2
            if pad > 0:
                self.e(f"s_nop {pad-1}")
            for r in regs:
                self.e(f"{op}_dpp v{r}, v{r}, v{r} {st}")
        self.e("s_nop 0")

    def rbf_pairs(self, regs, tmp):
        for k in range(0, len(regs), 2):
            self.e(f"v_cvt_pk_bf16_f32 v{tmp[k//2]}, v{regs[k]}, v{regs[k+1]}")
        self.unpack(tmp[:len(regs)//2], regs)

    def unpack(self, packed, regs):
        for k, p in enumerate(packed):
            self.e(f"v_lshlrev_b32 v{regs[2*k]}, 16, v{p}\nv_and_b32 v{regs[2*k+1]}, 0xffff0000, v{p}")

    def rbf1(self, r):
        self.e(f"v_cvt_pk_bf16_f32 v{r}, v{r}, v{r}\nv_and_b32 v{r}, 0xffff0000, v{r}")

    def silu(self, regs, tmp):
        for r, t in zip(regs, tmp):
            self.e(f"v_mul_f32 v{t}, {hex(f2u(-LOG2E))}, v{r}")
        for t in tmp[:len(regs)]:
            self.e(f"v_exp_f32 v{t}, v{t}")
        self.e("s_nop 0")
        for t in tmp[:len(regs)]:
            self.e(f"v_add_f32 v{t}, 1.0, v{t}")
        for t in tmp[:len(regs)]:
            self.e(f"v_rcp_f32 v{t}, v{t}")
        self.e("s_nop 0")
        for r, t in zip(regs, tmp):
            self.e(f"v_mul_f32 v{r}, v{r}, v{t}")

    def pk(self, op, d, a, b, mods=""):
        self.e(f"v_pk_{op}_f32 v[{d}:{d+1}], v[{a}:{a+1}], v[{b}:{b+1}] {mods}")

    def layernorm(self, X, t, extra=None, rounded=True):
        e = self.e
        S = X[::2] + (extra[::2] if extra else [])
        a, b, m, r = t[0], t[2], t[6], t[8]
        self.pk("add", a, S[0], S[1])
        self.pk("mul", b, S[0], S[0])
        e(f"v_pk_fma_f32 v[{b}:{b+1}], v[{S[1]}:{S[1]+1}], v[{S[1]}:{S[1]+1}], v[{b}:{b+1}]")
        for q in S[2:]:
            self.pk("add", a, a, q)
            e(f"v_pk_fma_f32 v[{b}:{b+1}], v[{q}:{q+1}], v[{q}:{q+1}], v[{b}:{b+1}]")
        e(f"v_add_f32 v{a}, v{a}, v{a+1}\nv_add_f32 v{b}, v{b}, v{b+1}")
        inv = hex(f2u(1.0 / 448))
        if extra is None:
            self.wave_reduce("v_add_f32", [a, b])
            e(f"v_readlane_b32 s60, v{a}, 63\nv_readlane_b32 s61, v{b}, 63\nv_mov_b32 v{a+1}, {inv}")
            e(f"v_mul_f32 v{a}, s60, v{a+1}\nv_mul_f32 v{b}, s61, v{a+1}")
        else:
            self.wave_reduce("v_add_f32", [a, b], nsteps=4)
            e(f"v_mov_b32 v{a+1}, v{a}\nv_mov_b32 v{b+1}, v{b}\ns_nop 1")
            e(f"v_permlane16_swap_b32 v{a}, v{a+1}\nv_permlane16_swap_b32 v{b}, v{b+1}")
            e(f"v_add_f32 v{a}, v{a}, v{a+1}\nv_add_f32 v{b}, v{b}, v{b+1}")
            e(f"v_mul_f32 v{a}, {inv}, v{a}\nv_mul_f32 v{b}, {inv}, v{b}")
        e(f"v_fma_f32 v{b}, -v{a}, v{a}, v{b}\nv_max_f32 v{b}, 0, v{b}")
        e(f"v_cvt_pk_bf16_f32 v{a}, v{a}, v{b}")
        e(f"v_and_b32 v{r}, 0xffff0000, v{a}\nv_lshlrev_b32 v{m}, 16, v{a}")
        e(f"v_add_f32 v{r}, {hex(f2u(1e-5))}, v{r}")
        self.rbf1(r)
        e(f"v_sqrt_f32 v{r}, v{r}")
        for q in X[::2]:
            self.pk("add", q, q, m, "op_sel_hi:[1,0] neg_lo:[0,1] neg_hi:[0,1]")
        self.rbf1(r)
        e(f"v_rcp_f32 v{r}, v{r}")
        if rounded:
            self.rbf_pairs(X, t[2:6])
        else:
            e("s_nop 0")
        for q in X[::2]:
            self.pk("mul", q, q, r, "op_sel_hi:[1,0]")
        if rounded:
            self.rbf_pairs(X, t[2:6])

    def modulate(self, X, OC, SH, out, t, rounded=True):
        if rounded:
            for k in range(0, 8, 2):
                self.pk("mul", X[k], X[k], OC[k])
            self.rbf_pairs(X, t)
            for k in range(0, 8, 2):
                self.pk("add", X[k], X[k], SH[k])
        else:
            for k in range(0, 8, 2):
                self.e(f"v_pk_fma_f32 v[{X[k]}:{X[k]+1}], v[{X[k]}:{X[k]+1}], v[{OC[k]}:{OC[k]+1}], v[{SH[k]}:{SH[k]+1}]")
        for k in range(4):
            self.e(f"v_cvt_pk_bf16_f32 v{out[k]}, v{X[2*k]}, v{X[2*k+1]}")

    def gather(self, loads, vtag, sel, active, sleep=0, pairs=False):
        e = self.e
        top, done = self.lab("gat"), self.lab("gdone")
        for k in range(len(loads)):
            e(f"s_mov_b64 s[{64+2*k}:{65+2*k}], 1")
        e(f"s_mov_b64 exec, {active}\n{top}:")
        for k, (nd, raw, clean, va, so, imm) in enumerate(loads):
            sk = self.lab("gs")
            dst = f"v{raw}" if nd == 1 else f"v[{raw}:{raw+nd-1}]"
            suf = "" if nd == 1 else f"x{nd}"
            if len(loads) > 1:
                e(f"s_cmp_eq_u64 s[{64+2*k}:{65+2*k}], 0\ns_cbranch_scc1 {sk}")
            e(f"buffer_load_dword{suf} {dst}, v{va}, s[32:35], {so} offen offset:{imm} sc1")
            e(f"{sk}:")
        e("s_waitcnt vmcnt(0)")
        for k, (nd, raw, clean, va, so, imm) in enumerate(loads):
            for j in range(nd):
                e(f"v_xor_b32 v{clean+j}, v{raw+j}, v{vtag}")
            if nd == 1:
                chk = clean
            elif nd == 2:
                chk = 1
                e(f"v_or_b32 v1, v{clean}, v{clean+1}")
            else:
                chk = 1
                e(f"v_or3_b32 v1, v{clean}, v{clean+1}, v{clean+2}\nv_or_b32 v1, v1, v{clean+3}")
            if isinstance(sel, int):
                e(f"v_and_b32 v1, {sel}, v{chk}\nv_cmp_ne_u32 s[{64+2*k}:{65+2*k}], 0, v1")
            else:
                e(f"v_cmp_ne_u32_sdwa s[{64+2*k}:{65+2*k}], v{chk}, v2 src0_sel:{sel} src1_sel:DWORD")
        if pairs:
            for k in range(0, len(loads), 2):
                e(f"s_or_b64 s[{64+2*k}:{65+2*k}], s[{64+2*k}:{65+2*k}], s[{66+2*k}:{67+2*k}]")
                e(f"s_mov_b64 s[{66+2*k}:{67+2*k}], s[{64+2*k}:{65+2*k}]")
        e("s_or_b64 s[62:63], s[64:65], s[64:65]")
        for k in range(1, len(loads)):
            e(f"s_or_b64 s[62:63], s[62:63], s[{64+2*k}:{65+2*k}]")
        e(f"s_cbranch_scc0 {done}")
        self.budget()
        if sleep:
            e(f"s_sleep {sleep}")
        e(f"s_branch {top}\n{done}:\ns_mov_b64 exec, -1")

    def issue(self, ld):
        nd, raw, va, so, imm = ld
        dst = f"v{raw}" if nd == 1 else f"v[{raw}:{raw+nd-1}]"
        suf = "" if nd == 1 else f"x{nd}"
        self.e(f"buffer_load_dword{suf} {dst}, v{va}, s[32:35], {so} offen offset:{imm} sc1")

    def gather8(self, loads, vtag, active, skip):
        e = self.e
        top, chk = self.lab("gat"), self.lab("gchk")
        cur = [None]

        def lanes(m):
            if cur[0] != m:
                e(f"s_mov_b64 exec, {m}")
                cur[0] = m
        if skip:
            for ld, m in zip(loads, active):
                lanes(m)
                self.issue(ld)
            e(f"s_branch {chk}")
        e(f"{top}:")
        self.budget()
        cur[0] = None if len(set(active)) > 1 or active[0] != "-1" else "-1"
        for k, (ld, m) in enumerate(zip(loads, active)):
            if skip:
                e(f"s_cmp_lg_u64 s[{64+2*k}:{65+2*k}], 0\ns_cselect_b64 exec, {m}, 0")
            else:
                lanes(m)
            self.issue(ld)
        e(f"{chk}:")
        if skip:
            cur[0] = None
        order = list(range(len(loads)))[::-1]
        lanes(active[order[0]])
        e("s_waitcnt vmcnt(0)")
        for k in order:
            lanes(active[k])
            e(f"v_cmp_ne_u32_sdwa s[{64+2*k}:{65+2*k}], v{loads[k][1]}, v{vtag} src0_sel:BYTE_0 src1_sel:DWORD")
        e("s_or_b64 s[62:63], s[64:65], s[66:67]")
        for k in range(2, len(loads)):
            e(f"s_or_b64 s[62:63], s[62:63], s[{64+2*k}:{65+2*k}]")
        e(f"s_cbranch_scc1 {top}")
        lanes("-1")
        for ld in loads:
            e(f"v_and_b32 v{ld[1]}, 0xffffff00, v{ld[1]}")

    def lds_wait(self, vaddr, off, sreg, need, sleep):
        e = self.e
        top, go = self.lab("lw"), self.lab("lgo")
        e(f"s_cmp_ge_u32 s{sreg}, {need}\ns_cbranch_scc1 {go}\n{top}:")
        e(f"ds_read_b32 v1, v{vaddr} offset:{off}\ns_waitcnt lgkmcnt(0)\nv_readfirstlane_b32 s{sreg}, v1")
        e(f"s_cmp_ge_u32 s{sreg}, {need}\ns_cbranch_scc1 {go}")
        self.budget()
        if sleep:
            e(f"s_sleep {sleep}")
        e(f"s_branch {top}\n{go}:")

    def dma_step(self, vaddr, srd, lds_sreg_or_imm, pol):
        self.e(f"s_mov_b32 m0, {lds_sreg_or_imm}\ns_nop 0")
        self.e(f"buffer_load_dwordx4 v{vaddr}, s[{srd}:{srd+3}], s58 offen {pol} lds")

    def tr_reads(self, dst, vtr, off):
        self.e(f"ds_read_b64_tr_b16 v[{dst}:{dst+1}], v{vtr} offset:{off}")
        self.e(f"ds_read_b64_tr_b16 v[{dst+2}:{dst+3}], v{vtr} offset:{off+512}")

    def loader(self):
        e, D, lev = self.e, self.D, self.lev
        ng = D // 4
        AT = self.atpos
        T = self.t

        def addr(m):
            return sum(1 << T[b] for b in range(11) if m >> b & 1)

        def unit(n):
            return addr(4 * n)

        def scatter(dst, lo, hi):
            src, b = 58, lo
            while b < hi:
                n = 1
                while b + n < hi and T[b + n + 2] == T[b + 2] + n:
                    n += 1
                e(f"s_bfe_u32 s59, s40, {b | n << 16}\ns_lshl_b32 s59, s59, {T[b+2]}\ns_xor_b32 s{dst}, s{src}, s59")
                src, b = dst, b + n

        def load(k):
            e(f"buffer_load_dwordx4 v{10+k}, s[32:35], s41 offen offset:{k*1024} {self.kvpol} lds")

        def loads():
            for k in range(4):
                load(k)

        def limit():
            e(f"v_min3_u32 v5, v6, v7, v8\ns_nop 0\nv_readfirstlane_b32 s44, v5\ns_lshl_b32 s44, s44, 1\ns_add_u32 s44, s44, {2*NSLOT}")

        e("L_loader:\ns_setprio 3")
        e(f"v_lshlrev_b32 v1, 4, v0\nv_lshlrev_b32 v2, 2, v0\nv_add_u32 v2, {FULL}, v2\nv_mov_b32 v3, {FREE}")
        e("v_mov_b32 v6, 0\nv_mov_b32 v7, 0\nv_mov_b32 v8, 0\nv_mov_b32 v4, 1")
        for k in range(4):
            e(f"v_add_u32 v{10+k}, {addr(k) - 1024*k}, v1")
        e("s_lshr_b32 s30, s100, 3\ns_lshl_b32 s30, s30, 24\ns_mov_b32 s58, 0")
        for b in range(8):
            m = (1 << self.jb[b] if b < 3 else 0) | (sum(1 << q for q in self.xk[b]) if b < len(self.xk) else 0)
            if m:
                e(f"s_bitcmp1_b32 s100, {b}\ns_cselect_b32 s59, {m}, 0\ns_xor_b32 s58, s58, s59")
        e("s_mov_b32 s31, 0x200000\ns_waitcnt lgkmcnt(0)")
        self.stamp(0)
        e(f"s_add_u32 s32, s6, s30\ns_addc_u32 s33, s7, 0\ns_mov_b32 s34, 0x1000000\ns_mov_b32 s35, 0x20000")
        for n in range(ng):
            if n == self.eb:
                e("s_barrier")
            e(f"s_mov_b32 m0, {n*4096}\ns_xor_b32 s41, s58, {unit(n)}")
            loads()
        e(f"s_mov_b32 s40, {ng}\ns_mov_b32 s57, {ng*4096}\ns_mov_b32 s44, {2*NSLOT}\ns_mov_b32 s45, {lev.index(D) if self.lev0 is None else self.lev0}")
        e(f"s_lshr_b32 s49, s2, 3\ns_lshl_b32 s48, s49, 5\ns_or_b32 s49, s49, s48\ns_bfe_u32 s49, s49, {0x50000 + self.sh0}")
        e(f"s_mov_b32 s50, {WS_CTR}\ns_and_b32 s48, s49, {self.nsh-1}\ns_mul_i32 s48, s48, {self.cst}\ns_add_u32 s48, s48, s50")
        e("s_mov_b32 s52, 0\ns_mov_b32 s62, 0")
        if self.boost:
            self.mlp_ids()
            e(f"s_cselect_b32 s56, 0, {self.boost[0]}")
        if self.mix:
            e("s_lshr_b32 s53, s2, 1" if self.mix == 3 else "s_mov_b32 s53, s2")
        if self.eb >= ng:
            e("s_barrier")
        e("L_ld0:\ns_cmp_lt_u32 s40, s44\ns_cbranch_scc0 L_lds0\nL_ldb0:")
        scatter(41, 0, (self.cstart - 1).bit_length())
        e(f"s_and_b32 m0, s57, {NSLOT*8192-1}\ns_waitcnt vmcnt({D-4})")
        loads()
        e("ds_write_b32 v2, v4\ns_waitcnt lgkmcnt(1)\nv_min3_u32 v5, v6, v7, v8\nds_read_b96 v[6:8], v3")
        e(f"v_readfirstlane_b32 s44, v5\nv_add_u32 v4, 1, v4\ns_add_u32 s40, s40, 1\ns_add_u32 s57, s57, 4096")
        e(f"s_lshl_b32 s44, s44, 1\ns_add_u32 s44, s44, {2*NSLOT}")
        for k, n in enumerate(self.prog or []):
            e(f"s_cmp_eq_u32 s40, {n}\ns_cbranch_scc1 L_pq{k}\nL_pr{k}:")
        e(f"s_cmp_lt_u32 s40, {self.cstart}\ns_cbranch_scc1 L_ld0")
        depths = sorted(set(lev))
        e("L_lap:\ns_sub_u32 s51, s44, s40")
        scatter(42, 5, 9)
        for d in depths[:0:-1]:
            e(f"s_cmp_ge_u32 s45, {lev.index(d)}\ns_cbranch_scc1 L_lap{d}")
        stubs = []
        for dd in depths:
            d = dd % 100
            G = self.G
            pub = [m for m in range(0, 128, G) if (m - d + G) % 8 < G]
            e(f"L_lap{dd}:\ns_sub_u32 s43, s40, {-2*((pub[0] - d + G)//8)}\nv_mov_b32 v4, s43")
            for g in range(32):
                if self.fin and g == self.fin[0]:
                    e("s_cmp_eq_u32 s40, 992\ns_cbranch_scc1 L_final")
                if g % 4 == 0:
                    e(f"s_cmp_lt_u32 s51, {g+4}\ns_cbranch_scc1 L_lx{dd}_{g}\nL_lr{dd}_{g}:")
                    stubs.append((dd, g))
                e(f"s_mov_b32 m0, {g*4096}\ns_xor_b32 s41, s42, {unit(g)}")
                wrote = False
                for k in range(4):
                    if k % G == 0:
                        e(f"s_waitcnt vmcnt({d-G})")
                    load(k)
                    if k % G == G - 1 and 4 * g + k - G + 1 in pub:
                        e("ds_write_b32 v2, v4\nv_add_u32 v4, 2, v4")
                        wrote = True
                fresh = g < AT or g >= 30
                if g % 8 == 6 and fresh:
                    e("ds_read_b96 v[6:8], v3")
                if g % 8 == 7 and fresh:
                    e(f"s_waitcnt lgkmcnt({1 if wrote and g != 31 else 0})")
                    limit()
                    if g != 31:
                        e("s_sub_u32 s51, s44, s40")
                if g == AT - 1:
                    e("s_mov_b32 s47, 1\ns_atomic_add s47, s[28:29], s48 glc")
            if dd != depths[-1]:
                e("s_branch L_lapend")
        nq = 4 if self.esc else len(lev) - (self.boost[2] if self.boost else 0)
        sh = (256 // self.nsh // nq).bit_length() - 1
        e("L_lapend:")
        if self.pi:
            kp, ki, lk, cen = self.pi
            e(f"s_sub_i32 s47, s47, {128//self.nsh}\ns_ashr_i32 s46, s52, {lk}\ns_sub_i32 s52, s52, s46\ns_add_i32 s52, s52, s47")
            e(f"s_mul_i32 s45, s47, {kp}\ns_mul_i32 s46, s52, {ki}\ns_add_i32 s45, s45, s46\ns_add_i32 s45, s45, {cen}")
            e("s_ashr_i32 s45, s45, 8\ns_max_i32 s45, s45, 0")
        else:
            e(f"s_lshr_b32 s45, s47, {sh}")
        if self.esc:
            lo, uth, ush, dth, dn = self.esc
            e(f"s_add_u32 s52, s52, 1\ns_cmp_ge_u32 s47, {uth}\ns_cselect_b32 s52, s52, 0\ns_lshr_b32 s46, s52, {ush}\ns_add_u32 s45, s45, s46")
            if lo:
                e(f"s_add_u32 s62, s62, 1\ns_cmp_lt_u32 s47, {dth}\ns_cselect_b32 s62, s62, 0")
                e(f"s_cmp_lt_u32 s62, {dn}\ns_addc_u32 s45, s45, 0")
        if self.boost:
            e(f"s_cmp_lt_u32 s40, s56\ns_cselect_b32 s46, {self.boost[1]}, 0\ns_add_u32 s45, s45, s46")
        if self.mix:
            e(f"s_sub_u32 s46, s40, {self.mixat}\ns_cmp_lt_u32 s46, {self.mixto-self.mixat}\ns_cselect_b32 s46, s53, 0")
            e(f"s_add_u32 s49, s49, s46\ns_add_u32 s50, s50, {self.cst*self.nsh}")
            if self.mix == 2:
                e("s_sub_u32 s53, 0, s53")
            e(f"s_and_b32 s48, s49, {self.nsh-1}\ns_mul_i32 s48, s48, {self.cst}\ns_add_u32 s48, s48, s50\ns_add_u32 s40, s40, 32")
        elif self.rot:
            e(f"s_lshl_b32 s48, s49, 5\ns_or_b32 s49, s49, s48\ns_bfe_u32 s49, s49, {0x50000 + self.rot}\ns_add_u32 s50, s50, {self.cst*self.nsh}")
            e(f"s_and_b32 s48, s49, {self.nsh-1}\ns_mul_i32 s48, s48, {self.cst}\ns_add_u32 s48, s48, s50\ns_add_u32 s40, s40, 32")
        else:
            e(f"s_add_u32 s48, s48, {self.cst*self.nsh}\ns_add_u32 s40, s40, 32")
        if self.stamps:
            e("s_add_u32 s96, s96, s45")
        for k, n in enumerate(self.prog or []):
            e(f"s_cmp_lg_u32 s40, {n}\ns_cbranch_scc1 L_pg{k}")
            self.stamp(3 + k)
            e(f"L_pg{k}:")
        e("s_and_b32 s46, s40, 511\ns_cbranch_scc1 L_lap")
        last = max(lev)
        if self.fin:
            g0, last = self.fin
            e("s_branch L_tov")
            self.L.append("@SPOT")
            e("L_final:\nv_subrev_u32 v4, 2, v4")
            for g in range(g0, 32):
                if g % 4 == 0:
                    e(f"s_cmp_lt_u32 s51, {g+4}\ns_cbranch_scc1 L_lxf_{g}\nL_lrf_{g}:")
                    stubs.append(("f", g))
                e(f"s_mov_b32 m0, {g*4096}\ns_xor_b32 s41, s42, {unit(g)}\ns_waitcnt vmcnt({last-4})")
                loads()
                if (g - last // 4 + 1) % 2 == 0:
                    e(f"v_max_u32 v4, {992 + g - last//4 + 1}, v4\nds_write_b32 v2, v4")
        else:
            e("s_cmp_lt_u32 s40, 1024\ns_cbranch_scc1 L_tov")
            e("v_subrev_u32 v4, 2, v4")
        for k in range((last + 3) // 4, -1, -1):
            if k % 2 == 0 and 4 * k < 64:
                e(f"v_max_u32 v4, {1024-k}, v4\ns_waitcnt vmcnt({4*k})\nds_write_b32 v2, v4")
        if self.fin:
            e("s_waitcnt lgkmcnt(0)")
        self.stamp(2)
        e("s_branch L_gtail")
        self.L.append("@SPOT")
        e("L_tov:\ns_add_u32 s32, s8, s30\ns_addc_u32 s33, s9, 0")
        self.stamp(1)
        e("s_branch L_lap")
        e("L_lds0:\ns_sleep 1\nds_read_b96 v[6:8], v3\ns_waitcnt lgkmcnt(0)")
        limit()
        self.budget()
        if self.stamps:
            e("s_add_u32 s98, s98, 1")
        e("s_cmp_lt_u32 s40, s44\ns_cbranch_scc1 L_ldb0\ns_branch L_lds0")
        for k, n in enumerate(self.prog or []):
            e(f"L_pq{k}:")
            self.stamp(3 + k)
            e(f"s_branch L_pr{k}")
        for d, g in stubs:
            e(f"L_lx{d}_{g}:\ns_mov_b32 s46, {g+4}\ns_call_b64 s[60:61], L_room\ns_branch L_lr{d}_{g}")
        e("L_room:\nds_read_b96 v[6:8], v3\ns_waitcnt lgkmcnt(0)")
        limit()
        self.budget()
        if self.stamps:
            e("s_add_u32 s98, s98, 1")
        e("s_sub_u32 s51, s44, s40\ns_cmp_lt_u32 s51, s46\ns_cbranch_scc1 L_room\ns_setpc_b64 s[60:61]")

    def consumer(self):
        e = self.e
        NP = self.prepull
        BUF = [64 + 32 * u for u in range(NP)]
        QB, DQ, O0, O1, AP, MK, P = 32, 16, 20, 24, 32, 28, 12
        vK, vV, vA, vM, vS, vSL = 3, 4, 5, 6, 7, 8
        vF, vT, vOA = 48, 49, 50

        def pull(buf, vbase, sleep=1):
            e("s_lshl_b32 s43, s40, 1\ns_add_u32 s43, s43, 2")
            self.lds_wait(vM, FULL - MISC, 42, "s43", sleep)
            e(f"s_and_b32 s44, s40, {NSLOT-1}\ns_lshl_b32 s44, s44, 13\nv_add_u32 v{vA}, s44, v{vbase}")
            for k in range(8):
                e(f"ds_read_b128 v[{buf+4*k}:{buf+4*k+3}], v{vA} offset:{(k>>1)*2048+(k&1)*256}")

        def release():
            e(f"v_mov_b32 v1, s41\nds_write_b32 v9, v1")

        def qk(buf, counted):
            for k in range(8):
                if counted:
                    e(f"s_waitcnt lgkmcnt({7-k})")
                c = "0" if k == 0 else f"v[{DQ}:{DQ+3}]"
                e(f"v_mfma_f32_16x16x32_bf16 v[{DQ}:{DQ+3}], v[{buf+4*k}:{buf+4*k+3}], v[{QB+4*k}:{QB+4*k+3}], {c}")
            if counted:
                release()
                e("s_nop 5")
            else:
                e("s_nop 7")
            e(f"v_mov_b32_dpp v10, v{DQ} quad_perm:[0,0,0,0] {DPPF}")
            e(f"v_mov_b32_dpp v11, v{DQ+2} quad_perm:[2,2,2,2] {DPPF}\ns_nop 0")
            e(f"v_add_f32_dpp v10, v{DQ+1}, v10 quad_perm:[1,1,1,1] {DPPF}")
            e(f"v_add_f32_dpp v11, v{DQ+3}, v11 quad_perm:[3,3,3,3] {DPPF}")
            e("v_add_f32 v10, v10, v11")
            self.rbf1(10)

        e("L_consumer:\ns_sub_u32 s30, s3, 1\ns_mov_b32 s31, 0x200000\ns_mov_b32 s42, 0\ns_waitcnt lgkmcnt(0)\ns_barrier")
        if self.l2warm:
            K = NAME + "_kernel"
            e("s_cmp_lg_u32 s30, 1\ns_cbranch_scc1 L_nol2\ns_getpc_b64 s[60:61]\nL_pc:")
            e(f"s_sub_u32 s60, s60, L_pc-{K}\ns_subb_u32 s61, s61, 0\ns_lshr_b32 s62, s2, 3\ns_lshl_b32 s62, s62, 10")
            e(f"v_lshl_add_u32 v10, v0, 4, s62\nv_min_u32 v10, L_last-{K}-16, v10\nv_and_b32 v10, -16, v10")
            e("v_mov_b32 v11, s61\nv_add_co_u32 v10, vcc, s60, v10\ns_nop 1\nv_addc_co_u32 v11, vcc, 0, v11, vcc")
            e("global_load_dwordx4 v[16:19], v[10:11], off\nL_nol2:")
        e(f"v_mov_b32 v{vM}, {MISC}")
        e("v_lshrrev_b32 v13, 4, v0\nv_and_b32 v14, 15, v0\nv_bfe_u32 v15, v0, 2, 2\nv_and_b32 v2, 3, v0")
        e(f"v_lshlrev_b32 v{vK}, 6, v13\nv_lshl_add_u32 v{vK}, v2, 4, v{vK}\nv_mov_b32 v12, v{vK}")
        e(f"v_lshl_add_u32 v{vK}, v15, 9, v{vK}")
        e(f"v_lshlrev_b32 v{vV}, 9, v13\nv_lshl_add_u32 v{vV}, v14, 4, v{vV}")
        e(f"s_mul_i32 s45, s30, {SC_STRIDE}\ns_add_u32 s45, s45, {SC}")
        e(f"v_and_b32 v{vS}, 60, v0\nv_add_u32 v{vS}, s45, v{vS}")
        e(f"v_lshlrev_b32 v{vSL}, 4, v0\nv_add_u32 v{vSL}, s45, v{vSL}")
        e(f"s_lshl_b32 s46, s30, 2\ns_add_u32 s46, s46, {FREE}\nv_mov_b32 v9, s46")
        e("v_and_b32 v1, 1, v0\nv_mov_b32 v10, 0xffff\nv_lshlrev_b32 v1, 4, v1\nv_lshlrev_b32 v10, v1, v10")
        e("v_lshrrev_b32 v1, 1, v14")
        for r in range(4):
            e(f"v_cmp_eq_u32 vcc, {r}, v1\ns_nop 1\nv_cndmask_b32 v{MK+r}, 0, v10, vcc")
        e("s_mov_b32 s40, s30")
        for u in range(NP):
            pull(BUF[u], vK)
            e("s_add_u32 s41, s40, 3\ns_waitcnt lgkmcnt(0)")
            release()
            e("s_mov_b32 s40, s41")
        e("s_mov_b32 s47, 0")
        self.stamp(0)
        self.lds_wait(vM, QRDY - MISC, 47, 1, 1)
        self.stamp(1)
        e(f"v_add_u32 v12, {QV}, v12")
        e(f"ds_read_b128 v[{O0}:{O0+3}], v12\nds_read_b128 v[{O0+4}:{O0+7}], v12 offset:256\ns_waitcnt vmcnt(0)")
        for r in range(4):
            e(f"v_mov_b32 v{DQ+r}, 0xff800000")
        e(f"ds_write_b128 v{vSL}, v[{DQ}:{DQ+3}] offset:5120\ns_waitcnt lgkmcnt(0)")
        for t in range(4):
            e(f"v_cmp_eq_u32 vcc, {t}, v15\ns_nop 1")
            for k in range(8):
                e(f"v_cndmask_b32 v{QB+8*t+k}, 0, v{O0+k}, vcc")
        for r in range(8):
            e(f"v_mov_b32 v{O0+r}, 0")
        qk(BUF[0], False)
        e(f"ds_write_b32 v{vS}, v10")
        e(f"v_add_u32 v2, {64*NP}, v{vS}\ns_add_u32 s48, s30, 256")
        e("L_kloop:")
        e("s_add_u32 s41, s40, 3\ns_cmp_lt_u32 s41, 256\ns_cselect_b32 s41, s41, s48")
        pull(BUF[0], vK)
        qk(BUF[0], True)
        e("ds_write_b32 v2, v10\nv_add_u32 v2, 64, v2")
        e("s_mov_b32 s40, s41\ns_cmp_lt_u32 s40, 256\ns_cbranch_scc1 L_kloop")
        for u in range(1, NP):
            qk(BUF[u], False)
            e(f"ds_write_b32 v{vS}, v10 offset:{64*u}")
        self.stamp(2)
        S = BUF[0]
        for k in range(6):
            e(f"ds_read_b128 v[{S+4*k}:{S+4*k+3}], v{vSL} offset:{1024*k}")
        e("s_waitcnt lgkmcnt(0)")
        e(f"v_max_f32 v10, v{S}, v{S+1}")
        for k in range(2, 24, 2):
            e(f"v_max3_f32 v10, v10, v{S+k}, v{S+k+1}")
        self.wave_reduce("v_max_f32", [10])
        e(f"v_readlane_b32 s50, v10, 63\ns_mov_b32 s51, {hex(C2)}\ns_nop 0")
        for k in range(24):
            e(f"v_subrev_f32 v{S+k}, s50, v{S+k}")
        for k in range(24):
            e(f"v_mul_f32 v{S+k}, s51, v{S+k}")
        for k in range(24):
            e(f"v_exp_f32 v{S+k}, v{S+k}")
        e(f"v_add_f32 v10, v{S}, v{S+1}")
        for k in range(2, 24):
            e(f"v_add_f32 v10, v10, v{S+k}")
        for k in range(24):
            e(f"v_cvt_pk_bf16_f32 v{S+k}, v{S+k}, v{S+k}")
        for k in range(6):
            e(f"ds_write_b128 v{vSL}, v[{S+4*k}:{S+4*k+3}] offset:{1024*k}")
        self.wave_reduce("v_add_f32", [10])
        e(f"v_readlane_b32 s52, v10, 63\nv_mov_b32 v{DQ}, s50\nv_mov_b32 v{DQ+2}, 1\nv_mov_b32 v{DQ+3}, 1")
        e(f"v_mov_b32 v{DQ+1}, s52\ns_lshl_b32 s46, s30, 4\ns_add_u32 s46, s46, {ML}\nv_mov_b32 v1, s46")
        e(f"ds_write_b128 v1, v[{DQ}:{DQ+3}]\nv_mov_b32 v2, v{vS}\ns_mov_b32 s49, 460")
        self.srd(32, 28, WS_SIZE)
        e(f"s_mov_b32 s53, 0xffffff00\ns_lshl_b32 s54, s100, 10\ns_add_u32 s54, s54, {WS_OP}")
        e(f"v_lshlrev_b32 v{vOA}, 4, v0")
        self.stamp(3)
        T = BUF[1]

        def partials():
            e(f"ds_read_b64 v[10:11], v{vM} offset:{PF-MISC}")
            e(f"ds_read_b128 v[{T}:{T+3}], v{vSL} offset:{SC_STRIDE}\nds_read_b128 v[{T+4}:{T+7}], v{vSL} offset:{2*SC_STRIDE}")

        def pv(last):
            e(f"s_add_u32 s41, s40, 3\nds_read_b32 v{P}, v2\nv_add_u32 v2, 64, v2\ns_waitcnt lgkmcnt(0)")
            for t in range(4):
                for r in range(4):
                    e(f"v_and_b32_dpp v{AP+4*t+r}, v{P}, v{MK+r} row_newbcast:{4*t} {DPPF}")
            pull(BUF[0], vV, self.csleep if last else 1)
            if last:
                partials()
            for k in range(8):
                o = O0 if k % 2 == 0 else O1
                a = AP + 4 * (k >> 1)
                e(f"s_waitcnt lgkmcnt({7-k+3*last})")
                e(f"v_mfma_f32_16x16x32_bf16 v[{o}:{o+3}], v[{a}:{a+3}], v[{BUF[0]+4*k}:{BUF[0]+4*k+3}], v[{o}:{o+3}]")

        e("L_vloop:")
        pv(False)
        release()
        e("s_mov_b32 s40, s41\ns_cmp_lt_u32 s40, s49\ns_cbranch_scc1 L_vloop")
        e("s_cmp_lt_u32 s40, 511\ns_cbranch_scc1 L_vmid")
        e("s_cmp_lg_u32 s30, 0\ns_cbranch_scc1 L_cpart")
        pv(True)
        e("L_csum:\ns_waitcnt lgkmcnt(0)\nv_and_b32 v10, v10, v11")
        self.pk("add", T, T, T + 4)
        self.pk("add", T + 2, T + 2, T + 6)
        e("v_readfirstlane_b32 s46, v10\ns_cmp_eq_u32 s46, 0\ns_cbranch_scc1 L_cretry\ns_nop 0")
        for r in range(4):
            e(f"v_permlane32_swap_b32 v{O0+r}, v{O1+r}")
        for r in range(4):
            e(f"v_fmac_f32 v{T+r}, v{O0+r}, v{vF}")
        e(f"v_and_or_b32 v{T}, v{T}, s53, v{vT}")
        if self.fast:
            e("s_cmp_lg_u32 s47, 2\ns_cbranch_scc1 L_cfar")
            e(f"buffer_store_dwordx4 v[{T}:{T+3}], v{vOA}, s[32:35], s54 offen {self.npol}")
            self.stamp(4)
            e("s_branch L_gtail\nL_cfar:")
        e(f"buffer_store_dwordx4 v[{T}:{T+3}], v{vOA}, s[32:35], s54 offen sc1")
        self.stamp(4)
        e("s_branch L_gtail")
        e("L_cretry:")
        self.budget()
        partials()
        e("s_branch L_csum")
        self.L.append("@SPOT")
        e("L_cpart:")
        for r in range(4):
            e(f"v_permlane32_swap_b32 v{O0+r}, v{O1+r}")
        for r in range(4):
            e(f"v_mul_f32 v{O0+r}, v{O0+r}, v{vF}")
        e(f"v_mov_b32 v1, 1\nds_write_b128 v{vSL}, v[{O0}:{O0+3}]\nds_write_b32 v9, v1 offset:{PF-4-FREE}\ns_branch L_gtail")
        e("L_vmid:\ns_mov_b32 s47, 0")
        self.lds_wait(vM, FS + 12 - MISC, 47, 1, 2)
        e(f"ds_read_b32 v{vF}, v9 offset:{FS-FREE}\nds_read_b32 v{vT}, v{vM} offset:{TAG-MISC}")
        e(f"s_mov_b32 s49, 511\ns_waitcnt lgkmcnt(0)\nv_and_b32 v{vT}, 0xff, v{vT}")
        e("s_branch L_vloop")

    def unit_mfma_lds(self, B, A, vA, nsteps, D, off=0):
        for s in range(nsteps):
            self.e(f"ds_read_b128 v[{A+4*s}:{A+4*s+3}], v{vA} offset:{off+64*s}")
        for s in range(nsteps):
            self.e(f"s_waitcnt lgkmcnt({nsteps-1-s})")
            c = "0" if s == 0 else f"v[{D}:{D+3}]"
            self.e(f"v_mfma_f32_16x16x32_bf16 v[{D}:{D+3}], v[{A+4*s}:{A+4*s+3}], v[{B+4*s}:{B+4*s+3}], {c}")
        self.e("s_nop 7")

    def unit_mfma_dpp(self, B, src, A, D):
        def bc(s):
            for r in (0, 2):
                d = A + 4 * (s % 3) + r
                self.e(f"v_mov_b64_dpp v[{d}:{d+1}], v[{src+r}:{src+r+1}] row_newbcast:{s} {DPPF}")
        self.e("s_nop 1")
        bc(0)
        for s in range(14):
            if s < 13:
                bc(s + 1)
            else:
                self.e("s_nop 0")
            a = A + 4 * (s % 3)
            c = "0" if s == 0 else f"v[{D}:{D+3}]"
            self.e(f"v_mfma_f32_16x16x32_bf16 v[{D}:{D+3}], v[{a}:{a+3}], v[{B+4*s}:{B+4*s+3}], {c}")
        self.e("s_nop 7")

    def soft_barrier(self, vM):
        self.e(f"s_add_u32 s45, s45, 4\nv_mov_b32 v1, 1\ns_mov_b64 exec, 1\n"
               f"ds_add_u32 v{vM}, v1 offset:{BAR-MISC}\ns_mov_b64 exec, -1")
        self.lds_wait(vM, BAR - MISC, 44, "s45", 2)

    def unit_load(self, dst, rounds, stride, advance, pol):
        e = self.e
        e(f"s_lshl_b32 s60, s30, 4\nv_add_u32 v9, s60, v6\nv_mul_u32_u24 v9, {stride}, v9\nv_add_u32 v9, v9, v7")
        e(f"v_add_u32 v14, {8*stride}, v9\ns_mov_b32 s40, {advance}")
        self.stage_pols.add(pol)
        for rd in range(rounds):
            e(f"s_call_b64 s[42:43], L_stage{pol}")
            self.tr_reads(dst + 8 * rd, 8, 0)
            self.tr_reads(dst + 8 * rd + 4, 8, 4096)

    def stage_subs(self, vM):
        e = self.e
        for pol in sorted(self.stage_pols):
            e(f"L_stage{pol}:\ns_waitcnt lgkmcnt(0)")
            self.soft_barrier(vM)
            self.dma_step(9, 36, "s57", pol)
            self.dma_step(14, 36, "s59", pol)
            e("s_add_u32 s58, s58, s40\ns_waitcnt vmcnt(0)")
            self.soft_barrier(vM)
            e("s_setpc_b64 s[42:43]")

    def sum_round(self, a, b, n, tmp):
        for k in range(n):
            self.e(f"v_add_f32 v{a+k}, v{a+k}, v{b+k}")
        if n == 1:
            self.rbf1(a)
        else:
            self.rbf_pairs(list(range(a, a + n)), tmp)

    def mlp_ids(self):
        e = self.e
        e("s_and_b32 s60, s100, 7")
        if not self.xl:
            e("s_bfe_u32 s54, s2, 0x10005\ns_bfe_u32 s55, s2, 0x20003\ns_lshl_b32 s61, s60, 2\ns_add_u32 s55, s55, s61")
            e("s_lshr_b32 s61, s2, 6\ns_cmp_eq_u32 s61, 1")
        elif self.xm:
            e("s_bfe_u32 s54, s2, 0x10002\ns_lshr_b32 s55, s2, 6\ns_mul_i32 s55, s55, 7\ns_add_u32 s55, s55, s60")
            e("s_and_b32 s61, s2, 3\ns_cmp_eq_u32 s61, 2")
        else:
            e("s_bfe_u32 s54, s2, 0x10006\ns_bfe_u32 s55, s2, 0x20001\ns_mul_i32 s55, s55, 7\ns_add_u32 s55, s55, s60")
            e("s_and_b32 s61, s2, 0x81\ns_cmp_eq_u32 s61, 0")
        e("s_cselect_b32 s60, s60, 7\ns_lshl_b32 s101, s54, 5\ns_add_u32 s101, s101, s55")
        e("s_cmp_eq_u32 s60, 7\ns_cselect_b32 s101, 64, s101")

    def service(self):
        e = self.e
        WO, W1, W2 = 32, 64, 120
        OCB, SB, GA, XP, GB, F = 176, 184, 192, 194, 196, 240
        RAW, AD, DD = 200, 232, 244
        vT8, vT16, vM, vT3 = 10, 11, 12, 252
        LM, HM = "s[50:51]", "s[52:53]"
        e("L_service:\ns_sub_u32 s30, s3, 4\ns_mov_b32 s31, 0x80000")
        e("s_and_b32 s48, s100, 7\ns_lshr_b32 s49, s100, 3")
        e("s_mov_b32 s50, 0x3fff3fff\ns_mov_b32 s51, 0x3fff3fff\ns_mov_b32 s52, 0x0fffffff\ns_mov_b32 s53, 0x0fffffff")
        e("v_mov_b32 v2, 0\nv_lshrrev_b32 v3, 4, v0\nv_and_b32 v4, 15, v0")
        e("v_lshlrev_b32 v5, 6, v4\nv_lshl_add_u32 v5, v3, 4, v5")
        e("v_lshrrev_b32 v6, 3, v0\nv_and_b32 v7, 7, v0\nv_lshlrev_b32 v7, 4, v7")
        e("v_lshlrev_b32 v8, 10, v3\nv_bfe_u32 v1, v0, 2, 2\nv_lshl_add_u32 v8, v1, 7, v8")
        e("v_and_b32 v1, 3, v0\nv_lshl_add_u32 v8, v1, 3, v8")
        e(f"v_mov_b32 v{vM}, {MISC}\ns_mov_b32 s47, 0\ns_waitcnt lgkmcnt(0)\ns_barrier")
        self.srd(32, 28, WS_SIZE)
        e("s_cmp_eq_u32 s30, 0\ns_cbranch_scc1 L_pro")
        self.lds_wait(vM, QRDY - MISC, 47, 1, 8)
        if self.vtouch:
            e("s_lshl_b32 s60, s100, 21\ns_add_u32 s36, s8, s60\ns_addc_u32 s37, s9, 0\ns_mov_b32 s38, 0x200000\ns_mov_b32 s39, 0x20000")
            e("s_cmp_lg_u32 s30, 1\ns_cbranch_scc1 L_notouch\nbuffer_load_dword v16, v2, s[36:39], 0 offen nt\nL_notouch:")
        e(f"ds_read_b32 v1, v{vM} offset:{TAG-MISC}\ns_waitcnt lgkmcnt(0)\nv_readfirstlane_b32 s56, v1")
        e(f"v_and_b32 v{vT8}, 0xff, v1\nv_and_b32 v{vT16}, 0xffff, v1\nv_and_b32 v{vT3}, 7, v1\ns_branch L_bg")

        PB, PA, PRAW, PCL, PN, PC, PD = 32, 144, 144, 176, 208, 224, 232
        e("L_pro:")
        self.stamp(0)
        e("s_load_dword s56, s[28:29], 0")
        e("s_cmp_ge_u32 s2, 128\ns_cselect_b32 s55, s100, s2" if self.qloc else "s_mov_b32 s55, s2")
        e("s_and_b32 s54, s55, 1\ns_bfe_u32 s55, s55, 0x60001")
        e("s_cmp_ge_u32 s2, 128")
        e("s_cselect_b32 s36, s4, s20\ns_cselect_b32 s37, s5, s21\ns_mov_b32 s38, 1792\ns_mov_b32 s39, 0x20000")
        e("s_cselect_b32 s40, s10, s22\ns_cselect_b32 s41, s11, s23\ns_mov_b32 s43, 0x20000")
        e(f"s_mov_b32 s46, 5376\ns_cselect_b32 s46, 8192, s46\ns_mul_i32 s42, s46, 448")
        e("s_cbranch_scc1 L_unit\ns_cmp_lt_u32 s2, 84\ns_cbranch_scc1 L_unit")
        e("s_waitcnt lgkmcnt(0)\ns_add_u32 s56, s56, 1")
        e(f"s_and_b32 s60, s56, 0xff\nv_mov_b32 v{vT8}, s60\ns_and_b32 s60, s56, 0xffff\nv_mov_b32 v{vT16}, s60\nv_and_b32 v{vT3}, 7, v{vT8}")
        e("s_branch L_getq")
        e("L_unit:")
        for k in range(8):
            e(f"v_mov_b32 v{PC+k}, 0")
        if self.lev:
            per = -(-((1024 - 64) // self.period * self.nsh) // 28)
            assert per <= 64 and per * 28 * self.cst <= WS_SIZE - WS_CTR
            e(f"s_cmp_ge_u32 s2, 28\ns_cbranch_scc1 L_noz\ns_mul_i32 s58, s2, {per*self.cst}\ns_add_u32 s58, s58, {WS_CTR}")
            for k in range(0, per, 16):
                e(f"v_lshrrev_b32 v1, 2, v0\nv_add_u32 v1, {k}, v1\nv_and_b32 v9, 3, v0\nv_lshlrev_b32 v9, 4, v9")
                e(f"v_mul_u32_u24 v13, {self.cst}, v1\nv_add_u32 v9, v9, v13")
                e(f"v_cmp_gt_u32 vcc, {per}, v1\ns_and_saveexec_b64 s[62:63], vcc")
                if self.ctouch:
                    e("buffer_load_dword v16, v9, s[32:35], s58 offen")
                e(f"buffer_store_dwordx4 v[{PC}:{PC+3}], v9, s[32:35], s58 offen sc1\ns_mov_b64 exec, -1")
            e("L_noz:")
        e("v_lshrrev_b32 v1, 5, v0\nv_and_b32 v15, 31, v0\nv_mul_u32_u24 v13, 896, v1\nv_lshl_add_u32 v13, v15, 4, v13")
        e("s_mul_i32 s58, s54, 448\ns_sub_u32 s59, 448, s58")
        e(f"s_mov_b64 exec, {HM}")
        e(f"buffer_load_dwordx4 v[{PC}:{PC+3}], v13, s[36:39], s58 offen")
        e(f"buffer_load_dwordx4 v[{PC+4}:{PC+7}], v13, s[36:39], s59 offen")
        e("s_mov_b64 exec, -1")
        e("v_mul_u32_u24 v9, s46, v6\nv_add_u32 v9, v9, v7")
        e("s_mul_i32 s58, s54, 224\ns_mul_i32 s58, s58, s46\ns_lshl_b32 s60, s55, 7\ns_add_u32 s58, s58, s60\ns_lshl_b32 s59, s46, 3")
        for n in range(28):
            self.dma_step(9, 40, PST + 1024 * n, self.wpol)
            e("s_add_u32 s58, s58, s59")
        e(f"v_mul_u32_u24 v9, {2688*4}, v1\nv_lshl_add_u32 v9, v15, 5, v9")
        e(f"v_mul_u32_u24 v13, 448, v1\nv_lshl_add_u32 v13, v15, 4, v13\nv_add_u32 v13, {AIM}, v13")
        e(f"v_bfe_u32 v1, v0, 2, 1\nv_mul_u32_u24 v14, 448, v1\nv_lshl_add_u32 v14, v3, 4, v14\nv_add_u32 v14, {AIM}, v14")
        e(f"v_add_u32 v15, {PST}, v8")
        e("s_waitcnt lgkmcnt(0)\ns_add_u32 s56, s56, 1")
        e(f"s_and_b32 s60, s56, 0xff\nv_mov_b32 v{vT8}, s60\ns_and_b32 s60, s56, 0xffff\nv_mov_b32 v{vT16}, s60\nv_and_b32 v{vT3}, 7, v{vT8}")
        e("s_waitcnt vmcnt(28)")
        X = list(range(PN, PN + 8))
        self.unpack(list(range(PC, PC + 8)), list(range(PN, PN + 16)))
        e("s_cmp_ge_u32 s2, 128\ns_cbranch_scc1 L_ln1")
        self.silu(X, list(range(PN + 8, PN + 16)))
        for k in range(4):
            e(f"v_cvt_pk_bf16_f32 v{PC+k}, v{X[2*k]}, v{X[2*k+1]}")
        e("s_branch L_frag\nL_ln1:")
        self.layernorm(X, list(range(16, 26)), extra=list(range(PN + 8, PN + 16)))
        e("L_frag:\ns_waitcnt vmcnt(0)")
        self.stamp(1)
        for st in range(7):
            for u in range(4):
                self.tr_reads(PB + 16 * st + 4 * u, 15, 4096 * st + 32 * u)
        self.stamp(2)
        e("s_cmp_lt_u32 s2, 128\ns_cbranch_scc1 L_mm")
        e(f"s_mul_i32 s58, s54, 896\ns_add_u32 s58, s58, {WS_MOD}\ns_add_u32 s59, s58, {2*2688*4}")
        loads = []
        for p in range(2):
            for m in range(2):
                for hf in range(2):
                    k = (p * 2 + m) * 2 + hf
                    loads.append((4, PRAW + 4 * k, PCL + 4 * k, 9, f"s{58+p}", m * 448 * 4 + hf * 16))
        if self.mat:
            self.lds_wait(vM, FULL - MISC, 47, self.mat, 2)
        self.gather(loads, vT3, 7, HM, pairs=True, sleep=self.msleep)
        self.stamp(3)
        self.sum_round(PCL, PCL + 16, 16, list(range(16, 24)))
        CA = list(range(PCL + 8, PCL + 16))
        for r in CA:
            e(f"v_add_f32 v{r}, 1.0, v{r}")
        self.rbf_pairs(CA, list(range(16, 20)))
        self.modulate(X, CA, list(range(PCL, PCL + 8)), list(range(PC, PC + 4)), list(range(16, 20)))
        e("L_mm:")
        e(f"s_mov_b64 exec, {HM}\nds_write_b128 v13, v[{PC}:{PC+3}]\ns_mov_b64 exec, -1\ns_waitcnt lgkmcnt(0)")
        for st in range(7):
            e(f"ds_read_b128 v[{PA+4*st}:{PA+4*st+3}], v14 offset:{64*st}")
        e("s_lshl_b32 s46, s46, 1\nv_and_b32 v1, 1, v3\nv_mul_u32_u24 v9, s46, v1\nv_lshrrev_b32 v1, 5, v0")
        e("v_lshl_add_u32 v9, v1, 6, v9\nv_lshl_add_u32 v9, v4, 2, v9")
        e(f"s_mul_i32 s58, s54, s46\ns_lshl_b32 s58, s58, 1\ns_lshl_b32 s60, s55, 8\ns_add_u32 s58, s58, s60")
        e(f"s_mov_b32 s60, {WS_MOD}\ns_cmp_ge_u32 s2, 128\ns_cselect_b32 s60, {WS_Q}, s60\ns_add_u32 s58, s58, s60")
        for st in range(7):
            e(f"s_waitcnt lgkmcnt({6-st})")
            for u in range(4):
                d, b = PD + 4 * u, PB + 16 * st + 4 * u
                c = "0" if st == 0 else f"v[{d}:{d+3}]"
                e(f"v_mfma_f32_16x16x32_bf16 v[{d}:{d+3}], v[{PA+4*st}:{PA+4*st+3}], v[{b}:{b+3}], {c}")
        e("s_nop 7")
        for v in range(2):
            e(f"v_mov_b32_dpp v{PD+8*v}, v{PD+8*v+4} quad_perm:[0,1,2,3] row_mask:0xc bank_mask:0xf")
        for v in range(2):
            e(f"v_and_or_b32 v{PD+8*v}, v{PD+8*v}, -8, v{vT3}")
            e(f"buffer_store_dword v{PD+8*v}, v9, s[32:35], s58 offen offset:{128*v} sc1")
        self.stamp(4)
        e("L_getq:")
        if self.qat:
            self.lds_wait(vM, FULL - MISC, 47, self.qat, 2)
        e(f"v_lshlrev_b32 v9, 4, v0\ns_lshl_b32 s58, s49, 10\ns_add_u32 s58, s58, {WS_Q}\ns_add_u32 s59, s58, 0x8000")
        self.gather([(4, PRAW, PCL, 9, "s58", 0), (4, PRAW + 4, PCL + 4, 9, "s59", 0)], vT3, 7, "-1",
                    sleep=self.qsleep)
        for k in range(4):
            e(f"v_add_f32 v{PCL+k}, v{PCL+k}, v{PCL+4+k}")
        e(f"v_cvt_pk_bf16_f32 v16, v{PCL}, v{PCL+1}\nv_cvt_pk_bf16_f32 v17, v{PCL+2}, v{PCL+3}")
        e(f"v_lshl_add_u32 v1, v0, 3, v{vM}\nds_write_b64 v1, v[16:17] offset:{QV-MISC}")
        e(f"v_mov_b32 v18, 1\nv_mov_b32 v19, s56\nds_write_b64 v{vM}, v[18:19] offset:{QRDY-MISC}")
        self.stamp(5)

        e("L_bg:")
        e(f"s_lshl_b32 s57, s30, 11\ns_add_u32 s57, s57, {STG}\ns_add_u32 s59, s57, 1024")
        e(f"s_lshl_b32 s60, s30, 5\ns_add_u32 s60, s60, {STG}\nv_add_u32 v8, s60, v8\ns_mov_b32 s44, 0\ns_mov_b32 s45, 0")
        self.mlp_ids()
        e("s_cmp_eq_u32 s48, 7\ns_cbranch_scc1 L_bgdone")
        if self.wdelay:
            e("s_mov_b32 s47, 0")
            self.lds_wait(vM, FULL - MISC, 47, self.wdelay, 4)
        self.srd(36, 12, 4096 * 896)
        e(f"s_and_b32 s58, s49, 15\ns_mul_i32 s58, s58, {256*896}\ns_lshl_b32 s60, s48, 7\ns_add_u32 s58, s58, s60")
        if self.bgst:
            self.stamp(1)
        self.unit_load(WO, 4, 896, 64 * 896, self.opol)
        if self.bgst:
            self.stamp(2)
        e("s_cmp_ge_u32 s101, 64\ns_cbranch_scc1 L_bgdone")
        if self.mdelay:
            e(f"s_mul_i32 s46, s54, {self.mdelay}\ns_mov_b32 s47, 0")
            self.lds_wait(vM, FULL - MISC, 47, "s46", 32)
        self.srd(36, 16, 448 * 3584)
        e("s_lshl_b32 s58, s55, 7")
        self.unit_load(W1, 7, 3584, 64 * 3584, self.mpol)
        if self.bgst:
            self.stamp(3)
        self.srd(36, 18, 1792 * 896)
        e(f"s_mul_i32 s58, s55, {64*896}")
        self.unit_load(W2, 7, 896, 128, self.mpol)
        e("s_waitcnt lgkmcnt(0)")
        self.soft_barrier(vM)
        if self.bgst:
            self.stamp(4)
        e("v_and_b32 v1, 31, v0\nv_lshlrev_b32 v13, 2, v1\nv_lshrrev_b32 v1, 5, v0\nv_lshl_add_u32 v13, v1, 1, v13")
        e("s_mul_i32 s60, s30, 112\nv_add_u32 v13, s60, v13")
        self.srd(36, 4, 1792)
        e(f"v_lshlrev_b32 v14, 1, v13\ns_mul_i32 s58, s54, 896\nbuffer_load_dword v{XP}, v14, s[36:39], s58 offen")
        e(f"s_mul_i32 s58, s54, {2688*4}\ns_add_u32 s58, s58, {WS_MOD+896*4}\ns_add_u32 s59, s58, {2*2688*4}\nv_lshlrev_b32 v9, 2, v13")
        self.gather([(2, RAW, GA, 9, "s58", 0), (2, RAW + 2, 16, 9, "s59", 0)], vT3, 7, HM, sleep=8)
        self.sum_round(GA, 16, 2, [18])
        e(f"v_and_b32 v{XP+1}, 0xffff0000, v{XP}\nv_lshlrev_b32 v{XP}, 16, v{XP}")
        e("v_lshlrev_b32 v9, 1, v5")
        loads = []
        for p in range(2):
            for m, dst in enumerate((SB, OCB)):
                for hf in range(2):
                    k = (p * 2 + m) * 2 + hf
                    cl = dst + 4 * hf if p == 0 else AD + 8 * (1 - m) + 4 * hf
                    loads.append((4, RAW + 4 * k, cl, 9, f"s{58+p}", (m + 1) * 448 * 4 + hf * 16))
        self.gather(loads, vT3, 7, LM, sleep=8, pairs=True)
        self.sum_round(OCB, AD, 16, list(range(16, 24)))
        e(f"s_lshl_b32 s60, s55, 6\ns_add_u32 s58, s58, s60\ns_add_u32 s58, s58, {1344*4}\ns_add_u32 s59, s58, {2*2688*4}")
        e("v_lshlrev_b32 v9, 2, v4")
        self.gather([(1, RAW, GB, 9, "s58", 0), (1, RAW + 1, 16, 9, "s59", 0)], vT3, 7, "-1", sleep=8)
        self.sum_round(GB, 16, 1, None)
        for k in range(8):
            e(f"v_add_f32 v{OCB+k}, 1.0, v{OCB+k}")
        self.rbf_pairs(list(range(OCB, OCB + 8)), list(range(16, 20)))
        e(f"s_lshl_b32 s60, s30, 10\ns_add_u32 s60, s60, {GX}\nv_lshl_add_u32 v13, v0, 4, s60\nds_write_b128 v13, v[{GA}:{GA+3}]")
        e(f"v_lshlrev_b32 v13, 2, v0\nv_add_u32 v13, {GBL}, v13\nds_write_b32 v13, v{GB}\ns_waitcnt lgkmcnt(0)")
        self.soft_barrier(vM)
        e("L_bgdone:")
        if self.stamps:
            e("s_cmp_eq_u32 s30, 0\ns_cbranch_scc1 L_st0")
            self.stamp(0)
            e("L_st0:")
        if self.warm:
            e("s_cmp_lg_u32 s30, 1\ns_cbranch_scc1 L_warmed\ns_mov_b32 s60, 2\nL_warm:\ns_mov_b64 exec, 0\ns_branch L_pad0")
            e("L_padret:\ns_mov_b64 exec, -1\ns_sub_u32 s60, s60, 1\ns_cmp_lg_u32 s60, 0\ns_cbranch_scc1 L_warm\nL_warmed:")
        e("s_cmp_lg_u32 s30, 0\ns_cbranch_scc1 L_tail0")

        top, go = self.lab("ml"), self.lab("mlgo")
        e(f"{top}:")
        for i in range(3):
            e(f"ds_read_b128 v[{16+4*i}:{19+4*i}], v{vM} offset:{ML-MISC+16*i}")
        e("s_waitcnt lgkmcnt(0)\nv_min3_u32 v1, v18, v22, v26\ns_nop 0\nv_readfirstlane_b32 s60, v1")
        e(f"s_cmp_lg_u32 s60, 0\ns_cbranch_scc1 {go}")
        self.budget()
        e(f"s_sleep 32\ns_branch {top}\n{go}:")
        e(f"s_mov_b32 s61, {hex(C2)}\nv_max3_f32 v28, v16, v20, v24")
        for i in range(3):
            e(f"v_sub_f32 v{18+4*i}, v{16+4*i}, v28\nv_mul_f32 v{18+4*i}, s61, v{18+4*i}\nv_exp_f32 v{18+4*i}, v{18+4*i}")
        e("s_nop 0\nv_mul_f32 v29, v17, v18\nv_fmac_f32 v29, v21, v22\nv_fmac_f32 v29, v25, v26")
        e(f"v_or_b32 v{RAW}, v28, v{vT16}\nv_and_b32 v1, 0xffff0000, v29\nv_or_b32 v{RAW+1}, v1, v{vT16}")
        e(f"v_lshlrev_b32 v1, 16, v29\nv_or_b32 v{RAW+2}, v1, v{vT16}")
        e(f"s_getreg_b32 s46, hwreg(HW_REG_XCC_ID, 0, 4)\ns_lshl_b32 s46, s46, 16\nv_or_b32 v{RAW+3}, s46, v{vT16}")
        if self.xl:
            e("s_and_b32 s58, s2, 7\ns_lshr_b32 s59, s2, 3")
        else:
            e("s_lshr_b32 s58, s2, 5\ns_and_b32 s59, s2, 31")
        e(f"s_lshl_b32 s58, s58, 9\ns_add_u32 s58, s58, {WS_ML}\ns_lshl_b32 s60, s59, 4\nv_mov_b32 v1, s60")
        e(f"s_mov_b64 exec, 1\nbuffer_store_dwordx4 v[{RAW}:{RAW+3}], v1, s[32:35], s58 offen sc1\ns_mov_b64 exec, -1")
        e("s_mov_b32 s47, 0")
        self.lds_wait(vM, FULL - MISC, 47, 640, 32)
        e(f"s_and_b32 s59, s59, 24\nv_and_b32 v9, {31 if self.fast else 7}, v0\nv_xor_b32 v9, s59, v9\nv_lshlrev_b32 v9, 4, v9")
        self.gather([(4, RAW + 4, RAW + 8, 9, "s58", 0)], vT16, "WORD_0", "-1", sleep=16)
        m, l = RAW + 8, RAW + 9
        e(f"v_lshrrev_b32 v{l+1}, 16, v{l+1}\nv_or_b32 v{l}, v{l}, v{l+1}\nv_mov_b32 v28, v{m}")
        oct_steps = ["quad_perm:[1,0,3,2]", "quad_perm:[2,3,0,1]", "row_half_mirror"]
        for st in oct_steps:
            e(f"s_nop 1\nv_max_f32_dpp v28, v28, v28 {st} {DPPF}")
        e(f"v_sub_f32 v{m}, v{m}, v28\nv_mul_f32 v{m}, s61, v{m}\nv_exp_f32 v{m}, v{m}\ns_nop 0\nv_mul_f32 v29, v{m}, v{l}")
        for st in oct_steps:
            e(f"s_nop 1\nv_add_f32_dpp v29, v29, v29 {st} {DPPF}")
        e("v_rcp_f32 v29, v29")
        for i in range(3):
            e(f"v_sub_f32 v{F+i}, v{16+4*i}, v28\nv_mul_f32 v{F+i}, s61, v{F+i}\nv_exp_f32 v{F+i}, v{F+i}\ns_nop 0")
            e(f"v_mul_f32 v{F+i}, v{F+i}, v29")
        if self.fast:
            e(f"v_cmp_ne_u32 vcc, s46, v{RAW+11}\ns_cmp_eq_u64 vcc, 0\ns_cselect_b32 s60, 2, 1\nv_mov_b32 v{F+3}, s60")
        else:
            e(f"v_mov_b32 v{F+3}, 1")
        e(f"s_mov_b64 exec, 1\nds_write_b128 v{vM}, v[{F}:{F+3}] offset:{FS-MISC}\ns_mov_b64 exec, -1")
        e("L_tail0:\ns_cmp_eq_u32 s48, 7\ns_cbranch_scc1 L_fin")

        def stamp_s(k):
            if self.stamps and not self.bgst:
                e(f"s_cmp_eq_u32 s30, 0\ns_cbranch_scc1 L_st{k}")
                self.stamp(k)
                e(f"L_st{k}:")

        e(f"s_lshl_b32 s58, s49, 13\ns_lshl_b32 s60, s30, 8\ns_add_u32 s58, s58, s60\ns_add_u32 s58, s58, {WS_OP}")
        e("s_add_u32 s59, s58, 4096\nv_lshlrev_b32 v9, 2, v0")
        e(f"v_lshlrev_b32 v255, 10, v3\nv_lshl_add_u32 v255, v4, 4, v255\nv_lshl_add_u32 v1, v4, 3, v3")
        e("s_lshr_b32 s60, s30, 1\ns_lshl_b32 s60, s60, 8\ns_and_b32 s61, s30, 1\ns_lshl_b32 s61, s61, 3\ns_add_u32 s60, s60, s61")
        e(f"s_add_u32 s60, s60, {QV}\nv_lshl_add_u32 v14, v1, 1, s60")
        e(f"v_lshl_add_u32 v15, v3, 4, v{vM}\nv_add_u32 v13, v5, v{vM}")
        e(f"s_mul_i32 s40, s49, {448*4}\ns_lshl_b32 s60, s48, 8\ns_add_u32 s40, s40, s60")
        e(f"s_lshl_b32 s60, s30, 6\ns_add_u32 s40, s40, {WS_Y}")
        if self.ymerge:
            e(f"v_lshl_add_u32 v29, v4, 2, v{vM}\nv_add_u32 v29, s60, v29\nv_add_u32 v28, v9, v{vM}")
        else:
            e("s_add_u32 s40, s40, s60")
        vYM, vYT = 253, 254
        e(f"v_and_b32 v1, 3, v0\nv_cmp_eq_u32 vcc, 0, v1\nv_mov_b32 v1, 0xffffff00\ns_mov_b32 s43, 0xffffff00")
        e(f"v_cndmask_b32 v{vYM}, -1, v1, vcc\nv_cndmask_b32 v{vYT}, 0, v{vT8}, vcc")
        e(f"s_lshl_b32 s60, s30, 5\ns_add_u32 s60, s60, {RED}\nv_lshl_add_u32 v30, v4, 1, s60")
        ZB = 1792 << self.zpad
        e(f"s_mul_i32 s41, s54, {28*ZB}\ns_mul_i32 s60, s30, {ZB}\ns_add_u32 s41, s41, s60")
        e(f"s_lshl_b32 s60, s55, {6+self.zpad}\ns_add_u32 s41, s41, s60\ns_add_u32 s41, s41, {WS_Z}\ns_add_u32 s42, s41, {16*ZB}")
        e(f"v_mul_u32_u24 v31, {4*ZB}, v3\nv_lshl_add_u32 v31, v4, 2, v31")
        for k in range(4):
            e(f"v_mov_b32 v{248+k}, 0")
        ol = [(4, 20 + 4 * k, 255, f"s{58+k}", 0) for k in range(2)]
        e("s_mov_b32 s47, 0\ns_mov_b32 s46, 0")
        self.lds_wait(vM, FULL - MISC, 47, self.pstart - 40, 64)
        self.lds_wait(vM, FS + 12 - MISC, 46, 1, 2)
        if self.talign is not None:
            e("s_branch L_closing")
            self.L.append(".p2align 12")
            if self.talign:
                self.L.append(f".fill {self.talign//4}, 4, 0xbf800000")
            e("L_closing:")
        self.lds_wait(vM, FULL - MISC, 47, self.pstart, 3)
        e("s_setprio 2")
        self.L.append("@WARM_BEGIN")

        self.gather8(ol, vT8, ["-1", "-1"], False)
        self.pk("add", 22, 22, 26)
        self.pk("add", 20, 20, 24)
        e("s_nop 1\nv_permlane32_swap_b32 v20, v22\nv_permlane32_swap_b32 v21, v23")
        self.pk("add", 20, 20, 22)
        e("s_nop 1\nv_permlane16_swap_b32 v20, v21\nv_add_f32 v20, v20, v21")
        e("v_cvt_pk_bf16_f32 v20, v20, v20\nds_write_b16 v14, v20")
        stamp_s(1)
        e("s_waitcnt lgkmcnt(0)\ns_barrier")
        self.unit_mfma_lds(WO, RAW, 15, 8, DD, QV - MISC)
        e(f"v_and_or_b32 v{DD}, v{DD}, v{vYM}, v{vYT}")
        if self.ymerge:
            e(f"ds_write_b32 v29, v{DD} offset:{RED+128-MISC}\ns_waitcnt lgkmcnt(0)\ns_barrier")
            e(f"s_cmp_lg_u32 s30, 1\ns_cbranch_scc1 L_ydone\nds_read_b32 v{DD}, v28 offset:{RED+128-MISC}\ns_waitcnt lgkmcnt(0)")
            e(f"buffer_store_dword v{DD}, v9, s[32:35], s40 offen sc1\nL_ydone:")
        else:
            e(f"s_mov_b64 exec, 0xffff\nbuffer_store_dword v{DD}, v9, s[32:35], s40 offen sc1")
        stamp_s(2)
        e(f"s_cmp_ge_u32 s101, 64\ns_cbranch_scc1 L_fin\ns_mov_b64 exec, {LM}\ns_barrier")

        e(f"ds_read_b128 v[248:251], v13 offset:{AIM-MISC}\ns_mov_b64 exec, -1")
        stamp_s(3)
        e("s_waitcnt lgkmcnt(0)")
        X = list(range(WO, WO + 8))
        self.unpack([248, 249, 250, 251], X)
        self.layernorm(X, list(range(16, 26)), rounded=not self.lnfast)
        self.modulate(X, list(range(OCB, OCB + 8)), list(range(SB, SB + 8)), [248, 249, 250, 251], list(range(16, 20)),
                      rounded=not self.lnfast)
        self.unit_mfma_dpp(W1, 248, AD, DD)
        self.rbf1(DD)
        self.silu([DD], [16])
        e(f"v_cvt_pk_bf16_f32 v{DD}, v{DD}, v{DD}\nds_write_b16 v30, v{DD}\ns_waitcnt lgkmcnt(0)\ns_barrier")
        e(f"ds_read_b128 v[{AD}:{AD+3}], v15 offset:{RED-MISC}\nds_read_b128 v[{AD+4}:{AD+7}], v15 offset:{RED-MISC+64}")
        stamp_s(4)
        def mm(rho, st):
            d, b = RAW + 4 * rho, W2 + 8 * rho + 4 * st
            c = "0" if st == 0 else f"v[{d}:{d+3}]"
            e(f"v_mfma_f32_16x16x32_bf16 v[{d}:{d+3}], v[{AD+4*st}:{AD+4*st+3}], v[{b}:{b+3}], {c}")

        def sel(dst, g):
            e(f"v_mov_b32_dpp v{dst}, v{dst+4*g} quad_perm:[0,1,2,3] row_mask:{hex(1<<g)} bank_mask:0xf")
        e("s_waitcnt lgkmcnt(1)")
        for rho in range(4):
            mm(rho, 0)
        e("s_waitcnt lgkmcnt(0)")
        for rho in range(4):
            mm(rho, 1)
        for st in range(2):
            for rho in range(4, 7):
                mm(rho, st)
        sel(RAW, 1)
        e("s_nop 1")
        sel(RAW, 2)
        e("s_nop 1")
        sel(RAW, 3)
        e(f"v_and_or_b32 v{RAW}, v{RAW}, v{vYM}, v{vYT}")
        sel(RAW + 16, 1)
        near = self.fast and self.xm
        if near:
            e("s_cmp_lg_u32 s46, 2\ns_cbranch_scc1 L_zfar")
        for pol in ([self.npol, "sc1"] if near else ["sc1"]):
            e(f"buffer_store_dword v{RAW}, v31, s[32:35], s41 offen {pol}\ns_nop 0")
            e(f"v_mov_b32_dpp v{RAW+16}, v{RAW+24} quad_perm:[0,1,2,3] row_mask:0x4 bank_mask:0xf")
            e(f"v_and_or_b32 v{RAW+16}, v{RAW+16}, v{vYM}, v{vYT}\ns_mov_b32 exec_hi, 0xffff")
            e(f"buffer_store_dword v{RAW+16}, v31, s[32:35], s42 offen {pol}")
            if self.stamps and not self.bgst:
                e("s_cmp_eq_u32 s30, 0\ns_cbranch_scc1 L_fin")
                self.stamp(5)
            e("s_branch L_fin")
            if pol != "sc1":
                e("L_zfar:")

    def gtail(self):
        e = self.e
        vM, vT8, GA, XP, GB, R = 12, 10, 4, 6, 8, 32
        HM = "s[52:53]"
        e("L_gtail:")
        self.mlp_ids()
        e("s_cbranch_scc1 L_leave")
        e(f"s_setprio 0\nv_mov_b32 v{vM}, {MISC}\nv_mov_b32 v2, 0\ns_mov_b32 s47, 0\ns_mov_b32 s31, 0x80000")
        self.srd(32, 28, WS_SIZE)
        e("s_mov_b32 s52, 0x0fffffff\ns_mov_b32 s53, 0x0fffffff")
        e(f"s_mul_i32 s40, s54, {16*448*4}\ns_add_u32 s40, s40, {WS_Y}")
        for k in range(1, 4):
            e(f"s_add_u32 s{40+k}, s40, {k*2*448*4}")
        e("v_and_b32 v1, 31, v0\nv_lshrrev_b32 v3, 5, v0\ns_mul_i32 s60, s3, 448\nv_lshl_add_u32 v9, v1, 4, s60")
        e(f"v_lshrrev_b32 v14, 1, v9\nv_lshl_add_u32 v14, v3, 2, v14\nv_add_u32 v14, {AIM}, v14")
        e(f"v_mul_u32_u24 v3, {8*448*4}, v3\nv_add_u32 v9, v9, v3")
        yl = [(4, R + 4 * k, 9, f"s{40+(k>>1)}", (k & 1) * 448 * 4) for k in range(8)]
        zl = [(4, 20 + 4 * k, 13, "s58", 1024 * k) for k in range(2)]
        self.lds_wait(vM, FS + 12 - MISC, 47, 1, 2)
        e(f"ds_read_b32 v11, v{vM} offset:{TAG-MISC}")
        e(f"s_lshl_b32 s60, s3, 10\ns_add_u32 s60, s60, {GX}\nv_lshl_add_u32 v1, v0, 4, s60\nds_read_b128 v[{GA}:{GA+3}], v1")
        e("v_and_b32 v15, 3, v0\nv_lshrrev_b32 v1, 4, v0\nv_lshl_add_u32 v15, v15, 2, v1")
        e(f"v_lshlrev_b32 v13, 4, v0\nv_lshlrev_b32 v1, 2, v15\nv_add_u32 v1, {GBL}, v1\nds_read_b32 v{GB}, v1")
        e(f"s_waitcnt lgkmcnt(0)\nv_and_b32 v{vT8}, 0xff, v11")
        e(f"s_mov_b64 exec, {HM}")
        for ld in yl if self.prewarm & 1 else []:
            self.issue(ld)
        e("s_barrier")
        if self.ymerge:
            e("s_barrier")
        if self.ystage:
            top = self.lab("ys")
            e(f"{top}:")
            self.budget()
            self.issue(yl[self.ystage - 1])
            e(f"s_waitcnt vmcnt(0)\nv_cmp_ne_u32_sdwa vcc, v{yl[self.ystage-1][1]}, v{vT8} src0_sel:BYTE_0 src1_sel:DWORD")
            e(f"s_cmp_lg_u64 vcc, 0\ns_cbranch_scc1 {top}")
        self.gather8(yl, vT8, [HM] * 8, True)
        if self.stamps and not self.prog:
            e("s_cmp_lg_u32 s3, 0\ns_cbranch_scc1 L_sg3")
            self.stamp(3)
            e("L_sg3:")
        for st in (16, 8, 4):
            for k in range(0, st, 2):
                e(f"v_pk_add_f32 v[{R+k}:{R+k+1}], v[{R+k}:{R+k+1}], v[{R+st+k}:{R+st+k+1}]")
        e(f"s_nop 1\nv_permlane32_swap_b32 v{R}, v{R+2}\nv_permlane32_swap_b32 v{R+1}, v{R+3}")
        e(f"v_pk_add_f32 v[{R}:{R+1}], v[{R}:{R+1}], v[{R+2}:{R+3}]")
        self.rbf_pairs([R, R + 1], [16])
        e(f"v_pk_mul_f32 v[{R}:{R+1}], v[{R}:{R+1}], v[{GA}:{GA+1}]")
        self.rbf_pairs([R, R + 1], [16])
        e(f"v_pk_add_f32 v[{R}:{R+1}], v[{R}:{R+1}], v[{XP}:{XP+1}]")
        e(f"v_cvt_pk_bf16_f32 v16, v{R}, v{R+1}")
        e(f"s_mov_b64 exec, {HM}\nds_write_b32 v14, v16\ns_waitcnt lgkmcnt(0)\ns_barrier")
        e("s_cmp_lg_u32 s3, 0\ns_cbranch_scc1 L_epoch\ns_mov_b64 exec, -1")
        e(f"s_mul_i32 s58, s54, 28\ns_add_u32 s58, s58, s55\ns_mul_i32 s58, s58, {1792 << self.zpad}\ns_add_u32 s58, s58, {WS_Z}")
        ZM = "s[50:51]"
        e("s_mov_b32 s50, -1\ns_mov_b32 s51, 0xffff")
        for k in range(4):
            e(f"v_mov_b32 v{24+k}, 0")
        if self.prewarm & 2:
            self.issue(zl[0])
            e(f"s_mov_b64 exec, {ZM}")
            self.issue(zl[1])
            e("s_mov_b64 exec, -1")
        e(f"s_lshl_b32 s60, s55, 5\ns_add_u32 s41, s60, {AIM}\nv_lshl_add_u32 v1, v15, 1, s41\nds_read_u16 v31, v1")
        self.srd(36, 24, 1792)
        e("s_mul_i32 s41, s54, 896\ns_add_u32 s41, s41, s60\nv_lshlrev_b32 v14, 1, v15")
        e("s_mov_b32 s42, 0x000f000f\ns_mov_b32 s43, 0x000f000f")
        e("s_waitcnt lgkmcnt(0)\nv_lshlrev_b32 v31, 16, v31\ns_barrier")
        self.gather8(zl, vT8, ["-1", ZM], False)
        if not self.prog:
            self.stamp(4)
        self.pk("add", 22, 22, 26)
        self.pk("add", 20, 20, 24)
        e("s_nop 1\nv_permlane32_swap_b32 v20, v22\nv_permlane32_swap_b32 v21, v23")
        self.pk("add", 20, 20, 22)
        e("s_nop 1\nv_permlane16_swap_b32 v20, v21\nv_add_f32 v16, v20, v21")
        for rr in (4, 8):
            e(f"s_nop 1\nv_add_f32_dpp v16, v16, v16 row_ror:{rr} {DPPF}")
        self.rbf1(16)
        e(f"v_mul_f32 v16, v16, v{GB}")
        self.rbf1(16)
        e("v_add_f32 v16, v16, v31\nv_cvt_pk_bf16_f32 v16, v16, v16")
        e("s_mov_b64 exec, s[42:43]\nbuffer_store_short v16, v14, s[36:39], s41 offen")
        if not self.prog:
            self.stamp(5)
        if self.diagmap:
            e("s_cmp_lg_u32 s101, 0\ns_cbranch_scc1 L_fin\ns_mov_b64 exec, 1")
            self.srd(44, 26, 256)
            for ti, ptr in enumerate((6, 8)):
                self.srd(36, ptr, 0x20000000)
                e(f"s_mov_b32 s40, 0\ns_mov_b32 s41, 0\nL_dm{ti}:\ns_lshl_b32 s42, s40, 21")
                e("buffer_load_dword v16, v2, s[36:39], s42 offen offset:2048 nt\ns_waitcnt vmcnt(0)\ns_mov_b32 s43, 0")
                for rep in range(3):
                    for half in range(2):
                        e(f"s_add_u32 s48, s42, {half*8192 + rep*32768}\ns_memtime s[60:61]\ns_waitcnt lgkmcnt(0)")
                        e("buffer_load_dword v16, v2, s[36:39], s48 offen nt\ns_waitcnt vmcnt(0)\ns_memtime s[62:63]\ns_waitcnt lgkmcnt(0)")
                        e(f"s_sub_u32 s{64+half}, s62, s60")
                    e("s_cmp_lt_u32 s64, s65\ns_addc_u32 s43, s43, 0")
                e("s_lshr_b32 s43, s43, 1\ns_and_b32 s48, s40, 31\ns_lshl_b32 s43, s43, s48\ns_or_b32 s41, s41, s43")
                e(f"s_lshr_b32 s48, s40, 5\ns_lshl_b32 s48, s48, 2\nv_mov_b32 v17, s41\nbuffer_store_dword v17, v2, s[44:47], s48 offen offset:{32*ti}")
                e(f"s_add_u32 s40, s40, 1\ns_and_b32 s48, s40, 31\ns_cselect_b32 s41, s41, 0\ns_cmp_lt_u32 s40, 256\ns_cbranch_scc1 L_dm{ti}")
        self.L.append("@WARM_END")
        e("L_fin:")
        self.end()
        e("L_epoch:\ns_add_u32 s60, s101, s3\ns_cmp_lg_u32 s60, 1\ns_cbranch_scc1 L_leave")
        e("s_mov_b64 exec, 1\nbuffer_store_dword v11, v2, s[32:35], 0 offen sc1")
        e("L_leave:\ns_barrier\ns_branch L_fin")

    def build(self, header):
        e = self.e
        K = NAME + "_kernel"
        self.L.append(header.rstrip("\n"))
        self.L.append(f"; @launch grid=(256,1,1) block=(512,1,1) lds={LDS_BYTES}")
        self.L.append('.amdgcn_target "amdgcn-amd-amdhsa--gfx950"\n.text')
        self.L.append(f".globl {K}\n.p2align 8\n.type {K},@function\n{K}:")
        e("s_cmp_ge_u32 s2, 256\ns_cbranch_scc1 L_end")
        e("s_load_dwordx16 s[4:19], s[0:1], 0\ns_load_dwordx8 s[20:27], s[0:1], 64\ns_load_dwordx2 s[28:29], s[0:1], 96")
        e("v_lshrrev_b32 v1, 6, v0\nv_and_b32 v0, 63, v0\nv_readfirstlane_b32 s3, v1")
        if self.xl == 2:
            e("s_and_b32 s100, s2, 7\ns_lshl_b32 s100, s100, 3\ns_bfe_u32 s101, s2, 0x30003\ns_or_b32 s100, s100, s101")
            e("s_and_b32 s101, s2, 192\ns_or_b32 s100, s100, s101")
            if self.xf:
                e(f"s_bitcmp1_b32 s2, 6\ns_cselect_b32 s101, {self.xf << 3}, 0\ns_xor_b32 s100, s100, s101")
            if self.xg:
                e(f"s_bitcmp1_b32 s2, 7\ns_cselect_b32 s101, {self.xg << 3}, 0\ns_xor_b32 s100, s100, s101")
        elif self.xl:
            e("s_and_b32 s100, s2, 7\ns_lshl_b32 s100, s100, 4\ns_bfe_u32 s101, s2, 0x40003\ns_or_b32 s100, s100, s101")
            e("s_and_b32 s101, s2, 128\ns_or_b32 s100, s100, s101")
        else:
            e("s_mov_b32 s100, s2")
        self.stamp_init()
        e("s_cmp_eq_u32 s3, 0\ns_cbranch_scc1 L_loader")
        e(f"v_lshlrev_b32 v1, 3, v0\nv_add_u32 v1, {MISC}, v1\nv_mov_b32 v2, 0\nv_mov_b32 v3, 0\nds_write_b64 v1, v[2:3]")
        e("s_cmp_ge_u32 s3, 4\ns_cbranch_scc1 L_service\ns_branch L_consumer")
        self.loader()
        e("L_end:\ns_endpgm")
        self.consumer()
        self.service()
        self.gtail()
        self.stage_subs(12)
        e("L_last:")
        self.L.append(f""".section .rodata,"a"
.p2align 6
.amdhsa_kernel {K}
  .amdhsa_next_free_vgpr 256
  .amdhsa_next_free_sgpr 102
  .amdhsa_accum_offset 256
  .amdhsa_group_segment_fixed_size 0
  .amdhsa_kernarg_size 104
  .amdhsa_user_sgpr_count 2
  .amdhsa_user_sgpr_kernarg_segment_ptr 1
  .amdhsa_system_sgpr_workgroup_id_x 1
  .amdhsa_float_denorm_mode_32 3
.end_amdhsa_kernel""")
        return "\n".join(self.place_pads()) + "\n"

    def place_pads(self):
        out, inside, count, npad, masked = [], False, 0, 0, False
        def pad(op):
            nonlocal npad, count
            out.append(f"L_pad{npad}:\n    {op} @PAD{npad+1}@")
            npad += 1
            count = 0
        for line in self.L:
            if line == "@WARM_BEGIN":
                inside = bool(self.warm)
                if inside:
                    pad("s_cbranch_execz")
                continue
            if line == "@SPOT":
                if self.warm:
                    pad("s_branch")
                continue
            if line == "@WARM_END":
                inside = False
                continue
            out.append(line)
            if inside and line.startswith("    "):
                count += 1
                if "s_cselect_b64 exec" in line:
                    masked = True
                elif "s_mov_b64 exec" in line:
                    masked = False
                if line.strip().startswith("s_branch "):
                    pad("s_branch")
                elif count >= self.warm and not masked:
                    pad("s_cbranch_execz")
        text = "\n".join(out)
        for k in range(1, npad + 1):
            text = text.replace(f"@PAD{k}@", f"L_pad{k}" if k < npad else "L_padret")
        return text.split("\n")


HEADER = """; Fused adaLN-conditioned block: cached multi-head attention (decode) + SiLU MLP, gfx950.
"""


def generate(**kw):
    return Gen(**kw).build(HEADER)


if __name__ == "__main__":
    import json
    kw = json.loads(sys.argv[2]) if len(sys.argv) > 2 else {}
    open(sys.argv[1], "w").write(generate(**kw))
```

```python
import struct
import sys

NAME = "adaLN_cond__mha_block_cached__dense_activation_silu__decode"

WS_EPOCH, WS_MOD, WS_Q, WS_OP, WS_Y, WS_ML, WS_Z, WS_CTR, WS_SIZE = (
    0, 0x1000, 0x10000, 0x20000, 0x60000, 0x6E000, 0x70000, 0xB0000, 0x1E0000)
WS_STAMP = 0x1E0000
RING, NSLOT = 0, 16
SC, SC_STRIDE = 131072, 6144
STG = 149504
PST = 131072
MISC = 159744
FULL, FREE, QRDY, TAG, BAR, ML, QV, AIM, RED = (MISC, MISC + 256, MISC + 272, MISC + 276, MISC + 280,
                                                MISC + 288, MISC + 512, MISC + 1024, MISC + 2816)
FS, PF = MISC + 336, MISC + 352
GX, GBL = STG, STG + 4096
LDS_BYTES = 163840


STAMPS = [("ld start", 0, 0), ("S0 start", 4, 0), ("S0 weights landed", 4, 1), ("S0 frags read", 4, 2),
          ("S0 mod gathered", 4, 3), ("S0 unit pub", 4, 4), ("S0 q ready", 4, 5), ("C prepull done", 1, 0),
          ("C q seen", 1, 1), ("bg done", 5, 0), ("ld K issued", 0, 1), ("C K done", 1, 2), ("C softmax done", 1, 3),
          ("ld done", 0, 2), ("opart pub", 1, 4), ("o gathered", 5, 1), ("y pub", 5, 2), ("y gathered", 0, 3),
          ("x1 barrier", 5, 3), ("hid barrier", 5, 4), ("z pub", 5, 5), ("z gathered", 0, 4), ("end", 0, 5)]
END_STAMP = (0, 5)


def f2u(x):
    return struct.unpack("<I", struct.pack("<f", x))[0]


LOG2E = 1.4426950408889634
C2 = f2u(LOG2E / 16.0)
DPPF = "row_mask:0xf bank_mask:0xf"


class Gen:
    def __init__(self, D=20, lev=(18, 20, 22, 24, 28), nsh=4, cst=8448, cstart=64, atpos=16, wpol="nt", kvpol="nt",
                 prepull=6, qsleep=0, warm=0, pstart=1016, zpad=0, prewarm=2, vtouch=0, stamps=False, prog=None, bgst=0, l2warm=2, G=2, lev0=None, pi=None, xl=2, xm=1, fast=1, eb=8, mpol="nt", sh0=3, rot=0, qloc=1, qat=46, mat=22, msleep=0, xf=0, xg=0, ymerge=0, ystage=1, fin=(0, 32), npol="", csleep=0, lnfast=0, mix=0, mixat=0, mixto=2048, ctouch=0, mdelay=0, wdelay=0, opol="", boost=(224, 1, 0), diagmap=0, talign=0, esc=(0, 32, 2, 0, 0), t=(12, 13, 14, 11, 15, 10), jb=(21, 16, 23), xk=((), (11,), (10,)), ypol="sc1", mswap=1, ini=None, fing=(28, 26, 22, 18, 16)):
        self.L = []
        self.n = 0
        self.D, self.lev, self.nsh, self.cst, self.cstart, self.atpos = D, list(lev), nsh, cst, cstart, atpos
        self.period = 32
        self.fing = fing
        self.ini = ini
        self.mswap = mswap
        self.ypol = ypol
        self.diagmap = diagmap
        self.talign = talign
        self.stage_pols = set()
        self.t = list(t) + [b for b in range(10, 24) if b not in t and b not in jb]
        self.jb, self.xk = jb, xk
        assert sorted(self.t + list(jb)) == list(range(10, 24)) and self.t[1] > 10
        assert not any(set(m) & (set(self.t[:2]) | set(jb)) for m in xk)
        self.boost, self.esc = boost, esc
        assert cstart + atpos > 2 * (NSLOT + 3 * prepull)
        self.mdelay, self.wdelay = mdelay, wdelay
        self.opol = wpol if opol is None else opol
        self.mix, self.mixat, self.mixto, self.ctouch = mix, mixat, mixto, ctouch
        self.csleep, self.lnfast = csleep, lnfast
        self.fin, self.npol = fin, npol
        self.ymerge, self.ystage = ymerge, ystage
        self.xf, self.xg = xf, xg
        self.qat, self.mat, self.msleep = qat, mat, msleep
        self.qloc = qloc
        self.sh0, self.rot = sh0, rot
        self.xl, self.xm, self.fast, self.eb = xl, xm, fast, eb
        self.mpol = wpol if mpol is None else mpol
        assert xl or not (xm or fast)
        self.pi = pi
        self.G, self.lev0 = G, lev0
        self.l2warm = l2warm
        assert cstart >= 64 and cstart % 32 == 0 and atpos % 8 != 7
        self.wpol, self.kvpol = wpol, kvpol
        self.prepull, self.qsleep, self.warm = prepull, qsleep, warm
        self.pstart, self.zpad, self.prewarm, self.vtouch = pstart, zpad, prewarm, vtouch
        self.stamps, self.prog, self.bgst = stamps, prog, bgst

    def e(self, s):
        for line in s.split("\n"):
            line = line.strip()
            if not line:
                continue
            self.L.append(line if line.endswith(":") or line.startswith(";") else "    " + line)

    def lab(self, p):
        self.n += 1
        return f"L_{p}_{self.n}"

    def srd(self, d, base, size):
        self.e(f"s_mov_b32 s{d}, s{base}\ns_mov_b32 s{d+1}, s{base+1}\n"
               f"s_mov_b32 s{d+2}, {size}\ns_mov_b32 s{d+3}, 0x20000")

    def stamp(self, k):
        if self.stamps:
            self.e(f"s_memrealtime s[{84+2*k}:{85+2*k}]")

    def stamp_init(self):
        if self.stamps:
            for k in range(8):
                self.e(f"s_mov_b64 s[{84+2*k}:{85+2*k}], 0")

    def stamp_flush(self):
        if self.stamps:
            self.e("s_mov_b64 exec, -1\ns_waitcnt lgkmcnt(0)")
            self.srd(80, 28, WS_STAMP + 0x20000)
            for k in range(8):
                self.e(f"v_mov_b32 v{8+k}, s{84+2*k}")
            self.e(f"s_lshl_b32 s30, s2, 3\ns_add_u32 s30, s30, s3\ns_lshl_b32 s30, s30, 5\n"
                   f"s_add_u32 s30, s30, {WS_STAMP}\nv_mov_b32 v1, s30\ns_mov_b64 exec, 1\n"
                   "buffer_store_dwordx4 v[8:11], v1, s[80:83], 0 offen\n"
                   "buffer_store_dwordx4 v[12:15], v1, s[80:83], 0 offen offset:16")

    def end(self):
        self.stamp_flush()
        self.e("s_endpgm")

    def budget(self):
        self.e("s_sub_u32 s31, s31, 1\ns_cbranch_scc1 L_end")

    def wave_reduce(self, op, regs, nsteps=6):
        steps = ["quad_perm:[1,0,3,2] " + DPPF, "quad_perm:[2,3,0,1] " + DPPF, "row_half_mirror " + DPPF,
                 "row_mirror " + DPPF, "row_bcast:15 row_mask:0xa bank_mask:0xf",
                 "row_bcast:31 row_mask:0xc bank_mask:0xf"]
        for st in steps[:nsteps]:
            pad = 3 - len(regs) if st is not steps[0] else 2
            if pad > 0:
                self.e(f"s_nop {pad-1}")
            for r in regs:
                self.e(f"{op}_dpp v{r}, v{r}, v{r} {st}")
        self.e("s_nop 0")

    def rbf_pairs(self, regs, tmp):
        for k in range(0, len(regs), 2):
            self.e(f"v_cvt_pk_bf16_f32 v{tmp[k//2]}, v{regs[k]}, v{regs[k+1]}")
        self.unpack(tmp[:len(regs)//2], regs)

    def unpack(self, packed, regs):
        for k, p in enumerate(packed):
            self.e(f"v_lshlrev_b32 v{regs[2*k]}, 16, v{p}\nv_and_b32 v{regs[2*k+1]}, 0xffff0000, v{p}")

    def rbf1(self, r):
        self.e(f"v_cvt_pk_bf16_f32 v{r}, v{r}, v{r}\nv_and_b32 v{r}, 0xffff0000, v{r}")

    def silu(self, regs, tmp):
        for r, t in zip(regs, tmp):
            self.e(f"v_mul_f32 v{t}, {hex(f2u(-LOG2E))}, v{r}")
        for t in tmp[:len(regs)]:
            self.e(f"v_exp_f32 v{t}, v{t}")
        self.e("s_nop 0")
        for t in tmp[:len(regs)]:
            self.e(f"v_add_f32 v{t}, 1.0, v{t}")
        for t in tmp[:len(regs)]:
            self.e(f"v_rcp_f32 v{t}, v{t}")
        self.e("s_nop 0")
        for r, t in zip(regs, tmp):
            self.e(f"v_mul_f32 v{r}, v{r}, v{t}")

    def pk(self, op, d, a, b, mods=""):
        self.e(f"v_pk_{op}_f32 v[{d}:{d+1}], v[{a}:{a+1}], v[{b}:{b+1}] {mods}")

    def layernorm(self, X, t, extra=None, rounded=True):
        e = self.e
        S = X[::2] + (extra[::2] if extra else [])
        a, b, m, r = t[0], t[2], t[6], t[8]
        self.pk("add", a, S[0], S[1])
        self.pk("mul", b, S[0], S[0])
        e(f"v_pk_fma_f32 v[{b}:{b+1}], v[{S[1]}:{S[1]+1}], v[{S[1]}:{S[1]+1}], v[{b}:{b+1}]")
        for q in S[2:]:
            self.pk("add", a, a, q)
            e(f"v_pk_fma_f32 v[{b}:{b+1}], v[{q}:{q+1}], v[{q}:{q+1}], v[{b}:{b+1}]")
        e(f"v_add_f32 v{a}, v{a}, v{a+1}\nv_add_f32 v{b}, v{b}, v{b+1}")
        inv = hex(f2u(1.0 / 448))
        if extra is None:
            self.wave_reduce("v_add_f32", [a, b])
            e(f"v_readlane_b32 s60, v{a}, 63\nv_readlane_b32 s61, v{b}, 63\nv_mov_b32 v{a+1}, {inv}")
            e(f"v_mul_f32 v{a}, s60, v{a+1}\nv_mul_f32 v{b}, s61, v{a+1}")
        else:
            self.wave_reduce("v_add_f32", [a, b], nsteps=4)
            e(f"v_mov_b32 v{a+1}, v{a}\nv_mov_b32 v{b+1}, v{b}\ns_nop 1")
            e(f"v_permlane16_swap_b32 v{a}, v{a+1}\nv_permlane16_swap_b32 v{b}, v{b+1}")
            e(f"v_add_f32 v{a}, v{a}, v{a+1}\nv_add_f32 v{b}, v{b}, v{b+1}")
            e(f"v_mul_f32 v{a}, {inv}, v{a}\nv_mul_f32 v{b}, {inv}, v{b}")
        e(f"v_fma_f32 v{b}, -v{a}, v{a}, v{b}\nv_max_f32 v{b}, 0, v{b}")
        e(f"v_cvt_pk_bf16_f32 v{a}, v{a}, v{b}")
        e(f"v_and_b32 v{r}, 0xffff0000, v{a}\nv_lshlrev_b32 v{m}, 16, v{a}")
        e(f"v_add_f32 v{r}, {hex(f2u(1e-5))}, v{r}")
        self.rbf1(r)
        e(f"v_sqrt_f32 v{r}, v{r}")
        for q in X[::2]:
            self.pk("add", q, q, m, "op_sel_hi:[1,0] neg_lo:[0,1] neg_hi:[0,1]")
        self.rbf1(r)
        e(f"v_rcp_f32 v{r}, v{r}")
        if rounded:
            self.rbf_pairs(X, t[2:6])
        else:
            e("s_nop 0")
        for q in X[::2]:
            self.pk("mul", q, q, r, "op_sel_hi:[1,0]")
        if rounded:
            self.rbf_pairs(X, t[2:6])

    def modulate(self, X, OC, SH, out, t, rounded=True):
        if rounded:
            for k in range(0, 8, 2):
                self.pk("mul", X[k], X[k], OC[k])
            self.rbf_pairs(X, t)
            for k in range(0, 8, 2):
                self.pk("add", X[k], X[k], SH[k])
        else:
            for k in range(0, 8, 2):
                self.e(f"v_pk_fma_f32 v[{X[k]}:{X[k]+1}], v[{X[k]}:{X[k]+1}], v[{OC[k]}:{OC[k]+1}], v[{SH[k]}:{SH[k]+1}]")
        for k in range(4):
            self.e(f"v_cvt_pk_bf16_f32 v{out[k]}, v{X[2*k]}, v{X[2*k+1]}")

    def gather(self, loads, vtag, sel, active, sleep=0, pairs=False):
        e = self.e
        top, done = self.lab("gat"), self.lab("gdone")
        for k in range(len(loads)):
            e(f"s_mov_b64 s[{64+2*k}:{65+2*k}], 1")
        e(f"s_mov_b64 exec, {active}\n{top}:")
        for k, (nd, raw, clean, va, so, imm) in enumerate(loads):
            sk = self.lab("gs")
            dst = f"v{raw}" if nd == 1 else f"v[{raw}:{raw+nd-1}]"
            suf = "" if nd == 1 else f"x{nd}"
            if len(loads) > 1:
                e(f"s_cmp_eq_u64 s[{64+2*k}:{65+2*k}], 0\ns_cbranch_scc1 {sk}")
            e(f"buffer_load_dword{suf} {dst}, v{va}, s[32:35], {so} offen offset:{imm} sc1")
            e(f"{sk}:")
        e("s_waitcnt vmcnt(0)")
        for k, (nd, raw, clean, va, so, imm) in enumerate(loads):
            for j in range(nd):
                e(f"v_xor_b32 v{clean+j}, v{raw+j}, v{vtag}")
            if nd == 1:
                chk = clean
            elif nd == 2:
                chk = 1
                e(f"v_or_b32 v1, v{clean}, v{clean+1}")
            else:
                chk = 1
                e(f"v_or3_b32 v1, v{clean}, v{clean+1}, v{clean+2}\nv_or_b32 v1, v1, v{clean+3}")
            if isinstance(sel, int):
                e(f"v_and_b32 v1, {sel}, v{chk}\nv_cmp_ne_u32 s[{64+2*k}:{65+2*k}], 0, v1")
            else:
                e(f"v_cmp_ne_u32_sdwa s[{64+2*k}:{65+2*k}], v{chk}, v2 src0_sel:{sel} src1_sel:DWORD")
        if pairs:
            for k in range(0, len(loads), 2):
                e(f"s_or_b64 s[{64+2*k}:{65+2*k}], s[{64+2*k}:{65+2*k}], s[{66+2*k}:{67+2*k}]")
                e(f"s_mov_b64 s[{66+2*k}:{67+2*k}], s[{64+2*k}:{65+2*k}]")
        e("s_or_b64 s[62:63], s[64:65], s[64:65]")
        for k in range(1, len(loads)):
            e(f"s_or_b64 s[62:63], s[62:63], s[{64+2*k}:{65+2*k}]")
        e(f"s_cbranch_scc0 {done}")
        self.budget()
        if sleep:
            e(f"s_sleep {sleep}")
        e(f"s_branch {top}\n{done}:\ns_mov_b64 exec, -1")

    def issue(self, ld):
        nd, raw, va, so, imm = ld
        dst = f"v{raw}" if nd == 1 else f"v[{raw}:{raw+nd-1}]"
        suf = "" if nd == 1 else f"x{nd}"
        self.e(f"buffer_load_dword{suf} {dst}, v{va}, s[32:35], {so} offen offset:{imm} sc1")

    def gather8(self, loads, vtag, active, skip):
        e = self.e
        top, chk = self.lab("gat"), self.lab("gchk")
        cur = [None]

        def lanes(m):
            if cur[0] != m:
                e(f"s_mov_b64 exec, {m}")
                cur[0] = m
        if skip:
            for ld, m in zip(loads, active):
                lanes(m)
                self.issue(ld)
            e(f"s_branch {chk}")
        e(f"{top}:")
        self.budget()
        cur[0] = None if len(set(active)) > 1 or active[0] != "-1" else "-1"
        for k, (ld, m) in enumerate(zip(loads, active)):
            if skip:
                e(f"s_cmp_lg_u64 s[{64+2*k}:{65+2*k}], 0\ns_cselect_b64 exec, {m}, 0")
            else:
                lanes(m)
            self.issue(ld)
        e(f"{chk}:")
        if skip:
            cur[0] = None
        order = list(range(len(loads)))[::-1]
        lanes(active[order[0]])
        e("s_waitcnt vmcnt(0)")
        for k in order:
            lanes(active[k])
            e(f"v_cmp_ne_u32_sdwa s[{64+2*k}:{65+2*k}], v{loads[k][1]}, v{vtag} src0_sel:BYTE_0 src1_sel:DWORD")
        e("s_or_b64 s[62:63], s[64:65], s[66:67]")
        for k in range(2, len(loads)):
            e(f"s_or_b64 s[62:63], s[62:63], s[{64+2*k}:{65+2*k}]")
        e(f"s_cbranch_scc1 {top}")
        lanes("-1")
        for ld in loads:
            e(f"v_and_b32 v{ld[1]}, 0xffffff00, v{ld[1]}")

    def lds_wait(self, vaddr, off, sreg, need, sleep):
        e = self.e
        top, go = self.lab("lw"), self.lab("lgo")
        e(f"s_cmp_ge_u32 s{sreg}, {need}\ns_cbranch_scc1 {go}\n{top}:")
        e(f"ds_read_b32 v1, v{vaddr} offset:{off}\ns_waitcnt lgkmcnt(0)\nv_readfirstlane_b32 s{sreg}, v1")
        e(f"s_cmp_ge_u32 s{sreg}, {need}\ns_cbranch_scc1 {go}")
        self.budget()
        if sleep:
            e(f"s_sleep {sleep}")
        e(f"s_branch {top}\n{go}:")

    def dma_step(self, vaddr, srd, lds_sreg_or_imm, pol):
        self.e(f"s_mov_b32 m0, {lds_sreg_or_imm}\ns_nop 0")
        self.e(f"buffer_load_dwordx4 v{vaddr}, s[{srd}:{srd+3}], s58 offen {pol} lds")

    def tr_reads(self, dst, vtr, off):
        self.e(f"ds_read_b64_tr_b16 v[{dst}:{dst+1}], v{vtr} offset:{off}")
        self.e(f"ds_read_b64_tr_b16 v[{dst+2}:{dst+3}], v{vtr} offset:{off+512}")

    def loader(self):
        e, D, lev = self.e, self.D, self.lev
        ng = self.ini or D // 4
        AT = self.atpos
        T = self.t

        def addr(m):
            return sum(1 << T[b] for b in range(11) if m >> b & 1)

        def unit(n):
            return addr(4 * n)

        def scatter(dst, lo, hi):
            src, b = 58, lo
            while b < hi:
                n = 1
                while b + n < hi and T[b + n + 2] == T[b + 2] + n:
                    n += 1
                e(f"s_bfe_u32 s59, s40, {b | n << 16}\ns_lshl_b32 s59, s59, {T[b+2]}\ns_xor_b32 s{dst}, s{src}, s59")
                src, b = dst, b + n

        def load(k):
            e(f"buffer_load_dwordx4 v{10+k}, s[32:35], s41 offen offset:{k*1024} {self.kvpol} lds")

        def loads():
            for k in range(4):
                load(k)

        def limit():
            e(f"v_min3_u32 v5, v6, v7, v8\ns_nop 0\nv_readfirstlane_b32 s44, v5\ns_lshl_b32 s44, s44, 1\ns_add_u32 s44, s44, {2*NSLOT}")

        e('; ================ loader ================')
        e("L_loader:\ns_setprio 3")
        e(f"v_lshlrev_b32 v1, 4, v0\nv_lshlrev_b32 v2, 2, v0\nv_add_u32 v2, {FULL}, v2\nv_mov_b32 v3, {FREE}")
        e(f"v_mov_b32 v6, 0\nv_mov_b32 v7, 0\nv_mov_b32 v8, 0\nv_mov_b32 v4, {ng - D//4 + 1}")
        for k in range(4):
            e(f"v_add_u32 v{10+k}, {addr(k) - 1024*k}, v1")
        e("s_lshr_b32 s30, s100, 3\ns_lshl_b32 s30, s30, 24\ns_mov_b32 s58, 0")
        for b in range(8):
            m = (1 << self.jb[b] if b < 3 else 0) | (sum(1 << q for q in self.xk[b]) if b < len(self.xk) else 0)
            if m:
                e(f"s_bitcmp1_b32 s100, {b}\ns_cselect_b32 s59, {m}, 0\ns_xor_b32 s58, s58, s59")
        e("s_mov_b32 s31, 0x200000\ns_waitcnt lgkmcnt(0)")
        self.stamp(0)
        e(f"s_add_u32 s32, s6, s30\ns_addc_u32 s33, s7, 0\ns_mov_b32 s34, 0x1000000\ns_mov_b32 s35, 0x20000")
        for n in range(ng):
            if n == self.eb:
                e("s_barrier")
            e(f"s_mov_b32 m0, {n*4096}\ns_xor_b32 s41, s58, {unit(n)}")
            loads()
        e(f"s_mov_b32 s40, {ng}\ns_mov_b32 s57, {ng*4096}\ns_mov_b32 s44, {2*NSLOT}\ns_mov_b32 s45, {lev.index(D) if self.lev0 is None else self.lev0}")
        e(f"s_lshr_b32 s49, s2, 3\ns_lshl_b32 s48, s49, 5\ns_or_b32 s49, s49, s48\ns_bfe_u32 s49, s49, {0x50000 + self.sh0}")
        e(f"s_mov_b32 s50, {WS_CTR}\ns_and_b32 s48, s49, {self.nsh-1}\ns_mul_i32 s48, s48, {self.cst}\ns_add_u32 s48, s48, s50")
        e("s_mov_b32 s52, 0\ns_mov_b32 s62, 0")
        if self.boost:
            self.mlp_ids()
            e(f"s_cselect_b32 s56, 0, {self.boost[0]}")
        if self.mix:
            e("s_lshr_b32 s53, s2, 1" if self.mix == 3 else "s_mov_b32 s53, s2")
        if self.eb >= ng:
            e("s_barrier")
        e("L_ld0:\ns_cmp_lt_u32 s40, s44\ns_cbranch_scc0 L_lds0\nL_ldb0:")
        scatter(41, 0, (self.cstart - 1).bit_length())
        e(f"s_and_b32 m0, s57, {NSLOT*8192-1}\ns_waitcnt vmcnt({D-4})")
        loads()
        e("ds_write_b32 v2, v4\ns_waitcnt lgkmcnt(1)\nv_min3_u32 v5, v6, v7, v8\nds_read_b96 v[6:8], v3")
        e(f"v_readfirstlane_b32 s44, v5\nv_add_u32 v4, 1, v4\ns_add_u32 s40, s40, 1\ns_add_u32 s57, s57, 4096")
        e(f"s_lshl_b32 s44, s44, 1\ns_add_u32 s44, s44, {2*NSLOT}")
        for k, n in enumerate(self.prog or []):
            e(f"s_cmp_eq_u32 s40, {n}\ns_cbranch_scc1 L_pq{k}\nL_pr{k}:")
        e(f"s_cmp_lt_u32 s40, {self.cstart}\ns_cbranch_scc1 L_ld0")
        depths = sorted(set(lev))
        e("L_lap:\ns_sub_u32 s51, s44, s40")
        scatter(42, 5, 9)
        for d in depths[:0:-1]:
            e(f"s_cmp_ge_u32 s45, {lev.index(d)}\ns_cbranch_scc1 L_lap{d}")
        stubs = []
        fing = self.fing or [self.fin[0]] * len(depths)
        for dd in depths:
            d = dd % 100
            G = self.G
            pub = [m for m in range(0, 128, G) if (m - d + G) % 8 < G]
            e(f"L_lap{dd}:\ns_sub_u32 s43, s40, {-2*((pub[0] - d + G)//8)}\nv_mov_b32 v4, s43")
            for g in range(32):
                if self.fin and g == fing[depths.index(dd)]:
                    e(f"s_cmp_eq_u32 s40, 992\ns_cbranch_scc1 L_final{g}")
                if g % 4 == 0:
                    e(f"s_cmp_lt_u32 s51, {g+4}\ns_cbranch_scc1 L_lx{dd}_{g}\nL_lr{dd}_{g}:")
                    stubs.append((dd, g))
                e(f"s_mov_b32 m0, {g*4096}\ns_xor_b32 s41, s42, {unit(g)}")
                wrote = False
                for k in range(4):
                    if k % G == 0:
                        e(f"s_waitcnt vmcnt({d-G})")
                    load(k)
                    if k % G == G - 1 and 4 * g + k - G + 1 in pub:
                        e("ds_write_b32 v2, v4\nv_add_u32 v4, 2, v4")
                        wrote = True
                fresh = g < AT or g >= 30
                if g % 8 == 6 and fresh:
                    e("ds_read_b96 v[6:8], v3")
                if g % 8 == 7 and fresh:
                    e(f"s_waitcnt lgkmcnt({1 if wrote and g != 31 else 0})")
                    limit()
                    if g != 31:
                        e("s_sub_u32 s51, s44, s40")
                if g == AT - 1:
                    e("s_mov_b32 s47, 1\ns_atomic_add s47, s[28:29], s48 glc")
            if dd != depths[-1]:
                e("s_branch L_lapend")
        nq = 4 if self.esc else len(lev) - (self.boost[2] if self.boost else 0)
        sh = (256 // self.nsh // nq).bit_length() - 1
        e("L_lapend:")
        if self.pi:
            kp, ki, lk, cen = self.pi
            e(f"s_sub_i32 s47, s47, {128//self.nsh}\ns_ashr_i32 s46, s52, {lk}\ns_sub_i32 s52, s52, s46\ns_add_i32 s52, s52, s47")
            e(f"s_mul_i32 s45, s47, {kp}\ns_mul_i32 s46, s52, {ki}\ns_add_i32 s45, s45, s46\ns_add_i32 s45, s45, {cen}")
            e("s_ashr_i32 s45, s45, 8\ns_max_i32 s45, s45, 0")
        else:
            e(f"s_lshr_b32 s45, s47, {sh}")
        if self.esc:
            lo, uth, ush, dth, dn = self.esc
            e(f"s_add_u32 s52, s52, 1\ns_cmp_ge_u32 s47, {uth}\ns_cselect_b32 s52, s52, 0\ns_lshr_b32 s46, s52, {ush}\ns_add_u32 s45, s45, s46")
            if lo:
                e(f"s_add_u32 s62, s62, 1\ns_cmp_lt_u32 s47, {dth}\ns_cselect_b32 s62, s62, 0")
                e(f"s_cmp_lt_u32 s62, {dn}\ns_addc_u32 s45, s45, 0")
        if self.boost:
            e(f"s_cmp_lt_u32 s40, s56\ns_cselect_b32 s46, {self.boost[1]}, 0\ns_add_u32 s45, s45, s46")
        if self.mix:
            e(f"s_sub_u32 s46, s40, {self.mixat}\ns_cmp_lt_u32 s46, {self.mixto-self.mixat}\ns_cselect_b32 s46, s53, 0")
            e(f"s_add_u32 s49, s49, s46\ns_add_u32 s50, s50, {self.cst*self.nsh}")
            if self.mix == 2:
                e("s_sub_u32 s53, 0, s53")
            e(f"s_and_b32 s48, s49, {self.nsh-1}\ns_mul_i32 s48, s48, {self.cst}\ns_add_u32 s48, s48, s50\ns_add_u32 s40, s40, 32")
        elif self.rot:
            e(f"s_lshl_b32 s48, s49, 5\ns_or_b32 s49, s49, s48\ns_bfe_u32 s49, s49, {0x50000 + self.rot}\ns_add_u32 s50, s50, {self.cst*self.nsh}")
            e(f"s_and_b32 s48, s49, {self.nsh-1}\ns_mul_i32 s48, s48, {self.cst}\ns_add_u32 s48, s48, s50\ns_add_u32 s40, s40, 32")
        else:
            e(f"s_add_u32 s48, s48, {self.cst*self.nsh}\ns_add_u32 s40, s40, 32")
        if self.stamps:
            e("s_add_u32 s96, s96, s45")
        for k, n in enumerate(self.prog or []):
            e(f"s_cmp_lg_u32 s40, {n}\ns_cbranch_scc1 L_pg{k}")
            self.stamp(3 + k)
            e(f"L_pg{k}:")
        e("s_and_b32 s46, s40, 511\ns_cbranch_scc1 L_lap")
        last = max(lev)
        if self.fin:
            g0, last = min(fing), self.fin[1]
            e("s_branch L_tov")
            self.L.append("@SPOT")
            for g in sorted(set(fing), reverse=True):
                e(f"L_final{g}:\nv_subrev_u32 v4, 2, v4")
                if g != g0:
                    e(f"s_branch L_fg{g}")
            for g in range(g0, 32):
                e(f"L_fg{g}:")
                if g % 4 == 0:
                    e(f"s_cmp_lt_u32 s51, {g+4}\ns_cbranch_scc1 L_lxf_{g}\nL_lrf_{g}:")
                    stubs.append(("f", g))
                e(f"s_mov_b32 m0, {g*4096}\ns_xor_b32 s41, s42, {unit(g)}\ns_waitcnt vmcnt({last-4})")
                loads()
                if (g - last // 4 + 1) % 2 == 0:
                    e(f"v_max_u32 v4, {992 + g - last//4 + 1}, v4\nds_write_b32 v2, v4")
        else:
            e("s_cmp_lt_u32 s40, 1024\ns_cbranch_scc1 L_tov")
            e("v_subrev_u32 v4, 2, v4")
        for k in range((last + 3) // 4, -1, -1):
            if k % 2 == 0 and 4 * k < 64:
                e(f"v_max_u32 v4, {1024-k}, v4\ns_waitcnt vmcnt({4*k})\nds_write_b32 v2, v4")
        if self.fin:
            e("s_waitcnt lgkmcnt(0)")
        self.stamp(2)
        e("s_branch L_gtail")
        self.L.append("@SPOT")
        e("L_tov:\ns_add_u32 s32, s8, s30\ns_addc_u32 s33, s9, 0")
        self.stamp(1)
        e("s_branch L_lap")
        e("L_lds0:\ns_sleep 1\nds_read_b96 v[6:8], v3\ns_waitcnt lgkmcnt(0)")
        limit()
        self.budget()
        if self.stamps:
            e("s_add_u32 s98, s98, 1")
        e("s_cmp_lt_u32 s40, s44\ns_cbranch_scc1 L_ldb0\ns_branch L_lds0")
        for k, n in enumerate(self.prog or []):
            e(f"L_pq{k}:")
            self.stamp(3 + k)
            e(f"s_branch L_pr{k}")
        for d, g in stubs:
            e(f"L_lx{d}_{g}:\ns_mov_b32 s46, {g+4}\ns_call_b64 s[60:61], L_room\ns_branch L_lr{d}_{g}")
        e("L_room:\nds_read_b96 v[6:8], v3\ns_waitcnt lgkmcnt(0)")
        limit()
        self.budget()
        if self.stamps:
            e("s_add_u32 s98, s98, 1")
        e("s_sub_u32 s51, s44, s40\ns_cmp_lt_u32 s51, s46\ns_cbranch_scc1 L_room\ns_setpc_b64 s[60:61]")

    def code_prefetch(self):
        e = self.e
        K = NAME + "_kernel"
        e("s_cmp_lg_u32 s3, 2\ns_cbranch_scc1 L_nol2\ns_getpc_b64 s[60:61]\nL_pc:")
        e(f"s_sub_u32 s60, s60, L_pc-{K}\ns_subb_u32 s61, s61, 0\ns_lshr_b32 s62, s2, 3\ns_lshl_b32 s62, s62, 10")
        e(f"v_lshl_add_u32 v10, v0, 4, s62\nv_min_u32 v10, L_last-{K}-16, v10\nv_and_b32 v10, -16, v10")
        e("v_mov_b32 v11, s61\nv_add_co_u32 v10, vcc, s60, v10\ns_nop 1\nv_addc_co_u32 v11, vcc, 0, v11, vcc")
        e("global_load_dwordx4 v[16:19], v[10:11], off\nL_nol2:")

    def consumer(self):
        e = self.e
        NP = self.prepull
        BUF = [64 + 32 * u for u in range(NP)]
        QB, DQ, O0, O1, AP, MK, P = 32, 16, 20, 24, 32, 28, 12
        vK, vV, vA, vM, vS, vSL = 3, 4, 5, 6, 7, 8
        vF, vT, vOA = 48, 49, 50

        def pull(buf, vbase, sleep=1):
            e("s_lshl_b32 s43, s40, 1\ns_add_u32 s43, s43, 2")
            self.lds_wait(vM, FULL - MISC, 42, "s43", sleep)
            e(f"s_and_b32 s44, s40, {NSLOT-1}\ns_lshl_b32 s44, s44, 13\nv_add_u32 v{vA}, s44, v{vbase}")
            for k in range(8):
                e(f"ds_read_b128 v[{buf+4*k}:{buf+4*k+3}], v{vA} offset:{(k>>1)*2048+(k&1)*256}")

        def release():
            e(f"v_mov_b32 v1, s41\nds_write_b32 v9, v1")

        def qk(buf, counted):
            for k in range(8):
                if counted:
                    e(f"s_waitcnt lgkmcnt({7-k})")
                c = "0" if k == 0 else f"v[{DQ}:{DQ+3}]"
                e(f"v_mfma_f32_16x16x32_bf16 v[{DQ}:{DQ+3}], v[{buf+4*k}:{buf+4*k+3}], v[{QB+4*k}:{QB+4*k+3}], {c}")
            if counted:
                release()
                e("s_nop 5")
            else:
                e("s_nop 7")
            e(f"v_mov_b32_dpp v10, v{DQ} quad_perm:[0,0,0,0] {DPPF}")
            e(f"v_mov_b32_dpp v11, v{DQ+2} quad_perm:[2,2,2,2] {DPPF}\ns_nop 0")
            e(f"v_add_f32_dpp v10, v{DQ+1}, v10 quad_perm:[1,1,1,1] {DPPF}")
            e(f"v_add_f32_dpp v11, v{DQ+3}, v11 quad_perm:[3,3,3,3] {DPPF}")
            e("v_add_f32 v10, v10, v11")
            self.rbf1(10)

        e('; ================ consumers ================')
        e("L_consumer:\ns_sub_u32 s30, s3, 1\ns_mov_b32 s31, 0x200000\ns_mov_b32 s42, 0\ns_waitcnt lgkmcnt(0)\ns_barrier")
        if self.l2warm == 1:
            self.code_prefetch()
        e(f"v_mov_b32 v{vM}, {MISC}")
        e("v_lshrrev_b32 v13, 4, v0\nv_and_b32 v14, 15, v0\nv_bfe_u32 v15, v0, 2, 2\nv_and_b32 v2, 3, v0")
        e(f"v_lshlrev_b32 v{vK}, 6, v13\nv_lshl_add_u32 v{vK}, v2, 4, v{vK}\nv_mov_b32 v12, v{vK}")
        e(f"v_lshl_add_u32 v{vK}, v15, 9, v{vK}")
        e(f"v_lshlrev_b32 v{vV}, 9, v13\nv_lshl_add_u32 v{vV}, v14, 4, v{vV}")
        e(f"s_mul_i32 s45, s30, {SC_STRIDE}\ns_add_u32 s45, s45, {SC}")
        e(f"v_and_b32 v{vS}, 60, v0\nv_add_u32 v{vS}, s45, v{vS}")
        e(f"v_lshlrev_b32 v{vSL}, 4, v0\nv_add_u32 v{vSL}, s45, v{vSL}")
        e(f"s_lshl_b32 s46, s30, 2\ns_add_u32 s46, s46, {FREE}\nv_mov_b32 v9, s46")
        e("v_and_b32 v1, 1, v0\nv_mov_b32 v10, 0xffff\nv_lshlrev_b32 v1, 4, v1\nv_lshlrev_b32 v10, v1, v10")
        e("v_lshrrev_b32 v1, 1, v14")
        for r in range(4):
            e(f"v_cmp_eq_u32 vcc, {r}, v1\ns_nop 1\nv_cndmask_b32 v{MK+r}, 0, v10, vcc")
        e("s_mov_b32 s40, s30")
        for u in range(NP):
            pull(BUF[u], vK)
            e("s_add_u32 s41, s40, 3\ns_waitcnt lgkmcnt(0)")
            release()
            e("s_mov_b32 s40, s41")
        e("s_mov_b32 s47, 0")
        self.stamp(0)
        self.lds_wait(vM, QRDY - MISC, 47, 1, 1)
        self.stamp(1)
        e(f"v_add_u32 v12, {QV}, v12")
        e(f"ds_read_b128 v[{O0}:{O0+3}], v12\nds_read_b128 v[{O0+4}:{O0+7}], v12 offset:256\ns_waitcnt vmcnt(0)")
        for r in range(4):
            e(f"v_mov_b32 v{DQ+r}, 0xff800000")
        e(f"ds_write_b128 v{vSL}, v[{DQ}:{DQ+3}] offset:5120\ns_waitcnt lgkmcnt(0)")
        for t in range(4):
            e(f"v_cmp_eq_u32 vcc, {t}, v15\ns_nop 1")
            for k in range(8):
                e(f"v_cndmask_b32 v{QB+8*t+k}, 0, v{O0+k}, vcc")
        for r in range(8):
            e(f"v_mov_b32 v{O0+r}, 0")
        qk(BUF[0], False)
        e(f"ds_write_b32 v{vS}, v10")
        e(f"v_add_u32 v2, {64*NP}, v{vS}\ns_add_u32 s48, s30, 256")
        e("L_kloop:")
        e("s_add_u32 s41, s40, 3\ns_cmp_lt_u32 s41, 256\ns_cselect_b32 s41, s41, s48")
        pull(BUF[0], vK)
        qk(BUF[0], True)
        e("ds_write_b32 v2, v10\nv_add_u32 v2, 64, v2")
        e("s_mov_b32 s40, s41\ns_cmp_lt_u32 s40, 256\ns_cbranch_scc1 L_kloop")
        for u in range(1, NP):
            qk(BUF[u], False)
            e(f"ds_write_b32 v{vS}, v10 offset:{64*u}")
        self.stamp(2)
        S = BUF[0]
        for k in range(6):
            e(f"ds_read_b128 v[{S+4*k}:{S+4*k+3}], v{vSL} offset:{1024*k}")
        e("s_waitcnt lgkmcnt(0)")
        e(f"v_max_f32 v10, v{S}, v{S+1}")
        for k in range(2, 24, 2):
            e(f"v_max3_f32 v10, v10, v{S+k}, v{S+k+1}")
        self.wave_reduce("v_max_f32", [10])
        e(f"v_readlane_b32 s50, v10, 63\ns_mov_b32 s51, {hex(C2)}\ns_nop 0")
        for k in range(24):
            e(f"v_subrev_f32 v{S+k}, s50, v{S+k}")
        for k in range(24):
            e(f"v_mul_f32 v{S+k}, s51, v{S+k}")
        for k in range(24):
            e(f"v_exp_f32 v{S+k}, v{S+k}")
        e(f"v_add_f32 v10, v{S}, v{S+1}")
        for k in range(2, 24):
            e(f"v_add_f32 v10, v10, v{S+k}")
        for k in range(24):
            e(f"v_cvt_pk_bf16_f32 v{S+k}, v{S+k}, v{S+k}")
        for k in range(6):
            e(f"ds_write_b128 v{vSL}, v[{S+4*k}:{S+4*k+3}] offset:{1024*k}")
        self.wave_reduce("v_add_f32", [10])
        e(f"v_readlane_b32 s52, v10, 63\nv_mov_b32 v{DQ}, s50\nv_mov_b32 v{DQ+2}, 1\nv_mov_b32 v{DQ+3}, 1")
        e(f"v_mov_b32 v{DQ+1}, s52\ns_lshl_b32 s46, s30, 4\ns_add_u32 s46, s46, {ML}\nv_mov_b32 v1, s46")
        e(f"ds_write_b128 v1, v[{DQ}:{DQ+3}]\nv_mov_b32 v2, v{vS}\ns_mov_b32 s49, 460")
        self.srd(32, 28, WS_SIZE)
        e(f"s_mov_b32 s53, 0xffffff00\ns_lshl_b32 s54, s100, 10\ns_add_u32 s54, s54, {WS_OP}")
        e(f"v_lshlrev_b32 v{vOA}, 4, v0")
        self.stamp(3)
        T = BUF[1]

        def partials():
            e(f"ds_read_b64 v[10:11], v{vM} offset:{PF-MISC}")
            e(f"ds_read_b128 v[{T}:{T+3}], v{vSL} offset:{SC_STRIDE}\nds_read_b128 v[{T+4}:{T+7}], v{vSL} offset:{2*SC_STRIDE}")

        def pv(last):
            e(f"s_add_u32 s41, s40, 3\nds_read_b32 v{P}, v2\nv_add_u32 v2, 64, v2\ns_waitcnt lgkmcnt(0)")
            for t in range(4):
                for r in range(4):
                    e(f"v_and_b32_dpp v{AP+4*t+r}, v{P}, v{MK+r} row_newbcast:{4*t} {DPPF}")
            pull(BUF[0], vV, self.csleep if last else 1)
            if last:
                partials()
            for k in range(8):
                o = O0 if k % 2 == 0 else O1
                a = AP + 4 * (k >> 1)
                e(f"s_waitcnt lgkmcnt({7-k+3*last})")
                e(f"v_mfma_f32_16x16x32_bf16 v[{o}:{o+3}], v[{a}:{a+3}], v[{BUF[0]+4*k}:{BUF[0]+4*k+3}], v[{o}:{o+3}]")

        e('; P*V')
        e("L_vloop:")
        pv(False)
        release()
        e("s_mov_b32 s40, s41\ns_cmp_lt_u32 s40, s49\ns_cbranch_scc1 L_vloop")
        e("s_cmp_lt_u32 s40, 511\ns_cbranch_scc1 L_vmid")
        e("s_cmp_lg_u32 s30, 0\ns_cbranch_scc1 L_cpart")
        pv(True)
        e("L_csum:\ns_waitcnt lgkmcnt(0)\nv_and_b32 v10, v10, v11")
        self.pk("add", T, T, T + 4)
        self.pk("add", T + 2, T + 2, T + 6)
        e("v_readfirstlane_b32 s46, v10\ns_cmp_eq_u32 s46, 0\ns_cbranch_scc1 L_cretry\ns_nop 0")
        for r in range(4):
            e(f"v_permlane32_swap_b32 v{O0+r}, v{O1+r}")
        for r in range(4):
            e(f"v_fmac_f32 v{T+r}, v{O0+r}, v{vF}")
        e(f"v_and_or_b32 v{T}, v{T}, s53, v{vT}")
        if self.fast:
            e("s_cmp_lg_u32 s47, 2\ns_cbranch_scc1 L_cfar")
            e(f"buffer_store_dwordx4 v[{T}:{T+3}], v{vOA}, s[32:35], s54 offen {self.npol}")
            self.stamp(4)
            e("s_branch L_gtail\nL_cfar:")
        e(f"buffer_store_dwordx4 v[{T}:{T+3}], v{vOA}, s[32:35], s54 offen sc1")
        self.stamp(4)
        e("s_branch L_gtail")
        e("L_cretry:")
        self.budget()
        partials()
        e("s_branch L_csum")
        self.L.append("@SPOT")
        e("L_cpart:")
        for r in range(4):
            e(f"v_permlane32_swap_b32 v{O0+r}, v{O1+r}")
        for r in range(4):
            e(f"v_mul_f32 v{O0+r}, v{O0+r}, v{vF}")
        e(f"v_mov_b32 v1, 1\nds_write_b128 v{vSL}, v[{O0}:{O0+3}]\nds_write_b32 v9, v1 offset:{PF-4-FREE}\ns_branch L_gtail")
        e("L_vmid:\ns_mov_b32 s47, 0")
        self.lds_wait(vM, FS + 12 - MISC, 47, 1, 2)
        e(f"ds_read_b32 v{vF}, v9 offset:{FS-FREE}\nds_read_b32 v{vT}, v{vM} offset:{TAG-MISC}")
        e(f"s_mov_b32 s49, 511\ns_waitcnt lgkmcnt(0)\nv_and_b32 v{vT}, 0xff, v{vT}")
        e("s_branch L_vloop")

    def unit_mfma_lds(self, B, A, vA, nsteps, D, off=0):
        for s in range(nsteps):
            self.e(f"ds_read_b128 v[{A+4*s}:{A+4*s+3}], v{vA} offset:{off+64*s}")
        for s in range(nsteps):
            self.e(f"s_waitcnt lgkmcnt({nsteps-1-s})")
            c = "0" if s == 0 else f"v[{D}:{D+3}]"
            self.e(f"v_mfma_f32_16x16x32_bf16 v[{D}:{D+3}], v[{A+4*s}:{A+4*s+3}], v[{B+4*s}:{B+4*s+3}], {c}")
        self.e("s_nop 7")

    def unit_mfma_dpp(self, B, src, A, D):
        def bc(s):
            for r in (0, 2):
                d = A + 4 * (s % 3) + r
                self.e(f"v_mov_b64_dpp v[{d}:{d+1}], v[{src+r}:{src+r+1}] row_newbcast:{s} {DPPF}")
        self.e("s_nop 1")
        bc(0)
        for s in range(14):
            if s < 13:
                bc(s + 1)
            else:
                self.e("s_nop 0")
            a = A + 4 * (s % 3)
            c = "0" if s == 0 else f"v[{D}:{D+3}]"
            self.e(f"v_mfma_f32_16x16x32_bf16 v[{D}:{D+3}], v[{a}:{a+3}], v[{B+4*s}:{B+4*s+3}], {c}")
        self.e("s_nop 7")

    def soft_barrier(self, vM):
        self.e(f"s_add_u32 s45, s45, 4\nv_mov_b32 v1, 1\ns_mov_b64 exec, 1\n"
               f"ds_add_u32 v{vM}, v1 offset:{BAR-MISC}\ns_mov_b64 exec, -1")
        self.lds_wait(vM, BAR - MISC, 44, "s45", 2)

    def unit_load(self, dst, rounds, stride, advance, pol):
        e = self.e
        e(f"s_lshl_b32 s60, s30, 4\nv_add_u32 v9, s60, v6\nv_mul_u32_u24 v9, {stride}, v9\nv_add_u32 v9, v9, v7")
        e(f"v_add_u32 v14, {8*stride}, v9\ns_mov_b32 s40, {advance}")
        self.stage_pols.add(pol)
        for rd in range(rounds):
            e(f"s_call_b64 s[42:43], L_stage{pol}")
            self.tr_reads(dst + 8 * rd, 8, 0)
            self.tr_reads(dst + 8 * rd + 4, 8, 4096)

    def stage_subs(self, vM):
        e = self.e
        for pol in sorted(self.stage_pols):
            e('; one [64 x 64] weight block through the staging area')
            e(f"L_stage{pol}:\ns_waitcnt lgkmcnt(0)")
            self.soft_barrier(vM)
            self.dma_step(9, 36, "s57", pol)
            self.dma_step(14, 36, "s59", pol)
            e("s_add_u32 s58, s58, s40\ns_waitcnt vmcnt(0)")
            self.soft_barrier(vM)
            e("s_setpc_b64 s[42:43]")

    def sum_round(self, a, b, n, tmp):
        for k in range(n):
            self.e(f"v_add_f32 v{a+k}, v{a+k}, v{b+k}")
        if n == 1:
            self.rbf1(a)
        else:
            self.rbf_pairs(list(range(a, a + n)), tmp)

    def mlp_ids(self):
        e = self.e
        e("s_and_b32 s60, s100, 7")
        if not self.xl:
            e("s_bfe_u32 s54, s2, 0x10005\ns_bfe_u32 s55, s2, 0x20003\ns_lshl_b32 s61, s60, 2\ns_add_u32 s55, s55, s61")
            e("s_lshr_b32 s61, s2, 6\ns_cmp_eq_u32 s61, 1")
        elif self.xm:
            e("s_bfe_u32 s54, s2, 0x10002\ns_lshr_b32 s55, s2, 6\ns_mul_i32 s55, s55, 7\ns_add_u32 s55, s55, s60")
            e("s_and_b32 s61, s2, 3\ns_cmp_eq_u32 s61, 2")
        else:
            e("s_bfe_u32 s54, s2, 0x10006\ns_bfe_u32 s55, s2, 0x20001\ns_mul_i32 s55, s55, 7\ns_add_u32 s55, s55, s60")
            e("s_and_b32 s61, s2, 0x81\ns_cmp_eq_u32 s61, 0")
        e("s_cselect_b32 s60, s60, 7\ns_lshl_b32 s101, s54, 5\ns_add_u32 s101, s101, s55")
        e("s_cmp_eq_u32 s60, 7\ns_cselect_b32 s101, 64, s101")

    def service(self):
        e = self.e
        WO, W1, W2 = 32, 64, 120
        OCB, SB, GA, XP, GB, F = 176, 184, 192, 194, 196, 240
        RAW, AD, DD = 200, 232, 244
        vT8, vT16, vM, vT3 = 10, 11, 12, 252
        LM, HM = "s[50:51]", "s[52:53]"
        e("L_service:\ns_sub_u32 s30, s3, 4\ns_mov_b32 s31, 0x80000")
        e("s_and_b32 s48, s100, 7\ns_lshr_b32 s49, s100, 3")
        e("s_mov_b32 s50, 0x3fff3fff\ns_mov_b32 s51, 0x3fff3fff\ns_mov_b32 s52, 0x0fffffff\ns_mov_b32 s53, 0x0fffffff")
        e("v_mov_b32 v2, 0\nv_lshrrev_b32 v3, 4, v0\nv_and_b32 v4, 15, v0")
        e("v_lshlrev_b32 v5, 6, v4\nv_lshl_add_u32 v5, v3, 4, v5")
        e("v_lshrrev_b32 v6, 3, v0\nv_and_b32 v7, 7, v0\nv_lshlrev_b32 v7, 4, v7")
        e("v_lshlrev_b32 v8, 10, v3\nv_bfe_u32 v1, v0, 2, 2\nv_lshl_add_u32 v8, v1, 7, v8")
        e("v_and_b32 v1, 3, v0\nv_lshl_add_u32 v8, v1, 3, v8")
        e(f"v_mov_b32 v{vM}, {MISC}\ns_mov_b32 s47, 0\ns_waitcnt lgkmcnt(0)\ns_barrier")
        self.srd(32, 28, WS_SIZE)
        e("s_cmp_eq_u32 s30, 0\ns_cbranch_scc1 L_pro")
        self.lds_wait(vM, QRDY - MISC, 47, 1, 8)
        if self.vtouch:
            e("s_lshl_b32 s60, s100, 21\ns_add_u32 s36, s8, s60\ns_addc_u32 s37, s9, 0\ns_mov_b32 s38, 0x200000\ns_mov_b32 s39, 0x20000")
            e("s_cmp_lg_u32 s30, 1\ns_cbranch_scc1 L_notouch\nbuffer_load_dword v16, v2, s[36:39], 0 offen nt\nL_notouch:")
        e(f"ds_read_b32 v1, v{vM} offset:{TAG-MISC}\ns_waitcnt lgkmcnt(0)\nv_readfirstlane_b32 s56, v1")
        e(f"v_and_b32 v{vT8}, 0xff, v1\nv_and_b32 v{vT16}, 0xffff, v1\nv_and_b32 v{vT3}, 7, v1\ns_branch L_bg")

        PB, PA, PRAW, PCL, PN, PC, PD = 32, 144, 144, 176, 208, 224, 232
        e("L_pro:")
        self.stamp(0)
        e("s_load_dword s56, s[28:29], 0")
        e("s_cmp_ge_u32 s2, 128\ns_cselect_b32 s55, s100, s2" if self.qloc else "s_mov_b32 s55, s2")
        e("s_and_b32 s54, s55, 1\ns_bfe_u32 s55, s55, 0x60001")
        e("s_cmp_ge_u32 s2, 128")
        e("s_cselect_b32 s36, s4, s20\ns_cselect_b32 s37, s5, s21\ns_mov_b32 s38, 1792\ns_mov_b32 s39, 0x20000")
        e("s_cselect_b32 s40, s10, s22\ns_cselect_b32 s41, s11, s23\ns_mov_b32 s43, 0x20000")
        e(f"s_mov_b32 s46, 5376\ns_cselect_b32 s46, 8192, s46\ns_mul_i32 s42, s46, 448")
        e("s_cbranch_scc1 L_unit\ns_cmp_lt_u32 s2, 84\ns_cbranch_scc1 L_unit")
        e("s_waitcnt lgkmcnt(0)\ns_add_u32 s56, s56, 1")
        e(f"s_and_b32 s60, s56, 0xff\nv_mov_b32 v{vT8}, s60\ns_and_b32 s60, s56, 0xffff\nv_mov_b32 v{vT16}, s60\nv_and_b32 v{vT3}, 7, v{vT8}")
        e("s_branch L_getq")
        e("L_unit:")
        for k in range(8):
            e(f"v_mov_b32 v{PC+k}, 0")
        if self.lev:
            per = -(-((1024 - 64) // self.period * self.nsh) // 28)
            assert per <= 64 and per * 28 * self.cst <= WS_SIZE - WS_CTR
            e(f"s_cmp_ge_u32 s2, 28\ns_cbranch_scc1 L_noz\ns_mul_i32 s58, s2, {per*self.cst}\ns_add_u32 s58, s58, {WS_CTR}")
            for k in range(0, per, 16):
                e(f"v_lshrrev_b32 v1, 2, v0\nv_add_u32 v1, {k}, v1\nv_and_b32 v9, 3, v0\nv_lshlrev_b32 v9, 4, v9")
                e(f"v_mul_u32_u24 v13, {self.cst}, v1\nv_add_u32 v9, v9, v13")
                e(f"v_cmp_gt_u32 vcc, {per}, v1\ns_and_saveexec_b64 s[62:63], vcc")
                if self.ctouch:
                    e("buffer_load_dword v16, v9, s[32:35], s58 offen")
                e(f"buffer_store_dwordx4 v[{PC}:{PC+3}], v9, s[32:35], s58 offen sc1\ns_mov_b64 exec, -1")
            e("L_noz:")
        e("v_lshrrev_b32 v1, 5, v0\nv_and_b32 v15, 31, v0\nv_mul_u32_u24 v13, 896, v1\nv_lshl_add_u32 v13, v15, 4, v13")
        e("s_mul_i32 s58, s54, 448\ns_sub_u32 s59, 448, s58")
        e(f"s_mov_b64 exec, {HM}")
        e(f"buffer_load_dwordx4 v[{PC}:{PC+3}], v13, s[36:39], s58 offen")
        e(f"buffer_load_dwordx4 v[{PC+4}:{PC+7}], v13, s[36:39], s59 offen")
        e("s_mov_b64 exec, -1")
        e("v_mul_u32_u24 v9, s46, v6\nv_add_u32 v9, v9, v7")
        e("s_mul_i32 s58, s54, 224\ns_mul_i32 s58, s58, s46\ns_lshl_b32 s60, s55, 7\ns_add_u32 s58, s58, s60\ns_lshl_b32 s59, s46, 3")
        for n in range(28):
            self.dma_step(9, 40, PST + 1024 * n, self.wpol)
            e("s_add_u32 s58, s58, s59")
        e(f"v_mul_u32_u24 v9, {2688*4}, v1\nv_lshl_add_u32 v9, v15, 5, v9")
        e(f"v_mul_u32_u24 v13, 448, v1\nv_lshl_add_u32 v13, v15, 4, v13\nv_add_u32 v13, {AIM}, v13")
        e(f"v_bfe_u32 v1, v0, 2, 1\nv_mul_u32_u24 v14, 448, v1\nv_lshl_add_u32 v14, v3, 4, v14\nv_add_u32 v14, {AIM}, v14")
        e(f"v_add_u32 v15, {PST}, v8")
        e("s_waitcnt lgkmcnt(0)\ns_add_u32 s56, s56, 1")
        e(f"s_and_b32 s60, s56, 0xff\nv_mov_b32 v{vT8}, s60\ns_and_b32 s60, s56, 0xffff\nv_mov_b32 v{vT16}, s60\nv_and_b32 v{vT3}, 7, v{vT8}")
        e("s_waitcnt vmcnt(28)")
        X = list(range(PN, PN + 8))
        self.unpack(list(range(PC, PC + 8)), list(range(PN, PN + 16)))
        e("s_cmp_ge_u32 s2, 128\ns_cbranch_scc1 L_ln1")
        self.silu(X, list(range(PN + 8, PN + 16)))
        for k in range(4):
            e(f"v_cvt_pk_bf16_f32 v{PC+k}, v{X[2*k]}, v{X[2*k+1]}")
        e("s_branch L_frag\nL_ln1:")
        self.layernorm(X, list(range(16, 26)), extra=list(range(PN + 8, PN + 16)))
        e("L_frag:\ns_waitcnt vmcnt(0)")
        self.stamp(1)
        for st in range(7):
            for u in range(4):
                self.tr_reads(PB + 16 * st + 4 * u, 15, 4096 * st + 32 * u)
        self.stamp(2)
        e("s_cmp_lt_u32 s2, 128\ns_cbranch_scc1 L_mm")
        e(f"s_mul_i32 s58, s54, 896\ns_add_u32 s58, s58, {WS_MOD}\ns_add_u32 s59, s58, {2*2688*4}")
        loads = []
        for p in range(2):
            for m in range(2):
                for hf in range(2):
                    k = (p * 2 + m) * 2 + hf
                    loads.append((4, PRAW + 4 * k, PCL + 4 * k, 9, f"s{58+p}", m * 448 * 4 + hf * 16))
        if self.mat:
            self.lds_wait(vM, FULL - MISC, 47, self.mat, 2)
        self.gather(loads, vT3, 7, HM, pairs=True, sleep=self.msleep)
        self.stamp(3)
        self.sum_round(PCL, PCL + 16, 16, list(range(16, 24)))
        CA = list(range(PCL + 8, PCL + 16))
        for r in CA:
            e(f"v_add_f32 v{r}, 1.0, v{r}")
        self.rbf_pairs(CA, list(range(16, 20)))
        self.modulate(X, CA, list(range(PCL, PCL + 8)), list(range(PC, PC + 4)), list(range(16, 20)))
        e("L_mm:")
        e(f"s_mov_b64 exec, {HM}\nds_write_b128 v13, v[{PC}:{PC+3}]\ns_mov_b64 exec, -1\ns_waitcnt lgkmcnt(0)")
        for st in range(7):
            e(f"ds_read_b128 v[{PA+4*st}:{PA+4*st+3}], v14 offset:{64*st}")
        e("s_lshl_b32 s46, s46, 1\nv_and_b32 v1, 1, v3\nv_mul_u32_u24 v9, s46, v1\nv_lshrrev_b32 v1, 5, v0")
        e("v_lshl_add_u32 v9, v1, 6, v9\nv_lshl_add_u32 v9, v4, 2, v9")
        e(f"s_mul_i32 s58, s54, s46\ns_lshl_b32 s58, s58, 1\ns_lshl_b32 s60, s55, 8\ns_add_u32 s58, s58, s60")
        e(f"s_mov_b32 s60, {WS_MOD}\ns_cmp_ge_u32 s2, 128\ns_cselect_b32 s60, {WS_Q}, s60\ns_add_u32 s58, s58, s60")
        for st in range(7):
            e(f"s_waitcnt lgkmcnt({6-st})")
            for u in range(4):
                d, b = PD + 4 * u, PB + 16 * st + 4 * u
                c = "0" if st == 0 else f"v[{d}:{d+3}]"
                e(f"v_mfma_f32_16x16x32_bf16 v[{d}:{d+3}], v[{PA+4*st}:{PA+4*st+3}], v[{b}:{b+3}], {c}")
        e("s_nop 7")
        for v in range(2):
            e(f"v_mov_b32_dpp v{PD+8*v}, v{PD+8*v+4} quad_perm:[0,1,2,3] row_mask:0xc bank_mask:0xf")
        for v in range(2):
            e(f"v_and_or_b32 v{PD+8*v}, v{PD+8*v}, -8, v{vT3}")
            e(f"buffer_store_dword v{PD+8*v}, v9, s[32:35], s58 offen offset:{128*v} sc1")
        self.stamp(4)
        e("L_getq:")
        if self.qat:
            self.lds_wait(vM, FULL - MISC, 47, self.qat, 2)
        e(f"v_lshlrev_b32 v9, 4, v0\ns_lshl_b32 s58, s49, 10\ns_add_u32 s58, s58, {WS_Q}\ns_add_u32 s59, s58, 0x8000")
        self.gather([(4, PRAW, PCL, 9, "s58", 0), (4, PRAW + 4, PCL + 4, 9, "s59", 0)], vT3, 7, "-1",
                    sleep=self.qsleep)
        for k in range(4):
            e(f"v_add_f32 v{PCL+k}, v{PCL+k}, v{PCL+4+k}")
        e(f"v_cvt_pk_bf16_f32 v16, v{PCL}, v{PCL+1}\nv_cvt_pk_bf16_f32 v17, v{PCL+2}, v{PCL+3}")
        e(f"v_lshl_add_u32 v1, v0, 3, v{vM}\nds_write_b64 v1, v[16:17] offset:{QV-MISC}")
        e(f"v_mov_b32 v18, 1\nv_mov_b32 v19, s56\nds_write_b64 v{vM}, v[18:19] offset:{QRDY-MISC}")
        self.stamp(5)

        e("L_bg:")
        e(f"s_lshl_b32 s57, s30, 11\ns_add_u32 s57, s57, {STG}\ns_add_u32 s59, s57, 1024")
        e(f"s_lshl_b32 s60, s30, 5\ns_add_u32 s60, s60, {STG}\nv_add_u32 v8, s60, v8\ns_mov_b32 s44, 0\ns_mov_b32 s45, 0")
        self.mlp_ids()
        e("s_cmp_eq_u32 s48, 7\ns_cbranch_scc1 L_bgdone")
        if self.wdelay:
            e("s_mov_b32 s47, 0")
            self.lds_wait(vM, FULL - MISC, 47, self.wdelay, 4)
        self.srd(36, 12, 4096 * 896)
        e(f"s_and_b32 s58, s49, 15\ns_mul_i32 s58, s58, {256*896}\ns_lshl_b32 s60, s48, 7\ns_add_u32 s58, s58, s60")
        if self.bgst:
            self.stamp(1)
        self.unit_load(WO, 4, 896, 64 * 896, self.opol)
        if self.bgst:
            self.stamp(2)
        e("s_cmp_ge_u32 s101, 64\ns_cbranch_scc1 L_bgdone")
        if self.mdelay:
            e(f"s_mul_i32 s46, s54, {self.mdelay}\ns_mov_b32 s47, 0")
            self.lds_wait(vM, FULL - MISC, 47, "s46", 32)
        if self.mswap:
            e("s_cmp_lg_u32 s54, 0\ns_cbranch_scc1 L_w2\nL_w1:")
        self.srd(36, 16, 448 * 3584)
        e("s_lshl_b32 s58, s55, 7")
        self.unit_load(W1, 7, 3584, 64 * 3584, self.mpol)
        if self.bgst:
            self.stamp(3)
        if self.mswap:
            e("s_cmp_lg_u32 s54, 0\ns_cbranch_scc1 L_w12\nL_w2:")
        self.srd(36, 18, 1792 * 896)
        e(f"s_mul_i32 s58, s55, {64*896}")
        self.unit_load(W2, 7, 896, 128, self.mpol)
        if self.mswap:
            e("s_cmp_lg_u32 s54, 0\ns_cbranch_scc1 L_w1\nL_w12:")
        e("s_waitcnt lgkmcnt(0)")
        self.soft_barrier(vM)
        if self.bgst:
            self.stamp(4)
        e("v_and_b32 v1, 31, v0\nv_lshlrev_b32 v13, 2, v1\nv_lshrrev_b32 v1, 5, v0\nv_lshl_add_u32 v13, v1, 1, v13")
        e("s_mul_i32 s60, s30, 112\nv_add_u32 v13, s60, v13")
        self.srd(36, 4, 1792)
        e(f"v_lshlrev_b32 v14, 1, v13\ns_mul_i32 s58, s54, 896\nbuffer_load_dword v{XP}, v14, s[36:39], s58 offen")
        e(f"s_mul_i32 s58, s54, {2688*4}\ns_add_u32 s58, s58, {WS_MOD+896*4}\ns_add_u32 s59, s58, {2*2688*4}\nv_lshlrev_b32 v9, 2, v13")
        self.gather([(2, RAW, GA, 9, "s58", 0), (2, RAW + 2, 16, 9, "s59", 0)], vT3, 7, HM, sleep=8)
        self.sum_round(GA, 16, 2, [18])
        e(f"v_and_b32 v{XP+1}, 0xffff0000, v{XP}\nv_lshlrev_b32 v{XP}, 16, v{XP}")
        e("v_lshlrev_b32 v9, 1, v5")
        loads = []
        for p in range(2):
            for m, dst in enumerate((SB, OCB)):
                for hf in range(2):
                    k = (p * 2 + m) * 2 + hf
                    cl = dst + 4 * hf if p == 0 else AD + 8 * (1 - m) + 4 * hf
                    loads.append((4, RAW + 4 * k, cl, 9, f"s{58+p}", (m + 1) * 448 * 4 + hf * 16))
        self.gather(loads, vT3, 7, LM, sleep=8, pairs=True)
        self.sum_round(OCB, AD, 16, list(range(16, 24)))
        e(f"s_lshl_b32 s60, s55, 6\ns_add_u32 s58, s58, s60\ns_add_u32 s58, s58, {1344*4}\ns_add_u32 s59, s58, {2*2688*4}")
        e("v_lshlrev_b32 v9, 2, v4")
        self.gather([(1, RAW, GB, 9, "s58", 0), (1, RAW + 1, 16, 9, "s59", 0)], vT3, 7, "-1", sleep=8)
        self.sum_round(GB, 16, 1, None)
        for k in range(8):
            e(f"v_add_f32 v{OCB+k}, 1.0, v{OCB+k}")
        self.rbf_pairs(list(range(OCB, OCB + 8)), list(range(16, 20)))
        e(f"s_lshl_b32 s60, s30, 10\ns_add_u32 s60, s60, {GX}\nv_lshl_add_u32 v13, v0, 4, s60\nds_write_b128 v13, v[{GA}:{GA+3}]")
        e(f"v_lshlrev_b32 v13, 2, v0\nv_add_u32 v13, {GBL}, v13\nds_write_b32 v13, v{GB}\ns_waitcnt lgkmcnt(0)")
        self.soft_barrier(vM)
        e("L_bgdone:")
        if self.stamps:
            e("s_cmp_eq_u32 s30, 0\ns_cbranch_scc1 L_st0")
            self.stamp(0)
            e("L_st0:")
        if self.warm:
            e("s_cmp_lg_u32 s30, 1\ns_cbranch_scc1 L_warmed\ns_mov_b32 s60, 2\nL_warm:\ns_mov_b64 exec, 0\ns_branch L_pad0")
            e("L_padret:\ns_mov_b64 exec, -1\ns_sub_u32 s60, s60, 1\ns_cmp_lg_u32 s60, 0\ns_cbranch_scc1 L_warm\nL_warmed:")
        e("s_cmp_lg_u32 s30, 0\ns_cbranch_scc1 L_tail0")

        top, go = self.lab("ml"), self.lab("mlgo")
        e(f"{top}:")
        for i in range(3):
            e(f"ds_read_b128 v[{16+4*i}:{19+4*i}], v{vM} offset:{ML-MISC+16*i}")
        e("s_waitcnt lgkmcnt(0)\nv_min3_u32 v1, v18, v22, v26\ns_nop 0\nv_readfirstlane_b32 s60, v1")
        e(f"s_cmp_lg_u32 s60, 0\ns_cbranch_scc1 {go}")
        self.budget()
        e(f"s_sleep 32\ns_branch {top}\n{go}:")
        e(f"s_mov_b32 s61, {hex(C2)}\nv_max3_f32 v28, v16, v20, v24")
        for i in range(3):
            e(f"v_sub_f32 v{18+4*i}, v{16+4*i}, v28\nv_mul_f32 v{18+4*i}, s61, v{18+4*i}\nv_exp_f32 v{18+4*i}, v{18+4*i}")
        e("s_nop 0\nv_mul_f32 v29, v17, v18\nv_fmac_f32 v29, v21, v22\nv_fmac_f32 v29, v25, v26")
        e(f"v_or_b32 v{RAW}, v28, v{vT16}\nv_and_b32 v1, 0xffff0000, v29\nv_or_b32 v{RAW+1}, v1, v{vT16}")
        e(f"v_lshlrev_b32 v1, 16, v29\nv_or_b32 v{RAW+2}, v1, v{vT16}")
        e(f"s_getreg_b32 s46, hwreg(HW_REG_XCC_ID, 0, 4)\ns_lshl_b32 s46, s46, 16\nv_or_b32 v{RAW+3}, s46, v{vT16}")
        if self.xl:
            e("s_and_b32 s58, s2, 7\ns_lshr_b32 s59, s2, 3")
        else:
            e("s_lshr_b32 s58, s2, 5\ns_and_b32 s59, s2, 31")
        e(f"s_lshl_b32 s58, s58, 9\ns_add_u32 s58, s58, {WS_ML}\ns_lshl_b32 s60, s59, 4\nv_mov_b32 v1, s60")
        e(f"s_mov_b64 exec, 1\nbuffer_store_dwordx4 v[{RAW}:{RAW+3}], v1, s[32:35], s58 offen sc1\ns_mov_b64 exec, -1")
        e("s_mov_b32 s47, 0")
        self.lds_wait(vM, FULL - MISC, 47, 640, 32)
        e(f"s_and_b32 s59, s59, 24\nv_and_b32 v9, {31 if self.fast else 7}, v0\nv_xor_b32 v9, s59, v9\nv_lshlrev_b32 v9, 4, v9")
        self.gather([(4, RAW + 4, RAW + 8, 9, "s58", 0)], vT16, "WORD_0", "-1", sleep=16)
        m, l = RAW + 8, RAW + 9
        e(f"v_lshrrev_b32 v{l+1}, 16, v{l+1}\nv_or_b32 v{l}, v{l}, v{l+1}\nv_mov_b32 v28, v{m}")
        oct_steps = ["quad_perm:[1,0,3,2]", "quad_perm:[2,3,0,1]", "row_half_mirror"]
        for st in oct_steps:
            e(f"s_nop 1\nv_max_f32_dpp v28, v28, v28 {st} {DPPF}")
        e(f"v_sub_f32 v{m}, v{m}, v28\nv_mul_f32 v{m}, s61, v{m}\nv_exp_f32 v{m}, v{m}\ns_nop 0\nv_mul_f32 v29, v{m}, v{l}")
        for st in oct_steps:
            e(f"s_nop 1\nv_add_f32_dpp v29, v29, v29 {st} {DPPF}")
        e("v_rcp_f32 v29, v29")
        for i in range(3):
            e(f"v_sub_f32 v{F+i}, v{16+4*i}, v28\nv_mul_f32 v{F+i}, s61, v{F+i}\nv_exp_f32 v{F+i}, v{F+i}\ns_nop 0")
            e(f"v_mul_f32 v{F+i}, v{F+i}, v29")
        if self.fast:
            e(f"v_cmp_ne_u32 vcc, s46, v{RAW+11}\ns_cmp_eq_u64 vcc, 0\ns_cselect_b32 s60, 2, 1\nv_mov_b32 v{F+3}, s60")
        else:
            e(f"v_mov_b32 v{F+3}, 1")
        e(f"s_mov_b64 exec, 1\nds_write_b128 v{vM}, v[{F}:{F+3}] offset:{FS-MISC}\ns_mov_b64 exec, -1")
        e("L_tail0:\ns_cmp_eq_u32 s48, 7\ns_cbranch_scc1 L_fin")

        def stamp_s(k):
            if self.stamps and not self.bgst:
                e(f"s_cmp_eq_u32 s30, 0\ns_cbranch_scc1 L_st{k}")
                self.stamp(k)
                e(f"L_st{k}:")

        e(f"s_lshl_b32 s58, s49, 13\ns_lshl_b32 s60, s30, 8\ns_add_u32 s58, s58, s60\ns_add_u32 s58, s58, {WS_OP}")
        e("s_add_u32 s59, s58, 4096\nv_lshlrev_b32 v9, 2, v0")
        e(f"v_lshlrev_b32 v255, 10, v3\nv_lshl_add_u32 v255, v4, 4, v255\nv_lshl_add_u32 v1, v4, 3, v3")
        e("s_lshr_b32 s60, s30, 1\ns_lshl_b32 s60, s60, 8\ns_and_b32 s61, s30, 1\ns_lshl_b32 s61, s61, 3\ns_add_u32 s60, s60, s61")
        e(f"s_add_u32 s60, s60, {QV}\nv_lshl_add_u32 v14, v1, 1, s60")
        e(f"v_lshl_add_u32 v15, v3, 4, v{vM}\nv_add_u32 v13, v5, v{vM}")
        e(f"s_mul_i32 s40, s49, {448*4}\ns_lshl_b32 s60, s48, 8\ns_add_u32 s40, s40, s60")
        e(f"s_lshl_b32 s60, s30, 6\ns_add_u32 s40, s40, {WS_Y}")
        if self.ymerge:
            e(f"v_lshl_add_u32 v29, v4, 2, v{vM}\nv_add_u32 v29, s60, v29\nv_add_u32 v28, v9, v{vM}")
        else:
            e("s_add_u32 s40, s40, s60")
        vYM, vYT = 253, 254
        e(f"v_and_b32 v1, 3, v0\nv_cmp_eq_u32 vcc, 0, v1\nv_mov_b32 v1, 0xffffff00\ns_mov_b32 s43, 0xffffff00")
        e(f"v_cndmask_b32 v{vYM}, -1, v1, vcc\nv_cndmask_b32 v{vYT}, 0, v{vT8}, vcc")
        e(f"s_lshl_b32 s60, s30, 5\ns_add_u32 s60, s60, {RED}\nv_lshl_add_u32 v30, v4, 1, s60")
        ZB = 1792 << self.zpad
        e(f"s_mul_i32 s41, s54, {28*ZB}\ns_mul_i32 s60, s30, {ZB}\ns_add_u32 s41, s41, s60")
        e(f"s_lshl_b32 s60, s55, {6+self.zpad}\ns_add_u32 s41, s41, s60\ns_add_u32 s41, s41, {WS_Z}\ns_add_u32 s42, s41, {16*ZB}")
        e(f"v_mul_u32_u24 v31, {4*ZB}, v3\nv_lshl_add_u32 v31, v4, 2, v31")
        for k in range(4):
            e(f"v_mov_b32 v{248+k}, 0")
        ol = [(4, 20 + 4 * k, 255, f"s{58+k}", 0) for k in range(2)]
        e("s_mov_b32 s47, 0\ns_mov_b32 s46, 0")
        self.lds_wait(vM, FULL - MISC, 47, self.pstart - 40, 64)
        self.lds_wait(vM, FS + 12 - MISC, 46, 1, 2)
        if self.talign is not None:
            e("s_branch L_closing")
            self.L.append(".p2align 12")
            if self.talign:
                self.L.append(f".fill {self.talign//4}, 4, 0xbf800000")
            e("L_closing:")
        self.lds_wait(vM, FULL - MISC, 47, self.pstart, 3)
        e("s_setprio 2")
        self.L.append("@WARM_BEGIN")

        self.gather8(ol, vT8, ["-1", "-1"], False)
        self.pk("add", 22, 22, 26)
        self.pk("add", 20, 20, 24)
        e("s_nop 1\nv_permlane32_swap_b32 v20, v22\nv_permlane32_swap_b32 v21, v23")
        self.pk("add", 20, 20, 22)
        e("s_nop 1\nv_permlane16_swap_b32 v20, v21\nv_add_f32 v20, v20, v21")
        e("v_cvt_pk_bf16_f32 v20, v20, v20\nds_write_b16 v14, v20")
        stamp_s(1)
        e("s_waitcnt lgkmcnt(0)\ns_barrier")
        self.unit_mfma_lds(WO, RAW, 15, 8, DD, QV - MISC)
        e(f"v_and_or_b32 v{DD}, v{DD}, v{vYM}, v{vYT}")
        if self.ymerge:
            e(f"ds_write_b32 v29, v{DD} offset:{RED+128-MISC}\ns_waitcnt lgkmcnt(0)\ns_barrier")
            e(f"s_cmp_lg_u32 s30, 1\ns_cbranch_scc1 L_ydone\nds_read_b32 v{DD}, v28 offset:{RED+128-MISC}\ns_waitcnt lgkmcnt(0)")
            e(f"buffer_store_dword v{DD}, v9, s[32:35], s40 offen sc1\nL_ydone:")
        else:
            e(f"s_mov_b64 exec, 0xffff\nbuffer_store_dword v{DD}, v9, s[32:35], s40 offen {self.ypol}")
        stamp_s(2)
        if self.stamps:
            e("s_cmp_lt_u32 s101, 64\ns_cbranch_scc1 L_noack\ns_waitcnt vmcnt(0)")
            self.stamp(6)
            e("L_noack:")
        e(f"s_cmp_ge_u32 s101, 64\ns_cbranch_scc1 L_fin\ns_mov_b64 exec, {LM}\ns_barrier")

        e(f"ds_read_b128 v[248:251], v13 offset:{AIM-MISC}\ns_mov_b64 exec, -1")
        stamp_s(3)
        e("s_waitcnt lgkmcnt(0)")
        X = list(range(WO, WO + 8))
        self.unpack([248, 249, 250, 251], X)
        self.layernorm(X, list(range(16, 26)), rounded=not self.lnfast)
        self.modulate(X, list(range(OCB, OCB + 8)), list(range(SB, SB + 8)), [248, 249, 250, 251], list(range(16, 20)),
                      rounded=not self.lnfast)
        self.unit_mfma_dpp(W1, 248, AD, DD)
        self.rbf1(DD)
        self.silu([DD], [16])
        e(f"v_cvt_pk_bf16_f32 v{DD}, v{DD}, v{DD}\nds_write_b16 v30, v{DD}\ns_waitcnt lgkmcnt(0)\ns_barrier")
        e(f"ds_read_b128 v[{AD}:{AD+3}], v15 offset:{RED-MISC}\nds_read_b128 v[{AD+4}:{AD+7}], v15 offset:{RED-MISC+64}")
        stamp_s(4)
        def mm(rho, st):
            d, b = RAW + 4 * rho, W2 + 8 * rho + 4 * st
            c = "0" if st == 0 else f"v[{d}:{d+3}]"
            e(f"v_mfma_f32_16x16x32_bf16 v[{d}:{d+3}], v[{AD+4*st}:{AD+4*st+3}], v[{b}:{b+3}], {c}")

        def sel(dst, g):
            e(f"v_mov_b32_dpp v{dst}, v{dst+4*g} quad_perm:[0,1,2,3] row_mask:{hex(1<<g)} bank_mask:0xf")
        e("s_waitcnt lgkmcnt(1)")
        for rho in range(4):
            mm(rho, 0)
        e("s_waitcnt lgkmcnt(0)")
        for rho in range(4):
            mm(rho, 1)
        for st in range(2):
            for rho in range(4, 7):
                mm(rho, st)
        sel(RAW, 1)
        e("s_nop 1")
        sel(RAW, 2)
        e("s_nop 1")
        sel(RAW, 3)
        e(f"v_and_or_b32 v{RAW}, v{RAW}, v{vYM}, v{vYT}")
        sel(RAW + 16, 1)
        near = self.fast and self.xm
        if near:
            e("s_cmp_lg_u32 s46, 2\ns_cbranch_scc1 L_zfar")
        for pol in ([self.npol, "sc1"] if near else ["sc1"]):
            e(f"buffer_store_dword v{RAW}, v31, s[32:35], s41 offen {pol}\ns_nop 0")
            e(f"v_mov_b32_dpp v{RAW+16}, v{RAW+24} quad_perm:[0,1,2,3] row_mask:0x4 bank_mask:0xf")
            e(f"v_and_or_b32 v{RAW+16}, v{RAW+16}, v{vYM}, v{vYT}\ns_mov_b32 exec_hi, 0xffff")
            e(f"buffer_store_dword v{RAW+16}, v31, s[32:35], s42 offen {pol}")
            if self.stamps and not self.bgst:
                e("s_cmp_eq_u32 s30, 0\ns_cbranch_scc1 L_fin")
                self.stamp(5)
            e("s_branch L_fin")
            if pol != "sc1":
                e("L_zfar:")

    def gtail(self):
        e = self.e
        vM, vT8, GA, XP, GB, R = 12, 10, 4, 6, 8, 32
        HM = "s[52:53]"
        e("L_gtail:")
        self.mlp_ids()
        e("s_cbranch_scc1 L_leave")
        e(f"s_setprio 0\nv_mov_b32 v{vM}, {MISC}\nv_mov_b32 v2, 0\ns_mov_b32 s47, 0\ns_mov_b32 s31, 0x80000")
        self.srd(32, 28, WS_SIZE)
        e("s_mov_b32 s52, 0x0fffffff\ns_mov_b32 s53, 0x0fffffff")
        e(f"s_mul_i32 s40, s54, {16*448*4}\ns_add_u32 s40, s40, {WS_Y}")
        for k in range(1, 4):
            e(f"s_add_u32 s{40+k}, s40, {k*2*448*4}")
        e("v_and_b32 v1, 31, v0\nv_lshrrev_b32 v3, 5, v0\ns_mul_i32 s60, s3, 448\nv_lshl_add_u32 v9, v1, 4, s60")
        e(f"v_lshrrev_b32 v14, 1, v9\nv_lshl_add_u32 v14, v3, 2, v14\nv_add_u32 v14, {AIM}, v14")
        e(f"v_mul_u32_u24 v3, {8*448*4}, v3\nv_add_u32 v9, v9, v3")
        yl = [(4, R + 4 * k, 9, f"s{40+(k>>1)}", (k & 1) * 448 * 4) for k in range(8)]
        zl = [(4, 20 + 4 * k, 13, "s58", 1024 * k) for k in range(2)]
        self.lds_wait(vM, FS + 12 - MISC, 47, 1, 2)
        e(f"ds_read_b32 v11, v{vM} offset:{TAG-MISC}")
        e(f"s_lshl_b32 s60, s3, 10\ns_add_u32 s60, s60, {GX}\nv_lshl_add_u32 v1, v0, 4, s60\nds_read_b128 v[{GA}:{GA+3}], v1")
        e("v_and_b32 v15, 3, v0\nv_lshrrev_b32 v1, 4, v0\nv_lshl_add_u32 v15, v15, 2, v1")
        e(f"v_lshlrev_b32 v13, 4, v0\nv_lshlrev_b32 v1, 2, v15\nv_add_u32 v1, {GBL}, v1\nds_read_b32 v{GB}, v1")
        e(f"s_waitcnt lgkmcnt(0)\nv_and_b32 v{vT8}, 0xff, v11")
        e(f"s_mov_b64 exec, {HM}")
        for ld in yl if self.prewarm & 1 else []:
            self.issue(ld)
        e("s_barrier")
        if self.ymerge:
            e("s_barrier")
        if self.ystage:
            top = self.lab("ys")
            e(f"{top}:")
            self.budget()
            self.issue(yl[self.ystage - 1])
            e(f"s_waitcnt vmcnt(0)\nv_cmp_ne_u32_sdwa vcc, v{yl[self.ystage-1][1]}, v{vT8} src0_sel:BYTE_0 src1_sel:DWORD")
            e(f"s_cmp_lg_u64 vcc, 0\ns_cbranch_scc1 {top}")
        self.gather8(yl, vT8, [HM] * 8, True)
        if self.stamps and not self.prog:
            e("s_cmp_lg_u32 s3, 0\ns_cbranch_scc1 L_sg3")
            self.stamp(3)
            e("L_sg3:")
        for st in (16, 8, 4):
            for k in range(0, st, 2):
                e(f"v_pk_add_f32 v[{R+k}:{R+k+1}], v[{R+k}:{R+k+1}], v[{R+st+k}:{R+st+k+1}]")
        e(f"s_nop 1\nv_permlane32_swap_b32 v{R}, v{R+2}\nv_permlane32_swap_b32 v{R+1}, v{R+3}")
        e(f"v_pk_add_f32 v[{R}:{R+1}], v[{R}:{R+1}], v[{R+2}:{R+3}]")
        self.rbf_pairs([R, R + 1], [16])
        e(f"v_pk_mul_f32 v[{R}:{R+1}], v[{R}:{R+1}], v[{GA}:{GA+1}]")
        self.rbf_pairs([R, R + 1], [16])
        e(f"v_pk_add_f32 v[{R}:{R+1}], v[{R}:{R+1}], v[{XP}:{XP+1}]")
        e(f"v_cvt_pk_bf16_f32 v16, v{R}, v{R+1}")
        e(f"s_mov_b64 exec, {HM}\nds_write_b32 v14, v16\ns_waitcnt lgkmcnt(0)\ns_barrier")
        e("s_cmp_lg_u32 s3, 0\ns_cbranch_scc1 L_epoch\ns_mov_b64 exec, -1")
        e(f"s_mul_i32 s58, s54, 28\ns_add_u32 s58, s58, s55\ns_mul_i32 s58, s58, {1792 << self.zpad}\ns_add_u32 s58, s58, {WS_Z}")
        ZM = "s[50:51]"
        e("s_mov_b32 s50, -1\ns_mov_b32 s51, 0xffff")
        for k in range(4):
            e(f"v_mov_b32 v{24+k}, 0")
        if self.prewarm & 2:
            self.issue(zl[0])
            e(f"s_mov_b64 exec, {ZM}")
            self.issue(zl[1])
            e("s_mov_b64 exec, -1")
        e(f"s_lshl_b32 s60, s55, 5\ns_add_u32 s41, s60, {AIM}\nv_lshl_add_u32 v1, v15, 1, s41\nds_read_u16 v31, v1")
        self.srd(36, 24, 1792)
        e("s_mul_i32 s41, s54, 896\ns_add_u32 s41, s41, s60\nv_lshlrev_b32 v14, 1, v15")
        e("s_mov_b32 s42, 0x000f000f\ns_mov_b32 s43, 0x000f000f")
        e("s_waitcnt lgkmcnt(0)\nv_lshlrev_b32 v31, 16, v31\ns_barrier")
        self.gather8(zl, vT8, ["-1", ZM], False)
        if not self.prog:
            self.stamp(4)
        self.pk("add", 22, 22, 26)
        self.pk("add", 20, 20, 24)
        e("s_nop 1\nv_permlane32_swap_b32 v20, v22\nv_permlane32_swap_b32 v21, v23")
        self.pk("add", 20, 20, 22)
        e("s_nop 1\nv_permlane16_swap_b32 v20, v21\nv_add_f32 v16, v20, v21")
        for rr in (4, 8):
            e(f"s_nop 1\nv_add_f32_dpp v16, v16, v16 row_ror:{rr} {DPPF}")
        self.rbf1(16)
        e(f"v_mul_f32 v16, v16, v{GB}")
        self.rbf1(16)
        e("v_add_f32 v16, v16, v31\nv_cvt_pk_bf16_f32 v16, v16, v16")
        e("s_mov_b64 exec, s[42:43]\nbuffer_store_short v16, v14, s[36:39], s41 offen")
        if not self.prog:
            self.stamp(5)
        if False:
            e("s_cmp_lg_u32 s101, 0\ns_cbranch_scc1 L_fin\ns_mov_b64 exec, 1")
            self.srd(44, 26, 256)
            for ti, ptr in enumerate((6, 8)):
                self.srd(36, ptr, 0x20000000)
                e(f"s_mov_b32 s40, 0\ns_mov_b32 s41, 0\nL_dm{ti}:\ns_lshl_b32 s42, s40, 21")
                e("buffer_load_dword v16, v2, s[36:39], s42 offen offset:2048 nt\ns_waitcnt vmcnt(0)\ns_mov_b32 s43, 0")
                for rep in range(3):
                    for half in range(2):
                        e(f"s_add_u32 s48, s42, {half*8192 + rep*32768}\ns_memtime s[60:61]\ns_waitcnt lgkmcnt(0)")
                        e("buffer_load_dword v16, v2, s[36:39], s48 offen nt\ns_waitcnt vmcnt(0)\ns_memtime s[62:63]\ns_waitcnt lgkmcnt(0)")
                        e(f"s_sub_u32 s{64+half}, s62, s60")
                    e("s_cmp_lt_u32 s64, s65\ns_addc_u32 s43, s43, 0")
                e("s_lshr_b32 s43, s43, 1\ns_and_b32 s48, s40, 31\ns_lshl_b32 s43, s43, s48\ns_or_b32 s41, s41, s43")
                e(f"s_lshr_b32 s48, s40, 5\ns_lshl_b32 s48, s48, 2\nv_mov_b32 v17, s41\nbuffer_store_dword v17, v2, s[44:47], s48 offen offset:{32*ti}")
                e(f"s_add_u32 s40, s40, 1\ns_and_b32 s48, s40, 31\ns_cselect_b32 s41, s41, 0\ns_cmp_lt_u32 s40, 256\ns_cbranch_scc1 L_dm{ti}")
        self.L.append("@WARM_END")
        e("L_fin:")
        self.end()
        e("L_epoch:\ns_add_u32 s60, s101, s3\ns_cmp_lg_u32 s60, 1\ns_cbranch_scc1 L_leave")
        e("s_mov_b64 exec, 1\nbuffer_store_dword v11, v2, s[32:35], 0 offen sc1")
        e("L_leave:\ns_barrier\ns_branch L_fin")

    def build(self, header):
        e = self.e
        K = NAME + "_kernel"
        self.L.append(header.rstrip("\n"))
        self.L.append(f"; @launch grid=(256,1,1) block=(512,1,1) lds={LDS_BYTES}")
        self.L.append('.amdgcn_target "amdgcn-amd-amdhsa--gfx950"\n.text')
        self.L.append(f".globl {K}\n.p2align 8\n.type {K},@function\n{K}:")
        e("s_cmp_ge_u32 s2, 256\ns_cbranch_scc1 L_end")
        e("s_load_dwordx16 s[4:19], s[0:1], 0\ns_load_dwordx8 s[20:27], s[0:1], 64\ns_load_dwordx2 s[28:29], s[0:1], 96")
        e("v_lshrrev_b32 v1, 6, v0\nv_and_b32 v0, 63, v0\nv_readfirstlane_b32 s3, v1")
        if self.xl == 2:
            e("s_and_b32 s100, s2, 7\ns_lshl_b32 s100, s100, 3\ns_bfe_u32 s101, s2, 0x30003\ns_or_b32 s100, s100, s101")
            e("s_and_b32 s101, s2, 192\ns_or_b32 s100, s100, s101")
            if self.xf:
                e(f"s_bitcmp1_b32 s2, 6\ns_cselect_b32 s101, {self.xf << 3}, 0\ns_xor_b32 s100, s100, s101")
            if self.xg:
                e(f"s_bitcmp1_b32 s2, 7\ns_cselect_b32 s101, {self.xg << 3}, 0\ns_xor_b32 s100, s100, s101")
        elif self.xl:
            e("s_and_b32 s100, s2, 7\ns_lshl_b32 s100, s100, 4\ns_bfe_u32 s101, s2, 0x40003\ns_or_b32 s100, s100, s101")
            e("s_and_b32 s101, s2, 128\ns_or_b32 s100, s100, s101")
        else:
            e("s_mov_b32 s100, s2")
        self.stamp_init()
        e("s_cmp_eq_u32 s3, 0\ns_cbranch_scc1 L_loader")
        e(f"v_lshlrev_b32 v1, 3, v0\nv_add_u32 v1, {MISC}, v1\nv_mov_b32 v2, 0\nv_mov_b32 v3, 0\nds_write_b64 v1, v[2:3]")
        e("s_cmp_ge_u32 s3, 4\ns_cbranch_scc1 L_service")
        if self.l2warm == 2:
            self.code_prefetch()
        e("s_branch L_consumer")
        self.loader()
        e("L_end:\ns_endpgm")
        self.consumer()
        self.service()
        self.gtail()
        self.stage_subs(12)
        e("L_last:")
        self.L.append(f""".section .rodata,"a"
.p2align 6
.amdhsa_kernel {K}
  .amdhsa_next_free_vgpr 256
  .amdhsa_next_free_sgpr 102
  .amdhsa_accum_offset 256
  .amdhsa_group_segment_fixed_size 0
  .amdhsa_kernarg_size 104
  .amdhsa_user_sgpr_count 2
  .amdhsa_user_sgpr_kernarg_segment_ptr 1
  .amdhsa_system_sgpr_workgroup_id_x 1
  .amdhsa_float_denorm_mode_32 3
.end_amdhsa_kernel""")
        return "\n".join(self.place_pads()) + "\n"

    def place_pads(self):
        out, inside, count, npad, masked = [], False, 0, 0, False
        def pad(op):
            nonlocal npad, count
            out.append(f"L_pad{npad}:\n    {op} @PAD{npad+1}@")
            npad += 1
            count = 0
        for line in self.L:
            if line == "@WARM_BEGIN":
                inside = bool(self.warm)
                if inside:
                    pad("s_cbranch_execz")
                continue
            if line == "@SPOT":
                if self.warm:
                    pad("s_branch")
                continue
            if line == "@WARM_END":
                inside = False
                continue
            out.append(line)
            if inside and line.startswith("    "):
                count += 1
                if "s_cselect_b64 exec" in line:
                    masked = True
                elif "s_mov_b64 exec" in line:
                    masked = False
                if line.strip().startswith("s_branch "):
                    pad("s_branch")
                elif count >= self.warm and not masked:
                    pad("s_cbranch_execz")
        text = "\n".join(out)
        for k in range(1, npad + 1):
            text = text.replace(f"@PAD{k}@", f"L_pad{k}" if k < npad else "L_padret")
        return text.split("\n")


HEADER = """; Fused adaLN-conditioned block for one decode step (gfx950): modulation, layernorm, q projection,
;
"""


def generate(**kw):
    return Gen(**kw).build(HEADER)


if __name__ == "__main__":
    import json
    kw = json.loads(sys.argv[2]) if len(sys.argv) > 2 else {}
    open(sys.argv[1], "w").write(generate(**kw))
```

```python
import struct
import sys

NAME = "adaLN_cond__mha_block_cached__dense_activation_silu__decode"

WS_EPOCH, WS_MOD, WS_Q, WS_OP, WS_Y, WS_ML, WS_Z, WS_CTR, WS_SIZE = (
    0, 0x1000, 0x10000, 0x20000, 0x60000, 0x6E000, 0x70000, 0xB0000, 0x1E0000)
WS_STAMP = 0x1E0000
RING, NSLOT = 0, 16
SC, SC_STRIDE = 131072, 6144
STG = 149504
PST = 131072
MISC = 159744
FULL, FREE, QRDY, TAG, BAR, ML, QV, AIM, RED = (MISC, MISC + 256, MISC + 272, MISC + 276, MISC + 280,
                                                MISC + 288, MISC + 512, MISC + 1024, MISC + 2816)
FS, PF = MISC + 336, MISC + 352
GX, GBL = STG, STG + 4096
LDS_BYTES = 163840


STAMPS = [("ld start", 0, 0), ("S0 start", 4, 0), ("S0 weights landed", 4, 1), ("S0 frags read", 4, 2),
          ("S0 mod gathered", 4, 3), ("S0 unit pub", 4, 4), ("S0 q ready", 4, 5), ("C prepull done", 1, 0),
          ("C q seen", 1, 1), ("bg done", 5, 0), ("ld K issued", 0, 1), ("C K done", 1, 2), ("C softmax done", 1, 3),
          ("ld done", 0, 2), ("opart pub", 1, 4), ("o gathered", 5, 1), ("y pub", 5, 2), ("y gathered", 0, 3),
          ("x1 barrier", 5, 3), ("hid barrier", 5, 4), ("z pub", 5, 5), ("z gathered", 0, 4), ("end", 0, 5)]
END_STAMP = (0, 5)


def f2u(x):
    return struct.unpack("<I", struct.pack("<f", x))[0]


LOG2E = 1.4426950408889634
C2 = f2u(LOG2E / 16.0)
DPPF = "row_mask:0xf bank_mask:0xf"


class Gen:
    def __init__(self, D=20, lev=(18, 20, 22, 24, 28), nsh=4, cst=8448, cstart=64, atpos=16, wpol="nt", kvpol="nt",
                 prepull=6, qsleep=0, warm=0, pstart=1016, zpad=0, prewarm=2, vtouch=0, stamps=False, prog=None, bgst=0, l2warm=2, G=2, lev0=None, pi=None, xl=2, xm=1, fast=1, eb=8, mpol="", sh0=3, rot=0, qloc=1, qat=46, mat=22, msleep=0, xf=0, xg=0, ymerge=0, ystage=1, fin=(0, 32), npol="", csleep=0, lnfast=0, mix=0, mixat=0, mixto=2048, ctouch=0, mdelay=0, wdelay=0, opol="nt", boost=(416, 1, 0), diagmap=0, talign=0, esc=(0, 32, 2, 0, 0), t=(12, 13, 14, 11, 15, 10), jb=(21, 16, 23), xk=((), (11,), (10,)), ypol="sc1", mswap=0, ini=None, fing=(28, 26, 22, 18, 16), rpace=96, opace=0, r0=96, mxs=2, bl=(4, 4), spf=(0, 0)):
        self.L = []
        self.n = 0
        self.D, self.lev, self.nsh, self.cst, self.cstart, self.atpos = D, list(lev), nsh, cst, cstart, atpos
        self.period = 32
        self.spf = spf
        self.touch = set()
        self.bl = bl
        self.rpace, self.opace, self.r0, self.mxs = rpace, opace, r0, mxs
        self.fing = fing
        self.ini = ini
        self.mswap = mswap
        self.ypol = ypol
        self.diagmap = diagmap
        self.talign = talign
        self.stage_pols = set()
        self.t = list(t) + [b for b in range(10, 24) if b not in t and b not in jb]
        self.jb, self.xk = jb, xk
        assert sorted(self.t + list(jb)) == list(range(10, 24)) and self.t[1] > 10
        assert not any(set(m) & (set(self.t[:2]) | set(jb)) for m in xk)
        self.boost, self.esc = boost, esc
        assert cstart + atpos > 2 * (NSLOT + 3 * prepull)
        self.mdelay, self.wdelay = mdelay, wdelay
        self.opol = wpol if opol is None else opol
        self.mix, self.mixat, self.mixto, self.ctouch = mix, mixat, mixto, ctouch
        self.csleep, self.lnfast = csleep, lnfast
        self.fin, self.npol = fin, npol
        self.ymerge, self.ystage = ymerge, ystage
        self.xf, self.xg = xf, xg
        self.qat, self.mat, self.msleep = qat, mat, msleep
        self.qloc = qloc
        self.sh0, self.rot = sh0, rot
        self.xl, self.xm, self.fast, self.eb = xl, xm, fast, eb
        self.mpol = wpol if mpol is None else mpol
        assert xl or not (xm or fast)
        self.pi = pi
        self.G, self.lev0 = G, lev0
        self.l2warm = l2warm
        assert cstart >= 64 and cstart % 32 == 0 and atpos % 8 != 7
        self.wpol, self.kvpol = wpol, kvpol
        self.prepull, self.qsleep, self.warm = prepull, qsleep, warm
        self.pstart, self.zpad, self.prewarm, self.vtouch = pstart, zpad, prewarm, vtouch
        self.stamps, self.prog, self.bgst = stamps, prog, bgst

    def e(self, s):
        for line in s.split("\n"):
            line = line.strip()
            if not line:
                continue
            self.L.append(line if line.endswith(":") or line.startswith(";") else "    " + line)

    def lab(self, p):
        self.n += 1
        return f"L_{p}_{self.n}"

    def srd(self, d, base, size):
        self.e(f"s_mov_b32 s{d}, s{base}\ns_mov_b32 s{d+1}, s{base+1}\n"
               f"s_mov_b32 s{d+2}, {size}\ns_mov_b32 s{d+3}, 0x20000")

    def stamp(self, k):
        if self.stamps:
            self.e(f"s_memrealtime s[{84+2*k}:{85+2*k}]")

    def stamp_init(self):
        if self.stamps:
            for k in range(8):
                self.e(f"s_mov_b64 s[{84+2*k}:{85+2*k}], 0")

    def stamp_flush(self):
        if self.stamps:
            self.e("s_mov_b64 exec, -1\ns_waitcnt lgkmcnt(0)")
            self.srd(80, 28, WS_STAMP + 0x20000)
            for k in range(8):
                self.e(f"v_mov_b32 v{8+k}, s{84+2*k}")
            self.e(f"s_lshl_b32 s30, s2, 3\ns_add_u32 s30, s30, s3\ns_lshl_b32 s30, s30, 5\n"
                   f"s_add_u32 s30, s30, {WS_STAMP}\nv_mov_b32 v1, s30\ns_mov_b64 exec, 1\n"
                   "buffer_store_dwordx4 v[8:11], v1, s[80:83], 0 offen\n"
                   "buffer_store_dwordx4 v[12:15], v1, s[80:83], 0 offen offset:16")

    def end(self):
        self.stamp_flush()
        self.e("s_endpgm")

    def budget(self):
        self.e("s_sub_u32 s31, s31, 1\ns_cbranch_scc1 L_end")

    def wave_reduce(self, op, regs, nsteps=6):
        steps = ["quad_perm:[1,0,3,2] " + DPPF, "quad_perm:[2,3,0,1] " + DPPF, "row_half_mirror " + DPPF,
                 "row_mirror " + DPPF, "row_bcast:15 row_mask:0xa bank_mask:0xf",
                 "row_bcast:31 row_mask:0xc bank_mask:0xf"]
        for st in steps[:nsteps]:
            pad = 3 - len(regs) if st is not steps[0] else 2
            if pad > 0:
                self.e(f"s_nop {pad-1}")
            for r in regs:
                self.e(f"{op}_dpp v{r}, v{r}, v{r} {st}")
        self.e("s_nop 0")

    def rbf_pairs(self, regs, tmp):
        for k in range(0, len(regs), 2):
            self.e(f"v_cvt_pk_bf16_f32 v{tmp[k//2]}, v{regs[k]}, v{regs[k+1]}")
        self.unpack(tmp[:len(regs)//2], regs)

    def unpack(self, packed, regs):
        for k, p in enumerate(packed):
            self.e(f"v_lshlrev_b32 v{regs[2*k]}, 16, v{p}\nv_and_b32 v{regs[2*k+1]}, 0xffff0000, v{p}")

    def rbf1(self, r):
        self.e(f"v_cvt_pk_bf16_f32 v{r}, v{r}, v{r}\nv_and_b32 v{r}, 0xffff0000, v{r}")

    def silu(self, regs, tmp):
        for r, t in zip(regs, tmp):
            self.e(f"v_mul_f32 v{t}, {hex(f2u(-LOG2E))}, v{r}")
        for t in tmp[:len(regs)]:
            self.e(f"v_exp_f32 v{t}, v{t}")
        self.e("s_nop 0")
        for t in tmp[:len(regs)]:
            self.e(f"v_add_f32 v{t}, 1.0, v{t}")
        for t in tmp[:len(regs)]:
            self.e(f"v_rcp_f32 v{t}, v{t}")
        self.e("s_nop 0")
        for r, t in zip(regs, tmp):
            self.e(f"v_mul_f32 v{r}, v{r}, v{t}")

    def pk(self, op, d, a, b, mods=""):
        self.e(f"v_pk_{op}_f32 v[{d}:{d+1}], v[{a}:{a+1}], v[{b}:{b+1}] {mods}")

    def layernorm(self, X, t, extra=None, rounded=True):
        e = self.e
        S = X[::2] + (extra[::2] if extra else [])
        a, b, m, r = t[0], t[2], t[6], t[8]
        self.pk("add", a, S[0], S[1])
        self.pk("mul", b, S[0], S[0])
        e(f"v_pk_fma_f32 v[{b}:{b+1}], v[{S[1]}:{S[1]+1}], v[{S[1]}:{S[1]+1}], v[{b}:{b+1}]")
        for q in S[2:]:
            self.pk("add", a, a, q)
            e(f"v_pk_fma_f32 v[{b}:{b+1}], v[{q}:{q+1}], v[{q}:{q+1}], v[{b}:{b+1}]")
        e(f"v_add_f32 v{a}, v{a}, v{a+1}\nv_add_f32 v{b}, v{b}, v{b+1}")
        inv = hex(f2u(1.0 / 448))
        if extra is None:
            self.wave_reduce("v_add_f32", [a, b])
            e(f"v_readlane_b32 s60, v{a}, 63\nv_readlane_b32 s61, v{b}, 63\nv_mov_b32 v{a+1}, {inv}")
            e(f"v_mul_f32 v{a}, s60, v{a+1}\nv_mul_f32 v{b}, s61, v{a+1}")
        else:
            self.wave_reduce("v_add_f32", [a, b], nsteps=4)
            e(f"v_mov_b32 v{a+1}, v{a}\nv_mov_b32 v{b+1}, v{b}\ns_nop 1")
            e(f"v_permlane16_swap_b32 v{a}, v{a+1}\nv_permlane16_swap_b32 v{b}, v{b+1}")
            e(f"v_add_f32 v{a}, v{a}, v{a+1}\nv_add_f32 v{b}, v{b}, v{b+1}")
            e(f"v_mul_f32 v{a}, {inv}, v{a}\nv_mul_f32 v{b}, {inv}, v{b}")
        e(f"v_fma_f32 v{b}, -v{a}, v{a}, v{b}\nv_max_f32 v{b}, 0, v{b}")
        e(f"v_cvt_pk_bf16_f32 v{a}, v{a}, v{b}")
        e(f"v_and_b32 v{r}, 0xffff0000, v{a}\nv_lshlrev_b32 v{m}, 16, v{a}")
        e(f"v_add_f32 v{r}, {hex(f2u(1e-5))}, v{r}")
        self.rbf1(r)
        e(f"v_sqrt_f32 v{r}, v{r}")
        for q in X[::2]:
            self.pk("add", q, q, m, "op_sel_hi:[1,0] neg_lo:[0,1] neg_hi:[0,1]")
        self.rbf1(r)
        e(f"v_rcp_f32 v{r}, v{r}")
        if rounded:
            self.rbf_pairs(X, t[2:6])
        else:
            e("s_nop 0")
        for q in X[::2]:
            self.pk("mul", q, q, r, "op_sel_hi:[1,0]")
        if rounded:
            self.rbf_pairs(X, t[2:6])

    def modulate(self, X, OC, SH, out, t, rounded=True):
        if rounded:
            for k in range(0, 8, 2):
                self.pk("mul", X[k], X[k], OC[k])
            self.rbf_pairs(X, t)
            for k in range(0, 8, 2):
                self.pk("add", X[k], X[k], SH[k])
        else:
            for k in range(0, 8, 2):
                self.e(f"v_pk_fma_f32 v[{X[k]}:{X[k]+1}], v[{X[k]}:{X[k]+1}], v[{OC[k]}:{OC[k]+1}], v[{SH[k]}:{SH[k]+1}]")
        for k in range(4):
            self.e(f"v_cvt_pk_bf16_f32 v{out[k]}, v{X[2*k]}, v{X[2*k+1]}")

    def gather(self, loads, vtag, sel, active, sleep=0, pairs=False):
        e = self.e
        top, done = self.lab("gat"), self.lab("gdone")
        for k in range(len(loads)):
            e(f"s_mov_b64 s[{64+2*k}:{65+2*k}], 1")
        e(f"s_mov_b64 exec, {active}\n{top}:")
        for k, (nd, raw, clean, va, so, imm) in enumerate(loads):
            sk = self.lab("gs")
            dst = f"v{raw}" if nd == 1 else f"v[{raw}:{raw+nd-1}]"
            suf = "" if nd == 1 else f"x{nd}"
            if len(loads) > 1:
                e(f"s_cmp_eq_u64 s[{64+2*k}:{65+2*k}], 0\ns_cbranch_scc1 {sk}")
            e(f"buffer_load_dword{suf} {dst}, v{va}, s[32:35], {so} offen offset:{imm} sc1")
            e(f"{sk}:")
        e("s_waitcnt vmcnt(0)")
        for k, (nd, raw, clean, va, so, imm) in enumerate(loads):
            for j in range(nd):
                e(f"v_xor_b32 v{clean+j}, v{raw+j}, v{vtag}")
            if nd == 1:
                chk = clean
            elif nd == 2:
                chk = 1
                e(f"v_or_b32 v1, v{clean}, v{clean+1}")
            else:
                chk = 1
                e(f"v_or3_b32 v1, v{clean}, v{clean+1}, v{clean+2}\nv_or_b32 v1, v1, v{clean+3}")
            if isinstance(sel, int):
                e(f"v_and_b32 v1, {sel}, v{chk}\nv_cmp_ne_u32 s[{64+2*k}:{65+2*k}], 0, v1")
            else:
                e(f"v_cmp_ne_u32_sdwa s[{64+2*k}:{65+2*k}], v{chk}, v2 src0_sel:{sel} src1_sel:DWORD")
        if pairs:
            for k in range(0, len(loads), 2):
                e(f"s_or_b64 s[{64+2*k}:{65+2*k}], s[{64+2*k}:{65+2*k}], s[{66+2*k}:{67+2*k}]")
                e(f"s_mov_b64 s[{66+2*k}:{67+2*k}], s[{64+2*k}:{65+2*k}]")
        e("s_or_b64 s[62:63], s[64:65], s[64:65]")
        for k in range(1, len(loads)):
            e(f"s_or_b64 s[62:63], s[62:63], s[{64+2*k}:{65+2*k}]")
        e(f"s_cbranch_scc0 {done}")
        self.budget()
        if sleep:
            e(f"s_sleep {sleep}")
        e(f"s_branch {top}\n{done}:\ns_mov_b64 exec, -1")

    def issue(self, ld):
        nd, raw, va, so, imm = ld
        dst = f"v{raw}" if nd == 1 else f"v[{raw}:{raw+nd-1}]"
        suf = "" if nd == 1 else f"x{nd}"
        self.e(f"buffer_load_dword{suf} {dst}, v{va}, s[32:35], {so} offen offset:{imm} sc1")

    def gather8(self, loads, vtag, active, skip):
        e = self.e
        top, chk = self.lab("gat"), self.lab("gchk")
        cur = [None]

        def lanes(m):
            if cur[0] != m:
                e(f"s_mov_b64 exec, {m}")
                cur[0] = m
        if skip:
            for ld, m in zip(loads, active):
                lanes(m)
                self.issue(ld)
            e(f"s_branch {chk}")
        e(f"{top}:")
        self.budget()
        cur[0] = None if len(set(active)) > 1 or active[0] != "-1" else "-1"
        for k, (ld, m) in enumerate(zip(loads, active)):
            if skip:
                e(f"s_cmp_lg_u64 s[{64+2*k}:{65+2*k}], 0\ns_cselect_b64 exec, {m}, 0")
            else:
                lanes(m)
            self.issue(ld)
        e(f"{chk}:")
        if skip:
            cur[0] = None
        order = list(range(len(loads)))[::-1]
        lanes(active[order[0]])
        e("s_waitcnt vmcnt(0)")
        for k in order:
            lanes(active[k])
            e(f"v_cmp_ne_u32_sdwa s[{64+2*k}:{65+2*k}], v{loads[k][1]}, v{vtag} src0_sel:BYTE_0 src1_sel:DWORD")
        e("s_or_b64 s[62:63], s[64:65], s[66:67]")
        for k in range(2, len(loads)):
            e(f"s_or_b64 s[62:63], s[62:63], s[{64+2*k}:{65+2*k}]")
        e(f"s_cbranch_scc1 {top}")
        lanes("-1")
        for ld in loads:
            e(f"v_and_b32 v{ld[1]}, 0xffffff00, v{ld[1]}")

    def lds_wait(self, vaddr, off, sreg, need, sleep):
        e = self.e
        top, go = self.lab("lw"), self.lab("lgo")
        e(f"s_cmp_ge_u32 s{sreg}, {need}\ns_cbranch_scc1 {go}\n{top}:")
        e(f"ds_read_b32 v1, v{vaddr} offset:{off}\ns_waitcnt lgkmcnt(0)\nv_readfirstlane_b32 s{sreg}, v1")
        e(f"s_cmp_ge_u32 s{sreg}, {need}\ns_cbranch_scc1 {go}")
        self.budget()
        if sleep:
            e(f"s_sleep {sleep}")
        e(f"s_branch {top}\n{go}:")

    def dma_step(self, vaddr, srd, lds_sreg_or_imm, pol):
        self.e(f"s_mov_b32 m0, {lds_sreg_or_imm}\ns_nop 0")
        self.e(f"buffer_load_dwordx4 v{vaddr}, s[{srd}:{srd+3}], s58 offen {pol} lds")

    def tr_reads(self, dst, vtr, off):
        self.e(f"ds_read_b64_tr_b16 v[{dst}:{dst+1}], v{vtr} offset:{off}")
        self.e(f"ds_read_b64_tr_b16 v[{dst+2}:{dst+3}], v{vtr} offset:{off+512}")

    def loader(self):
        e, D, lev = self.e, self.D, self.lev
        ng = self.ini or D // 4
        AT = self.atpos
        T = self.t

        def addr(m):
            return sum(1 << T[b] for b in range(11) if m >> b & 1)

        def unit(n):
            return addr(4 * n)

        def scatter(dst, lo, hi):
            src, b = 58, lo
            while b < hi:
                n = 1
                while b + n < hi and T[b + n + 2] == T[b + 2] + n:
                    n += 1
                e(f"s_bfe_u32 s59, s40, {b | n << 16}\ns_lshl_b32 s59, s59, {T[b+2]}\ns_xor_b32 s{dst}, s{src}, s59")
                src, b = dst, b + n

        def load(k):
            e(f"buffer_load_dwordx4 v{10+k}, s[32:35], s41 offen offset:{k*1024} {self.kvpol} lds")

        def loads():
            for k in range(4):
                load(k)

        def limit():
            e(f"v_min3_u32 v5, v6, v7, v8\ns_nop 0\nv_readfirstlane_b32 s44, v5\ns_lshl_b32 s44, s44, 1\ns_add_u32 s44, s44, {2*NSLOT}")

        e('; ================ loader ================')
        e("L_loader:\ns_setprio 3")
        e(f"v_lshlrev_b32 v1, 4, v0\nv_lshlrev_b32 v2, 2, v0\nv_add_u32 v2, {FULL}, v2\nv_mov_b32 v3, {FREE}")
        e(f"v_mov_b32 v6, 0\nv_mov_b32 v7, 0\nv_mov_b32 v8, 0\nv_mov_b32 v4, {ng - D//4 + 1}")
        for k in range(4):
            e(f"v_add_u32 v{10+k}, {addr(k) - 1024*k}, v1")
        e("s_lshr_b32 s30, s100, 3\ns_lshl_b32 s30, s30, 24\ns_mov_b32 s58, 0")
        for b in range(8):
            m = (1 << self.jb[b] if b < 3 else 0) | (sum(1 << q for q in self.xk[b]) if b < len(self.xk) else 0)
            if m:
                e(f"s_bitcmp1_b32 s100, {b}\ns_cselect_b32 s59, {m}, 0\ns_xor_b32 s58, s58, s59")
        e("s_mov_b32 s31, 0x200000\ns_waitcnt lgkmcnt(0)")
        self.stamp(0)
        e(f"s_add_u32 s32, s6, s30\ns_addc_u32 s33, s7, 0\ns_mov_b32 s34, 0x1000000\ns_mov_b32 s35, 0x20000")
        for n in range(ng):
            if n == self.eb:
                e("s_barrier")
            e(f"s_mov_b32 m0, {n*4096}\ns_xor_b32 s41, s58, {unit(n)}")
            loads()
        e(f"s_mov_b32 s40, {ng}\ns_mov_b32 s57, {ng*4096}\ns_mov_b32 s44, {2*NSLOT}\ns_mov_b32 s45, {lev.index(D) if self.lev0 is None else self.lev0}")
        e(f"s_lshr_b32 s49, s2, 3\ns_lshl_b32 s48, s49, 5\ns_or_b32 s49, s49, s48\ns_bfe_u32 s49, s49, {0x50000 + self.sh0}")
        e(f"s_mov_b32 s50, {WS_CTR}\ns_and_b32 s48, s49, {self.nsh-1}\ns_mul_i32 s48, s48, {self.cst}\ns_add_u32 s48, s48, s50")
        e("s_mov_b32 s52, 0\ns_mov_b32 s62, 0")
        if self.boost:
            self.mlp_ids()
            e(f"s_cselect_b32 s56, 0, {self.boost[0]}")
        if self.mix:
            e("s_lshr_b32 s53, s2, 1" if self.mix == 3 else "s_mov_b32 s53, s2")
        if self.eb >= ng:
            e("s_barrier")
        e("L_ld0:\ns_cmp_lt_u32 s40, s44\ns_cbranch_scc0 L_lds0\nL_ldb0:")
        scatter(41, 0, (self.cstart - 1).bit_length())
        e(f"s_and_b32 m0, s57, {NSLOT*8192-1}\ns_waitcnt vmcnt({D-4})")
        loads()
        e("ds_write_b32 v2, v4\ns_waitcnt lgkmcnt(1)\nv_min3_u32 v5, v6, v7, v8\nds_read_b96 v[6:8], v3")
        e(f"v_readfirstlane_b32 s44, v5\nv_add_u32 v4, 1, v4\ns_add_u32 s40, s40, 1\ns_add_u32 s57, s57, 4096")
        e(f"s_lshl_b32 s44, s44, 1\ns_add_u32 s44, s44, {2*NSLOT}")
        for k, n in enumerate(self.prog or []):
            e(f"s_cmp_eq_u32 s40, {n}\ns_cbranch_scc1 L_pq{k}\nL_pr{k}:")
        e(f"s_cmp_lt_u32 s40, {self.cstart}\ns_cbranch_scc1 L_ld0")
        depths = sorted(set(lev))
        e("L_lap:\ns_sub_u32 s51, s44, s40")
        scatter(42, 5, 9)
        for d in depths[:0:-1]:
            e(f"s_cmp_ge_u32 s45, {lev.index(d)}\ns_cbranch_scc1 L_lap{d}")
        stubs = []
        fing = self.fing or [self.fin[0]] * len(depths)
        for dd in depths:
            d = dd % 100
            G = self.G
            pub = [m for m in range(0, 128, G) if (m - d + G) % 8 < G]
            e(f"L_lap{dd}:\ns_sub_u32 s43, s40, {-2*((pub[0] - d + G)//8)}\nv_mov_b32 v4, s43")
            for g in range(32):
                if self.fin and g == fing[depths.index(dd)]:
                    e(f"s_cmp_eq_u32 s40, 992\ns_cbranch_scc1 L_final{g}")
                if g % 4 == 0:
                    e(f"s_cmp_lt_u32 s51, {g+4}\ns_cbranch_scc1 L_lx{dd}_{g}\nL_lr{dd}_{g}:")
                    stubs.append((dd, g))
                e(f"s_mov_b32 m0, {g*4096}\ns_xor_b32 s41, s42, {unit(g)}")
                wrote = False
                for k in range(4):
                    if k % G == 0:
                        e(f"s_waitcnt vmcnt({d-G})")
                    load(k)
                    if k % G == G - 1 and 4 * g + k - G + 1 in pub:
                        e("ds_write_b32 v2, v4\nv_add_u32 v4, 2, v4")
                        wrote = True
                fresh = g < AT or g >= 30
                if g % 8 == 6 and fresh:
                    e("ds_read_b96 v[6:8], v3")
                if g % 8 == 7 and fresh:
                    e(f"s_waitcnt lgkmcnt({1 if wrote and g != 31 else 0})")
                    limit()
                    if g != 31:
                        e("s_sub_u32 s51, s44, s40")
                if g == AT - 1:
                    e("s_mov_b32 s47, 1\ns_atomic_add s47, s[28:29], s48 glc")
            if dd != depths[-1]:
                e("s_branch L_lapend")
        nq = 4 if self.esc else len(lev) - (self.boost[2] if self.boost else 0)
        sh = (256 // self.nsh // nq).bit_length() - 1
        e("L_lapend:")
        if self.pi:
            kp, ki, lk, cen = self.pi
            e(f"s_sub_i32 s47, s47, {128//self.nsh}\ns_ashr_i32 s46, s52, {lk}\ns_sub_i32 s52, s52, s46\ns_add_i32 s52, s52, s47")
            e(f"s_mul_i32 s45, s47, {kp}\ns_mul_i32 s46, s52, {ki}\ns_add_i32 s45, s45, s46\ns_add_i32 s45, s45, {cen}")
            e("s_ashr_i32 s45, s45, 8\ns_max_i32 s45, s45, 0")
        else:
            e(f"s_lshr_b32 s45, s47, {sh}")
        if self.esc:
            lo, uth, ush, dth, dn = self.esc
            e(f"s_add_u32 s52, s52, 1\ns_cmp_ge_u32 s47, {uth}\ns_cselect_b32 s52, s52, 0\ns_lshr_b32 s46, s52, {ush}\ns_add_u32 s45, s45, s46")
            if lo:
                e(f"s_add_u32 s62, s62, 1\ns_cmp_lt_u32 s47, {dth}\ns_cselect_b32 s62, s62, 0")
                e(f"s_cmp_lt_u32 s62, {dn}\ns_addc_u32 s45, s45, 0")
        if self.boost:
            e(f"s_cmp_lt_u32 s40, s56\ns_cselect_b32 s46, {self.boost[1]}, 0\ns_add_u32 s45, s45, s46")
        if self.mix:
            e(f"s_sub_u32 s46, s40, {self.mixat}\ns_cmp_lt_u32 s46, {self.mixto-self.mixat}\ns_cselect_b32 s46, s53, 0")
            e(f"s_add_u32 s49, s49, s46\ns_add_u32 s50, s50, {self.cst*self.nsh}")
            if self.mix == 2:
                e("s_sub_u32 s53, 0, s53")
            e(f"s_and_b32 s48, s49, {self.nsh-1}\ns_mul_i32 s48, s48, {self.cst}\ns_add_u32 s48, s48, s50\ns_add_u32 s40, s40, 32")
        elif self.rot:
            e(f"s_lshl_b32 s48, s49, 5\ns_or_b32 s49, s49, s48\ns_bfe_u32 s49, s49, {0x50000 + self.rot}\ns_add_u32 s50, s50, {self.cst*self.nsh}")
            e(f"s_and_b32 s48, s49, {self.nsh-1}\ns_mul_i32 s48, s48, {self.cst}\ns_add_u32 s48, s48, s50\ns_add_u32 s40, s40, 32")
        else:
            e(f"s_add_u32 s48, s48, {self.cst*self.nsh}\ns_add_u32 s40, s40, 32")
        if self.stamps:
            e("s_add_u32 s96, s96, s45")
        for k, n in enumerate(self.prog or []):
            e(f"s_cmp_lg_u32 s40, {n}\ns_cbranch_scc1 L_pg{k}")
            self.stamp(3 + k)
            e(f"L_pg{k}:")
        e("s_and_b32 s46, s40, 511\ns_cbranch_scc1 L_lap")
        last = max(lev)
        if self.fin:
            g0, last = min(fing), self.fin[1]
            e("s_branch L_tov")
            self.L.append("@SPOT")
            for g in sorted(set(fing), reverse=True):
                e(f"L_final{g}:\nv_subrev_u32 v4, 2, v4")
                if g != g0:
                    e(f"s_branch L_fg{g}")
            for g in range(g0, 32):
                e(f"L_fg{g}:")
                if g % 4 == 0:
                    e(f"s_cmp_lt_u32 s51, {g+4}\ns_cbranch_scc1 L_lxf_{g}\nL_lrf_{g}:")
                    stubs.append(("f", g))
                e(f"s_mov_b32 m0, {g*4096}\ns_xor_b32 s41, s42, {unit(g)}\ns_waitcnt vmcnt({last-4})")
                loads()
                if (g - last // 4 + 1) % 2 == 0:
                    e(f"v_max_u32 v4, {992 + g - last//4 + 1}, v4\nds_write_b32 v2, v4")
        else:
            e("s_cmp_lt_u32 s40, 1024\ns_cbranch_scc1 L_tov")
            e("v_subrev_u32 v4, 2, v4")
        for k in range((last + 3) // 4, -1, -1):
            if k % 2 == 0 and 4 * k < 64:
                e(f"v_max_u32 v4, {1024-k}, v4\ns_waitcnt vmcnt({4*k})\nds_write_b32 v2, v4")
        if self.fin:
            e("s_waitcnt lgkmcnt(0)")
        self.stamp(2)
        e("s_branch L_gtail")
        self.L.append("@SPOT")
        e("L_tov:\ns_add_u32 s32, s8, s30\ns_addc_u32 s33, s9, 0")
        self.stamp(1)
        e("s_branch L_lap")
        e("L_lds0:\ns_sleep 1\nds_read_b96 v[6:8], v3\ns_waitcnt lgkmcnt(0)")
        limit()
        self.budget()
        if self.stamps:
            e("s_add_u32 s98, s98, 1")
        e("s_cmp_lt_u32 s40, s44\ns_cbranch_scc1 L_ldb0\ns_branch L_lds0")
        for k, n in enumerate(self.prog or []):
            e(f"L_pq{k}:")
            self.stamp(3 + k)
            e(f"s_branch L_pr{k}")
        for d, g in stubs:
            e(f"L_lx{d}_{g}:\ns_mov_b32 s46, {g+4}\ns_call_b64 s[60:61], L_room\ns_branch L_lr{d}_{g}")
        e("L_room:\nds_read_b96 v[6:8], v3\ns_waitcnt lgkmcnt(0)")
        limit()
        self.budget()
        if self.stamps:
            e("s_add_u32 s98, s98, 1")
        e("s_sub_u32 s51, s44, s40\ns_cmp_lt_u32 s51, s46\ns_cbranch_scc1 L_room\ns_setpc_b64 s[60:61]")

    def code_prefetch(self):
        e = self.e
        K = NAME + "_kernel"
        e("s_cmp_lg_u32 s3, 2\ns_cbranch_scc1 L_nol2\ns_getpc_b64 s[60:61]\nL_pc:")
        e(f"s_sub_u32 s60, s60, L_pc-{K}\ns_subb_u32 s61, s61, 0\ns_lshr_b32 s62, s2, 3\ns_lshl_b32 s62, s62, 10")
        e(f"v_lshl_add_u32 v10, v0, 4, s62\nv_min_u32 v10, L_last-{K}-16, v10\nv_and_b32 v10, -16, v10")
        e("v_mov_b32 v11, s61\nv_add_co_u32 v10, vcc, s60, v10\ns_nop 1\nv_addc_co_u32 v11, vcc, 0, v11, vcc")
        e("global_load_dwordx4 v[16:19], v[10:11], off\nL_nol2:")

    def consumer(self):
        e = self.e
        NP = self.prepull
        BUF = [64 + 32 * u for u in range(NP)]
        QB, DQ, O0, O1, AP, MK, P = 32, 16, 20, 24, 32, 28, 12
        vK, vV, vA, vM, vS, vSL = 3, 4, 5, 6, 7, 8
        vF, vT, vOA = 48, 49, 50

        def pull(buf, vbase, sleep=1):
            e("s_lshl_b32 s43, s40, 1\ns_add_u32 s43, s43, 2")
            self.lds_wait(vM, FULL - MISC, 42, "s43", sleep)
            e(f"s_and_b32 s44, s40, {NSLOT-1}\ns_lshl_b32 s44, s44, 13\nv_add_u32 v{vA}, s44, v{vbase}")
            for k in range(8):
                e(f"ds_read_b128 v[{buf+4*k}:{buf+4*k+3}], v{vA} offset:{(k>>1)*2048+(k&1)*256}")

        def release():
            e(f"v_mov_b32 v1, s41\nds_write_b32 v9, v1")

        def qk(buf, counted):
            for k in range(8):
                if counted:
                    e(f"s_waitcnt lgkmcnt({7-k})")
                c = "0" if k == 0 else f"v[{DQ}:{DQ+3}]"
                e(f"v_mfma_f32_16x16x32_bf16 v[{DQ}:{DQ+3}], v[{buf+4*k}:{buf+4*k+3}], v[{QB+4*k}:{QB+4*k+3}], {c}")
            if counted:
                release()
                e("s_nop 5")
            else:
                e("s_nop 7")
            e(f"v_mov_b32_dpp v10, v{DQ} quad_perm:[0,0,0,0] {DPPF}")
            e(f"v_mov_b32_dpp v11, v{DQ+2} quad_perm:[2,2,2,2] {DPPF}\ns_nop 0")
            e(f"v_add_f32_dpp v10, v{DQ+1}, v10 quad_perm:[1,1,1,1] {DPPF}")
            e(f"v_add_f32_dpp v11, v{DQ+3}, v11 quad_perm:[3,3,3,3] {DPPF}")
            e("v_add_f32 v10, v10, v11")
            self.rbf1(10)

        e('; ================ consumers ================')
        e("L_consumer:\ns_sub_u32 s30, s3, 1\ns_mov_b32 s31, 0x200000\ns_mov_b32 s42, 0\ns_waitcnt lgkmcnt(0)\ns_barrier")
        if self.l2warm == 1:
            self.code_prefetch()
        e(f"v_mov_b32 v{vM}, {MISC}")
        e("v_lshrrev_b32 v13, 4, v0\nv_and_b32 v14, 15, v0\nv_bfe_u32 v15, v0, 2, 2\nv_and_b32 v2, 3, v0")
        e(f"v_lshlrev_b32 v{vK}, 6, v13\nv_lshl_add_u32 v{vK}, v2, 4, v{vK}\nv_mov_b32 v12, v{vK}")
        e(f"v_lshl_add_u32 v{vK}, v15, 9, v{vK}")
        e(f"v_lshlrev_b32 v{vV}, 9, v13\nv_lshl_add_u32 v{vV}, v14, 4, v{vV}")
        e(f"s_mul_i32 s45, s30, {SC_STRIDE}\ns_add_u32 s45, s45, {SC}")
        e(f"v_and_b32 v{vS}, 60, v0\nv_add_u32 v{vS}, s45, v{vS}")
        e(f"v_lshlrev_b32 v{vSL}, 4, v0\nv_add_u32 v{vSL}, s45, v{vSL}")
        e(f"s_lshl_b32 s46, s30, 2\ns_add_u32 s46, s46, {FREE}\nv_mov_b32 v9, s46")
        e("v_and_b32 v1, 1, v0\nv_mov_b32 v10, 0xffff\nv_lshlrev_b32 v1, 4, v1\nv_lshlrev_b32 v10, v1, v10")
        e("v_lshrrev_b32 v1, 1, v14")
        for r in range(4):
            e(f"v_cmp_eq_u32 vcc, {r}, v1\ns_nop 1\nv_cndmask_b32 v{MK+r}, 0, v10, vcc")
        e("s_mov_b32 s40, s30")
        for u in range(NP):
            pull(BUF[u], vK)
            e("s_add_u32 s41, s40, 3\ns_waitcnt lgkmcnt(0)")
            release()
            e("s_mov_b32 s40, s41")
        e("s_mov_b32 s47, 0")
        self.stamp(0)
        self.lds_wait(vM, QRDY - MISC, 47, 1, 1)
        self.stamp(1)
        e(f"v_add_u32 v12, {QV}, v12")
        e(f"ds_read_b128 v[{O0}:{O0+3}], v12\nds_read_b128 v[{O0+4}:{O0+7}], v12 offset:256\ns_waitcnt vmcnt(0)")
        for r in range(4):
            e(f"v_mov_b32 v{DQ+r}, 0xff800000")
        e(f"ds_write_b128 v{vSL}, v[{DQ}:{DQ+3}] offset:5120\ns_waitcnt lgkmcnt(0)")
        for t in range(4):
            e(f"v_cmp_eq_u32 vcc, {t}, v15\ns_nop 1")
            for k in range(8):
                e(f"v_cndmask_b32 v{QB+8*t+k}, 0, v{O0+k}, vcc")
        for r in range(8):
            e(f"v_mov_b32 v{O0+r}, 0")
        qk(BUF[0], False)
        e(f"ds_write_b32 v{vS}, v10")
        e(f"v_add_u32 v2, {64*NP}, v{vS}\ns_add_u32 s48, s30, 256")
        e("L_kloop:")
        e("s_add_u32 s41, s40, 3\ns_cmp_lt_u32 s41, 256\ns_cselect_b32 s41, s41, s48")
        pull(BUF[0], vK)
        qk(BUF[0], True)
        e("ds_write_b32 v2, v10\nv_add_u32 v2, 64, v2")
        e("s_mov_b32 s40, s41\ns_cmp_lt_u32 s40, 256\ns_cbranch_scc1 L_kloop")
        for u in range(1, NP):
            qk(BUF[u], False)
            e(f"ds_write_b32 v{vS}, v10 offset:{64*u}")
        self.stamp(2)
        S = BUF[0]
        for k in range(6):
            e(f"ds_read_b128 v[{S+4*k}:{S+4*k+3}], v{vSL} offset:{1024*k}")
        e("s_waitcnt lgkmcnt(0)")
        e(f"v_max_f32 v10, v{S}, v{S+1}")
        for k in range(2, 24, 2):
            e(f"v_max3_f32 v10, v10, v{S+k}, v{S+k+1}")
        self.wave_reduce("v_max_f32", [10])
        e(f"v_readlane_b32 s50, v10, 63\ns_mov_b32 s51, {hex(C2)}\ns_nop 0")
        for k in range(24):
            e(f"v_subrev_f32 v{S+k}, s50, v{S+k}")
        for k in range(24):
            e(f"v_mul_f32 v{S+k}, s51, v{S+k}")
        for k in range(24):
            e(f"v_exp_f32 v{S+k}, v{S+k}")
        e(f"v_add_f32 v10, v{S}, v{S+1}")
        for k in range(2, 24):
            e(f"v_add_f32 v10, v10, v{S+k}")
        for k in range(24):
            e(f"v_cvt_pk_bf16_f32 v{S+k}, v{S+k}, v{S+k}")
        for k in range(6):
            e(f"ds_write_b128 v{vSL}, v[{S+4*k}:{S+4*k+3}] offset:{1024*k}")
        self.wave_reduce("v_add_f32", [10])
        e(f"v_readlane_b32 s52, v10, 63\nv_mov_b32 v{DQ}, s50\nv_mov_b32 v{DQ+2}, 1\nv_mov_b32 v{DQ+3}, 1")
        e(f"v_mov_b32 v{DQ+1}, s52\ns_lshl_b32 s46, s30, 4\ns_add_u32 s46, s46, {ML}\nv_mov_b32 v1, s46")
        e(f"ds_write_b128 v1, v[{DQ}:{DQ+3}]\nv_mov_b32 v2, v{vS}\ns_mov_b32 s49, 460")
        self.srd(32, 28, WS_SIZE)
        e(f"s_mov_b32 s53, 0xffffff00\ns_lshl_b32 s54, s100, 10\ns_add_u32 s54, s54, {WS_OP}")
        e(f"v_lshlrev_b32 v{vOA}, 4, v0")
        self.stamp(3)
        T = BUF[1]

        def partials():
            e(f"ds_read_b64 v[10:11], v{vM} offset:{PF-MISC}")
            e(f"ds_read_b128 v[{T}:{T+3}], v{vSL} offset:{SC_STRIDE}\nds_read_b128 v[{T+4}:{T+7}], v{vSL} offset:{2*SC_STRIDE}")

        def pv(last):
            e(f"s_add_u32 s41, s40, 3\nds_read_b32 v{P}, v2\nv_add_u32 v2, 64, v2\ns_waitcnt lgkmcnt(0)")
            for t in range(4):
                for r in range(4):
                    e(f"v_and_b32_dpp v{AP+4*t+r}, v{P}, v{MK+r} row_newbcast:{4*t} {DPPF}")
            pull(BUF[0], vV, self.csleep if last else 1)
            if last:
                partials()
            for k in range(8):
                o = O0 if k % 2 == 0 else O1
                a = AP + 4 * (k >> 1)
                e(f"s_waitcnt lgkmcnt({7-k+3*last})")
                e(f"v_mfma_f32_16x16x32_bf16 v[{o}:{o+3}], v[{a}:{a+3}], v[{BUF[0]+4*k}:{BUF[0]+4*k+3}], v[{o}:{o+3}]")

        e('; P*V')
        e("L_vloop:")
        pv(False)
        release()
        e("s_mov_b32 s40, s41\ns_cmp_lt_u32 s40, s49\ns_cbranch_scc1 L_vloop")
        e("s_cmp_lt_u32 s40, 511\ns_cbranch_scc1 L_vmid")
        e("s_cmp_lg_u32 s30, 0\ns_cbranch_scc1 L_cpart")
        pv(True)
        e("L_csum:\ns_waitcnt lgkmcnt(0)\nv_and_b32 v10, v10, v11")
        self.pk("add", T, T, T + 4)
        self.pk("add", T + 2, T + 2, T + 6)
        e("v_readfirstlane_b32 s46, v10\ns_cmp_eq_u32 s46, 0\ns_cbranch_scc1 L_cretry\ns_nop 0")
        for r in range(4):
            e(f"v_permlane32_swap_b32 v{O0+r}, v{O1+r}")
        for r in range(4):
            e(f"v_fmac_f32 v{T+r}, v{O0+r}, v{vF}")
        e(f"v_and_or_b32 v{T}, v{T}, s53, v{vT}")
        if self.fast:
            e("s_cmp_lg_u32 s47, 2\ns_cbranch_scc1 L_cfar")
            e(f"buffer_store_dwordx4 v[{T}:{T+3}], v{vOA}, s[32:35], s54 offen {self.npol}")
            self.stamp(4)
            e("s_branch L_gtail\nL_cfar:")
        e(f"buffer_store_dwordx4 v[{T}:{T+3}], v{vOA}, s[32:35], s54 offen sc1")
        self.stamp(4)
        e("s_branch L_gtail")
        e("L_cretry:")
        self.budget()
        partials()
        e("s_branch L_csum")
        self.L.append("@SPOT")
        e("L_cpart:")
        for r in range(4):
            e(f"v_permlane32_swap_b32 v{O0+r}, v{O1+r}")
        for r in range(4):
            e(f"v_mul_f32 v{O0+r}, v{O0+r}, v{vF}")
        e(f"v_mov_b32 v1, 1\nds_write_b128 v{vSL}, v[{O0}:{O0+3}]\nds_write_b32 v9, v1 offset:{PF-4-FREE}\ns_branch L_gtail")
        e("L_vmid:\ns_mov_b32 s47, 0")
        self.lds_wait(vM, FS + 12 - MISC, 47, 1, 2)
        e(f"ds_read_b32 v{vF}, v9 offset:{FS-FREE}\nds_read_b32 v{vT}, v{vM} offset:{TAG-MISC}")
        e(f"s_mov_b32 s49, 511\ns_waitcnt lgkmcnt(0)\nv_and_b32 v{vT}, 0xff, v{vT}")
        e("s_branch L_vloop")

    def unit_mfma_lds(self, B, A, vA, nsteps, D, off=0):
        for s in range(nsteps):
            self.e(f"ds_read_b128 v[{A+4*s}:{A+4*s+3}], v{vA} offset:{off+64*s}")
        for s in range(nsteps):
            self.e(f"s_waitcnt lgkmcnt({nsteps-1-s})")
            c = "0" if s == 0 else f"v[{D}:{D+3}]"
            self.e(f"v_mfma_f32_16x16x32_bf16 v[{D}:{D+3}], v[{A+4*s}:{A+4*s+3}], v[{B+4*s}:{B+4*s+3}], {c}")
        self.e("s_nop 7")

    def unit_mfma_dpp(self, B, src, A, D):
        def bc(s):
            for r in (0, 2):
                d = A + 4 * (s % 3) + r
                self.e(f"v_mov_b64_dpp v[{d}:{d+1}], v[{src+r}:{src+r+1}] row_newbcast:{s} {DPPF}")
        self.e("s_nop 1")
        bc(0)
        for s in range(14):
            if s < 13:
                bc(s + 1)
            else:
                self.e("s_nop 0")
            a = A + 4 * (s % 3)
            c = "0" if s == 0 else f"v[{D}:{D+3}]"
            self.e(f"v_mfma_f32_16x16x32_bf16 v[{D}:{D+3}], v[{a}:{a+3}], v[{B+4*s}:{B+4*s+3}], {c}")
        self.e("s_nop 7")

    def soft_barrier(self, vM):
        self.e(f"s_add_u32 s45, s45, 4\nv_mov_b32 v1, 1\ns_mov_b64 exec, 1\n"
               f"ds_add_u32 v{vM}, v1 offset:{BAR-MISC}\ns_mov_b64 exec, -1")
        self.lds_wait(vM, BAR - MISC, 44, "s45", 2)

    def unit_load(self, dst, rounds, stride, advance, pol):
        e = self.e
        e(f"s_lshl_b32 s60, s30, 4\nv_add_u32 v9, s60, v6\nv_mul_u32_u24 v9, {stride}, v9\nv_add_u32 v9, v9, v7")
        e(f"v_add_u32 v14, {8*stride}, v9\ns_mov_b32 s40, {advance}")
        if self.bl:
            bl = self.bl[0] if rounds == 4 else self.bl[1] if stride > 896 else self.bl[-1]
            for r0 in range(0, rounds, bl):
                if self.rpace and rounds > 4:
                    e("s_call_b64 s[42:43], L_pace")
                for rd in range(r0, min(r0 + bl, rounds)):
                    d = dst + 8 * rd
                    e(f"buffer_load_dwordx4 v[{d}:{d+3}], v9, s[36:39], s58 offen {pol}")
                    e(f"buffer_load_dwordx4 v[{d+4}:{d+7}], v14, s[36:39], s58 offen {pol}\ns_add_u32 s58, s58, s40")
                e("s_waitcnt vmcnt(0)")
                for rd in range(r0, min(r0 + bl, rounds)):
                    d = dst + 8 * rd
                    e(f"s_call_b64 s[42:43], L_meet\nds_write_b128 v15, v[{d}:{d+3}]\nds_write_b128 v15, v[{d+4}:{d+7}] offset:1024")
                    e("s_call_b64 s[42:43], L_meet")
                    self.tr_reads(d, 8, 0)
                    self.tr_reads(d + 4, 8, 4096)
            return
        self.stage_pols.add(pol)
        halves = self.spf[0] if rounds == 4 else self.spf[1]
        if halves:
            e(f"s_mul_i32 s63, s30, {16*stride}")
            self.touch.add((stride, halves))
        for rd in range(rounds):
            if halves:
                e(f"s_call_b64 s[42:43], L_touch{stride}_{halves}")
            e(f"s_call_b64 s[42:43], L_stage{pol}")
            self.tr_reads(dst + 8 * rd, 8, 0)
            self.tr_reads(dst + 8 * rd + 4, 8, 4096)

    def stage_subs(self, vM):
        e = self.e
        if self.bl:
            e("; rendezvous of the four service waves\nL_meet:\ns_waitcnt lgkmcnt(0)")
            self.soft_barrier(vM)
            e("s_setpc_b64 s[42:43]")
            if self.rpace:
                e("L_pace:")
                self.lds_wait(vM, FULL - MISC, 47, "s41", 16)
                e("s_add_u32 s41, s41, s46\ns_setpc_b64 s[42:43]")
        for stride, halves in sorted(self.touch):
            e(f"; scalar reads bring this wave's 16 rows of the next block into L2 without holding up the vector path")
            e(f"L_touch{stride}_{halves}:")
            if self.rpace or self.opace:
                self.lds_wait(vM, FULL - MISC, 47, "s41", 16)
            e("s_add_u32 s62, s58, s63")
            for r in range(16):
                for h in range(halves):
                    e(f"s_buffer_load_dword s61, s[36:39], s62 offset:{r*stride + 64*h}")
            e("s_waitcnt lgkmcnt(0)\ns_setpc_b64 s[42:43]")
        for pol in sorted(self.stage_pols):
            e('; one [64 x 64] weight block through the staging area')
            e(f"L_stage{pol}:\ns_waitcnt lgkmcnt(0)")
            if self.rpace or self.opace:
                self.lds_wait(vM, FULL - MISC, 47, "s41", 16)
                e("s_add_u32 s41, s41, s46")
            self.soft_barrier(vM)
            self.dma_step(9, 36, "s57", pol)
            self.dma_step(14, 36, "s59", pol)
            e("s_add_u32 s58, s58, s40\ns_waitcnt vmcnt(0)")
            self.soft_barrier(vM)
            e("s_setpc_b64 s[42:43]")

    def sum_round(self, a, b, n, tmp):
        for k in range(n):
            self.e(f"v_add_f32 v{a+k}, v{a+k}, v{b+k}")
        if n == 1:
            self.rbf1(a)
        else:
            self.rbf_pairs(list(range(a, a + n)), tmp)

    def mlp_ids(self):
        e = self.e
        e("s_and_b32 s60, s100, 7")
        if not self.xl:
            e("s_bfe_u32 s54, s2, 0x10005\ns_bfe_u32 s55, s2, 0x20003\ns_lshl_b32 s61, s60, 2\ns_add_u32 s55, s55, s61")
            e("s_lshr_b32 s61, s2, 6\ns_cmp_eq_u32 s61, 1")
        elif self.xm:
            e("s_bfe_u32 s54, s2, 0x10002\ns_lshr_b32 s55, s2, 6\ns_mul_i32 s55, s55, 7\ns_add_u32 s55, s55, s60")
            e(f"s_and_b32 s61, s2, 3\ns_cmp_eq_u32 s61, {self.mxs}")
        else:
            e("s_bfe_u32 s54, s2, 0x10006\ns_bfe_u32 s55, s2, 0x20001\ns_mul_i32 s55, s55, 7\ns_add_u32 s55, s55, s60")
            e("s_and_b32 s61, s2, 0x81\ns_cmp_eq_u32 s61, 0")
        e("s_cselect_b32 s60, s60, 7\ns_lshl_b32 s101, s54, 5\ns_add_u32 s101, s101, s55")
        e("s_cmp_eq_u32 s60, 7\ns_cselect_b32 s101, 64, s101")

    def service(self):
        e = self.e
        WO, W1, W2 = 32, 64, 120
        OCB, SB, GA, XP, GB, F = 176, 184, 192, 194, 196, 240
        RAW, AD, DD = 200, 232, 244
        vT8, vT16, vM, vT3 = 10, 11, 12, 252
        LM, HM = "s[50:51]", "s[52:53]"
        e("L_service:\ns_sub_u32 s30, s3, 4\ns_mov_b32 s31, 0x80000")
        e("s_and_b32 s48, s100, 7\ns_lshr_b32 s49, s100, 3")
        e("s_mov_b32 s50, 0x3fff3fff\ns_mov_b32 s51, 0x3fff3fff\ns_mov_b32 s52, 0x0fffffff\ns_mov_b32 s53, 0x0fffffff")
        e("v_mov_b32 v2, 0\nv_lshrrev_b32 v3, 4, v0\nv_and_b32 v4, 15, v0")
        e("v_lshlrev_b32 v5, 6, v4\nv_lshl_add_u32 v5, v3, 4, v5")
        e("v_lshrrev_b32 v6, 3, v0\nv_and_b32 v7, 7, v0\nv_lshlrev_b32 v7, 4, v7")
        e("v_lshlrev_b32 v8, 10, v3\nv_bfe_u32 v1, v0, 2, 2\nv_lshl_add_u32 v8, v1, 7, v8")
        e("v_and_b32 v1, 3, v0\nv_lshl_add_u32 v8, v1, 3, v8")
        e(f"v_mov_b32 v{vM}, {MISC}\ns_mov_b32 s47, 0\ns_waitcnt lgkmcnt(0)\ns_barrier")
        self.srd(32, 28, WS_SIZE)
        e("s_cmp_eq_u32 s30, 0\ns_cbranch_scc1 L_pro")
        self.lds_wait(vM, QRDY - MISC, 47, 1, 8)
        if self.vtouch:
            e("s_lshl_b32 s60, s100, 21\ns_add_u32 s36, s8, s60\ns_addc_u32 s37, s9, 0\ns_mov_b32 s38, 0x200000\ns_mov_b32 s39, 0x20000")
            e("s_cmp_lg_u32 s30, 1\ns_cbranch_scc1 L_notouch\nbuffer_load_dword v16, v2, s[36:39], 0 offen nt\nL_notouch:")
        e(f"ds_read_b32 v1, v{vM} offset:{TAG-MISC}\ns_waitcnt lgkmcnt(0)\nv_readfirstlane_b32 s56, v1")
        e(f"v_and_b32 v{vT8}, 0xff, v1\nv_and_b32 v{vT16}, 0xffff, v1\nv_and_b32 v{vT3}, 7, v1\ns_branch L_bg")

        PB, PA, PRAW, PCL, PN, PC, PD = 32, 144, 144, 176, 208, 224, 232
        e("L_pro:")
        self.stamp(0)
        e("s_load_dword s56, s[28:29], 0")
        e("s_cmp_ge_u32 s2, 128\ns_cselect_b32 s55, s100, s2" if self.qloc else "s_mov_b32 s55, s2")
        e("s_and_b32 s54, s55, 1\ns_bfe_u32 s55, s55, 0x60001")
        e("s_cmp_ge_u32 s2, 128")
        e("s_cselect_b32 s36, s4, s20\ns_cselect_b32 s37, s5, s21\ns_mov_b32 s38, 1792\ns_mov_b32 s39, 0x20000")
        e("s_cselect_b32 s40, s10, s22\ns_cselect_b32 s41, s11, s23\ns_mov_b32 s43, 0x20000")
        e(f"s_mov_b32 s46, 5376\ns_cselect_b32 s46, 8192, s46\ns_mul_i32 s42, s46, 448")
        e("s_cbranch_scc1 L_unit\ns_cmp_lt_u32 s2, 84\ns_cbranch_scc1 L_unit")
        e("s_waitcnt lgkmcnt(0)\ns_add_u32 s56, s56, 1")
        e(f"s_and_b32 s60, s56, 0xff\nv_mov_b32 v{vT8}, s60\ns_and_b32 s60, s56, 0xffff\nv_mov_b32 v{vT16}, s60\nv_and_b32 v{vT3}, 7, v{vT8}")
        e("s_branch L_getq")
        e("L_unit:")
        for k in range(8):
            e(f"v_mov_b32 v{PC+k}, 0")
        if self.lev:
            per = -(-((1024 - 64) // self.period * self.nsh) // 28)
            assert per <= 64 and per * 28 * self.cst <= WS_SIZE - WS_CTR
            e(f"s_cmp_ge_u32 s2, 28\ns_cbranch_scc1 L_noz\ns_mul_i32 s58, s2, {per*self.cst}\ns_add_u32 s58, s58, {WS_CTR}")
            for k in range(0, per, 16):
                e(f"v_lshrrev_b32 v1, 2, v0\nv_add_u32 v1, {k}, v1\nv_and_b32 v9, 3, v0\nv_lshlrev_b32 v9, 4, v9")
                e(f"v_mul_u32_u24 v13, {self.cst}, v1\nv_add_u32 v9, v9, v13")
                e(f"v_cmp_gt_u32 vcc, {per}, v1\ns_and_saveexec_b64 s[62:63], vcc")
                if self.ctouch:
                    e("buffer_load_dword v16, v9, s[32:35], s58 offen")
                e(f"buffer_store_dwordx4 v[{PC}:{PC+3}], v9, s[32:35], s58 offen sc1\ns_mov_b64 exec, -1")
            e("L_noz:")
        e("v_lshrrev_b32 v1, 5, v0\nv_and_b32 v15, 31, v0\nv_mul_u32_u24 v13, 896, v1\nv_lshl_add_u32 v13, v15, 4, v13")
        e("s_mul_i32 s58, s54, 448\ns_sub_u32 s59, 448, s58")
        e(f"s_mov_b64 exec, {HM}")
        e(f"buffer_load_dwordx4 v[{PC}:{PC+3}], v13, s[36:39], s58 offen")
        e(f"buffer_load_dwordx4 v[{PC+4}:{PC+7}], v13, s[36:39], s59 offen")
        e("s_mov_b64 exec, -1")
        e("v_mul_u32_u24 v9, s46, v6\nv_add_u32 v9, v9, v7")
        e("s_mul_i32 s58, s54, 224\ns_mul_i32 s58, s58, s46\ns_lshl_b32 s60, s55, 7\ns_add_u32 s58, s58, s60\ns_lshl_b32 s59, s46, 3")
        for n in range(28):
            self.dma_step(9, 40, PST + 1024 * n, self.wpol)
            e("s_add_u32 s58, s58, s59")
        e(f"v_mul_u32_u24 v9, {2688*4}, v1\nv_lshl_add_u32 v9, v15, 5, v9")
        e(f"v_mul_u32_u24 v13, 448, v1\nv_lshl_add_u32 v13, v15, 4, v13\nv_add_u32 v13, {AIM}, v13")
        e(f"v_bfe_u32 v1, v0, 2, 1\nv_mul_u32_u24 v14, 448, v1\nv_lshl_add_u32 v14, v3, 4, v14\nv_add_u32 v14, {AIM}, v14")
        e(f"v_add_u32 v15, {PST}, v8")
        e("s_waitcnt lgkmcnt(0)\ns_add_u32 s56, s56, 1")
        e(f"s_and_b32 s60, s56, 0xff\nv_mov_b32 v{vT8}, s60\ns_and_b32 s60, s56, 0xffff\nv_mov_b32 v{vT16}, s60\nv_and_b32 v{vT3}, 7, v{vT8}")
        e("s_waitcnt vmcnt(28)")
        X = list(range(PN, PN + 8))
        self.unpack(list(range(PC, PC + 8)), list(range(PN, PN + 16)))
        e("s_cmp_ge_u32 s2, 128\ns_cbranch_scc1 L_ln1")
        self.silu(X, list(range(PN + 8, PN + 16)))
        for k in range(4):
            e(f"v_cvt_pk_bf16_f32 v{PC+k}, v{X[2*k]}, v{X[2*k+1]}")
        e("s_branch L_frag\nL_ln1:")
        self.layernorm(X, list(range(16, 26)), extra=list(range(PN + 8, PN + 16)))
        e("L_frag:\ns_waitcnt vmcnt(0)")
        self.stamp(1)
        for st in range(7):
            for u in range(4):
                self.tr_reads(PB + 16 * st + 4 * u, 15, 4096 * st + 32 * u)
        self.stamp(2)
        e("s_cmp_lt_u32 s2, 128\ns_cbranch_scc1 L_mm")
        e(f"s_mul_i32 s58, s54, 896\ns_add_u32 s58, s58, {WS_MOD}\ns_add_u32 s59, s58, {2*2688*4}")
        loads = []
        for p in range(2):
            for m in range(2):
                for hf in range(2):
                    k = (p * 2 + m) * 2 + hf
                    loads.append((4, PRAW + 4 * k, PCL + 4 * k, 9, f"s{58+p}", m * 448 * 4 + hf * 16))
        if self.mat:
            self.lds_wait(vM, FULL - MISC, 47, self.mat, 2)
        self.gather(loads, vT3, 7, HM, pairs=True, sleep=self.msleep)
        self.stamp(3)
        self.sum_round(PCL, PCL + 16, 16, list(range(16, 24)))
        CA = list(range(PCL + 8, PCL + 16))
        for r in CA:
            e(f"v_add_f32 v{r}, 1.0, v{r}")
        self.rbf_pairs(CA, list(range(16, 20)))
        self.modulate(X, CA, list(range(PCL, PCL + 8)), list(range(PC, PC + 4)), list(range(16, 20)))
        e("L_mm:")
        e(f"s_mov_b64 exec, {HM}\nds_write_b128 v13, v[{PC}:{PC+3}]\ns_mov_b64 exec, -1\ns_waitcnt lgkmcnt(0)")
        for st in range(7):
            e(f"ds_read_b128 v[{PA+4*st}:{PA+4*st+3}], v14 offset:{64*st}")
        e("s_lshl_b32 s46, s46, 1\nv_and_b32 v1, 1, v3\nv_mul_u32_u24 v9, s46, v1\nv_lshrrev_b32 v1, 5, v0")
        e("v_lshl_add_u32 v9, v1, 6, v9\nv_lshl_add_u32 v9, v4, 2, v9")
        e(f"s_mul_i32 s58, s54, s46\ns_lshl_b32 s58, s58, 1\ns_lshl_b32 s60, s55, 8\ns_add_u32 s58, s58, s60")
        e(f"s_mov_b32 s60, {WS_MOD}\ns_cmp_ge_u32 s2, 128\ns_cselect_b32 s60, {WS_Q}, s60\ns_add_u32 s58, s58, s60")
        for st in range(7):
            e(f"s_waitcnt lgkmcnt({6-st})")
            for u in range(4):
                d, b = PD + 4 * u, PB + 16 * st + 4 * u
                c = "0" if st == 0 else f"v[{d}:{d+3}]"
                e(f"v_mfma_f32_16x16x32_bf16 v[{d}:{d+3}], v[{PA+4*st}:{PA+4*st+3}], v[{b}:{b+3}], {c}")
        e("s_nop 7")
        for v in range(2):
            e(f"v_mov_b32_dpp v{PD+8*v}, v{PD+8*v+4} quad_perm:[0,1,2,3] row_mask:0xc bank_mask:0xf")
        for v in range(2):
            e(f"v_and_or_b32 v{PD+8*v}, v{PD+8*v}, -8, v{vT3}")
            e(f"buffer_store_dword v{PD+8*v}, v9, s[32:35], s58 offen offset:{128*v} sc1")
        self.stamp(4)
        e("L_getq:")
        if self.qat:
            self.lds_wait(vM, FULL - MISC, 47, self.qat, 2)
        e(f"v_lshlrev_b32 v9, 4, v0\ns_lshl_b32 s58, s49, 10\ns_add_u32 s58, s58, {WS_Q}\ns_add_u32 s59, s58, 0x8000")
        self.gather([(4, PRAW, PCL, 9, "s58", 0), (4, PRAW + 4, PCL + 4, 9, "s59", 0)], vT3, 7, "-1",
                    sleep=self.qsleep)
        for k in range(4):
            e(f"v_add_f32 v{PCL+k}, v{PCL+k}, v{PCL+4+k}")
        e(f"v_cvt_pk_bf16_f32 v16, v{PCL}, v{PCL+1}\nv_cvt_pk_bf16_f32 v17, v{PCL+2}, v{PCL+3}")
        e(f"v_lshl_add_u32 v1, v0, 3, v{vM}\nds_write_b64 v1, v[16:17] offset:{QV-MISC}")
        e(f"v_mov_b32 v18, 1\nv_mov_b32 v19, s56\nds_write_b64 v{vM}, v[18:19] offset:{QRDY-MISC}")
        self.stamp(5)

        e("L_bg:")
        e(f"s_lshl_b32 s57, s30, 11\ns_add_u32 s57, s57, {STG}\ns_add_u32 s59, s57, 1024")
        e(f"s_lshl_b32 s60, s30, 5\ns_add_u32 s60, s60, {STG}\nv_add_u32 v8, s60, v8\ns_mov_b32 s44, 0\ns_mov_b32 s45, 0")
        if self.bl:
            e("v_lshl_add_u32 v15, v0, 4, s57")
        self.mlp_ids()
        e("s_cmp_eq_u32 s48, 7\ns_cbranch_scc1 L_bgdone")
        if self.wdelay:
            e("s_mov_b32 s47, 0")
            self.lds_wait(vM, FULL - MISC, 47, self.wdelay, 4)
        e(f"s_mov_b32 s41, {56 if self.opace else 0}\ns_mov_b32 s46, {self.opace}\ns_mov_b32 s47, 0")
        self.srd(36, 12, 4096 * 896)
        e(f"s_and_b32 s58, s49, 15\ns_mul_i32 s58, s58, {256*896}\ns_lshl_b32 s60, s48, 7\ns_add_u32 s58, s58, s60")
        if self.bgst:
            self.stamp(1)
        self.unit_load(WO, 4, 896, 64 * 896, self.opol)
        if self.bgst:
            self.stamp(2)
        e("s_cmp_ge_u32 s101, 64\ns_cbranch_scc1 L_bgdone")
        if self.mdelay:
            e(f"s_mul_i32 s46, s54, {self.mdelay}\ns_mov_b32 s47, 0")
            self.lds_wait(vM, FULL - MISC, 47, "s46", 32)
        if self.rpace:
            e(f"s_mov_b32 s41, {self.r0}\ns_mov_b32 s46, {self.rpace}")
        if self.mswap:
            e("s_cmp_lg_u32 s54, 0\ns_cbranch_scc1 L_w2\nL_w1:")
        self.srd(36, 16, 448 * 3584)
        e("s_lshl_b32 s58, s55, 7")
        self.unit_load(W1, 7, 3584, 64 * 3584, self.mpol)
        if self.bgst:
            self.stamp(3)
        if self.mswap:
            e("s_cmp_lg_u32 s54, 0\ns_cbranch_scc1 L_w12\nL_w2:")
        self.srd(36, 18, 1792 * 896)
        e(f"s_mul_i32 s58, s55, {64*896}")
        self.unit_load(W2, 7, 896, 128, self.mpol)
        if self.mswap:
            e("s_cmp_lg_u32 s54, 0\ns_cbranch_scc1 L_w1\nL_w12:")
        e("s_waitcnt lgkmcnt(0)")
        self.soft_barrier(vM)
        if self.bgst:
            self.stamp(4)
        e("v_and_b32 v1, 31, v0\nv_lshlrev_b32 v13, 2, v1\nv_lshrrev_b32 v1, 5, v0\nv_lshl_add_u32 v13, v1, 1, v13")
        e("s_mul_i32 s60, s30, 112\nv_add_u32 v13, s60, v13")
        self.srd(36, 4, 1792)
        e(f"v_lshlrev_b32 v14, 1, v13\ns_mul_i32 s58, s54, 896\nbuffer_load_dword v{XP}, v14, s[36:39], s58 offen")
        e(f"s_mul_i32 s58, s54, {2688*4}\ns_add_u32 s58, s58, {WS_MOD+896*4}\ns_add_u32 s59, s58, {2*2688*4}\nv_lshlrev_b32 v9, 2, v13")
        self.gather([(2, RAW, GA, 9, "s58", 0), (2, RAW + 2, 16, 9, "s59", 0)], vT3, 7, HM, sleep=8)
        self.sum_round(GA, 16, 2, [18])
        e(f"v_and_b32 v{XP+1}, 0xffff0000, v{XP}\nv_lshlrev_b32 v{XP}, 16, v{XP}")
        e("v_lshlrev_b32 v9, 1, v5")
        loads = []
        for p in range(2):
            for m, dst in enumerate((SB, OCB)):
                for hf in range(2):
                    k = (p * 2 + m) * 2 + hf
                    cl = dst + 4 * hf if p == 0 else AD + 8 * (1 - m) + 4 * hf
                    loads.append((4, RAW + 4 * k, cl, 9, f"s{58+p}", (m + 1) * 448 * 4 + hf * 16))
        self.gather(loads, vT3, 7, LM, sleep=8, pairs=True)
        self.sum_round(OCB, AD, 16, list(range(16, 24)))
        e(f"s_lshl_b32 s60, s55, 6\ns_add_u32 s58, s58, s60\ns_add_u32 s58, s58, {1344*4}\ns_add_u32 s59, s58, {2*2688*4}")
        e("v_lshlrev_b32 v9, 2, v4")
        self.gather([(1, RAW, GB, 9, "s58", 0), (1, RAW + 1, 16, 9, "s59", 0)], vT3, 7, "-1", sleep=8)
        self.sum_round(GB, 16, 1, None)
        for k in range(8):
            e(f"v_add_f32 v{OCB+k}, 1.0, v{OCB+k}")
        self.rbf_pairs(list(range(OCB, OCB + 8)), list(range(16, 20)))
        e(f"s_lshl_b32 s60, s30, 10\ns_add_u32 s60, s60, {GX}\nv_lshl_add_u32 v13, v0, 4, s60\nds_write_b128 v13, v[{GA}:{GA+3}]")
        e(f"v_lshlrev_b32 v13, 2, v0\nv_add_u32 v13, {GBL}, v13\nds_write_b32 v13, v{GB}\ns_waitcnt lgkmcnt(0)")
        self.soft_barrier(vM)
        e("L_bgdone:")
        if self.stamps:
            e("s_cmp_eq_u32 s30, 0\ns_cbranch_scc1 L_st0")
            self.stamp(0)
            e("L_st0:")
        if self.warm:
            e("s_cmp_lg_u32 s30, 1\ns_cbranch_scc1 L_warmed\ns_mov_b32 s60, 2\nL_warm:\ns_mov_b64 exec, 0\ns_branch L_pad0")
            e("L_padret:\ns_mov_b64 exec, -1\ns_sub_u32 s60, s60, 1\ns_cmp_lg_u32 s60, 0\ns_cbranch_scc1 L_warm\nL_warmed:")
        e("s_cmp_lg_u32 s30, 0\ns_cbranch_scc1 L_tail0")

        top, go = self.lab("ml"), self.lab("mlgo")
        e(f"{top}:")
        for i in range(3):
            e(f"ds_read_b128 v[{16+4*i}:{19+4*i}], v{vM} offset:{ML-MISC+16*i}")
        e("s_waitcnt lgkmcnt(0)\nv_min3_u32 v1, v18, v22, v26\ns_nop 0\nv_readfirstlane_b32 s60, v1")
        e(f"s_cmp_lg_u32 s60, 0\ns_cbranch_scc1 {go}")
        self.budget()
        e(f"s_sleep 32\ns_branch {top}\n{go}:")
        e(f"s_mov_b32 s61, {hex(C2)}\nv_max3_f32 v28, v16, v20, v24")
        for i in range(3):
            e(f"v_sub_f32 v{18+4*i}, v{16+4*i}, v28\nv_mul_f32 v{18+4*i}, s61, v{18+4*i}\nv_exp_f32 v{18+4*i}, v{18+4*i}")
        e("s_nop 0\nv_mul_f32 v29, v17, v18\nv_fmac_f32 v29, v21, v22\nv_fmac_f32 v29, v25, v26")
        e(f"v_or_b32 v{RAW}, v28, v{vT16}\nv_and_b32 v1, 0xffff0000, v29\nv_or_b32 v{RAW+1}, v1, v{vT16}")
        e(f"v_lshlrev_b32 v1, 16, v29\nv_or_b32 v{RAW+2}, v1, v{vT16}")
        e(f"s_getreg_b32 s46, hwreg(HW_REG_XCC_ID, 0, 4)\ns_lshl_b32 s46, s46, 16\nv_or_b32 v{RAW+3}, s46, v{vT16}")
        if self.xl:
            e("s_and_b32 s58, s2, 7\ns_lshr_b32 s59, s2, 3")
        else:
            e("s_lshr_b32 s58, s2, 5\ns_and_b32 s59, s2, 31")
        e(f"s_lshl_b32 s58, s58, 9\ns_add_u32 s58, s58, {WS_ML}\ns_lshl_b32 s60, s59, 4\nv_mov_b32 v1, s60")
        e(f"s_mov_b64 exec, 1\nbuffer_store_dwordx4 v[{RAW}:{RAW+3}], v1, s[32:35], s58 offen sc1\ns_mov_b64 exec, -1")
        e("s_mov_b32 s47, 0")
        self.lds_wait(vM, FULL - MISC, 47, 640, 32)
        e(f"s_and_b32 s59, s59, 24\nv_and_b32 v9, {31 if self.fast else 7}, v0\nv_xor_b32 v9, s59, v9\nv_lshlrev_b32 v9, 4, v9")
        self.gather([(4, RAW + 4, RAW + 8, 9, "s58", 0)], vT16, "WORD_0", "-1", sleep=16)
        m, l = RAW + 8, RAW + 9
        e(f"v_lshrrev_b32 v{l+1}, 16, v{l+1}\nv_or_b32 v{l}, v{l}, v{l+1}\nv_mov_b32 v28, v{m}")
        oct_steps = ["quad_perm:[1,0,3,2]", "quad_perm:[2,3,0,1]", "row_half_mirror"]
        for st in oct_steps:
            e(f"s_nop 1\nv_max_f32_dpp v28, v28, v28 {st} {DPPF}")
        e(f"v_sub_f32 v{m}, v{m}, v28\nv_mul_f32 v{m}, s61, v{m}\nv_exp_f32 v{m}, v{m}\ns_nop 0\nv_mul_f32 v29, v{m}, v{l}")
        for st in oct_steps:
            e(f"s_nop 1\nv_add_f32_dpp v29, v29, v29 {st} {DPPF}")
        e("v_rcp_f32 v29, v29")
        for i in range(3):
            e(f"v_sub_f32 v{F+i}, v{16+4*i}, v28\nv_mul_f32 v{F+i}, s61, v{F+i}\nv_exp_f32 v{F+i}, v{F+i}\ns_nop 0")
            e(f"v_mul_f32 v{F+i}, v{F+i}, v29")
        if self.fast:
            e(f"v_cmp_ne_u32 vcc, s46, v{RAW+11}\ns_cmp_eq_u64 vcc, 0\ns_cselect_b32 s60, 2, 1\nv_mov_b32 v{F+3}, s60")
        else:
            e(f"v_mov_b32 v{F+3}, 1")
        e(f"s_mov_b64 exec, 1\nds_write_b128 v{vM}, v[{F}:{F+3}] offset:{FS-MISC}\ns_mov_b64 exec, -1")
        e("L_tail0:\ns_cmp_eq_u32 s48, 7\ns_cbranch_scc1 L_fin")

        def stamp_s(k):
            if self.stamps and not self.bgst:
                e(f"s_cmp_eq_u32 s30, 0\ns_cbranch_scc1 L_st{k}")
                self.stamp(k)
                e(f"L_st{k}:")

        e(f"s_lshl_b32 s58, s49, 13\ns_lshl_b32 s60, s30, 8\ns_add_u32 s58, s58, s60\ns_add_u32 s58, s58, {WS_OP}")
        e("s_add_u32 s59, s58, 4096\nv_lshlrev_b32 v9, 2, v0")
        e(f"v_lshlrev_b32 v255, 10, v3\nv_lshl_add_u32 v255, v4, 4, v255\nv_lshl_add_u32 v1, v4, 3, v3")
        e("s_lshr_b32 s60, s30, 1\ns_lshl_b32 s60, s60, 8\ns_and_b32 s61, s30, 1\ns_lshl_b32 s61, s61, 3\ns_add_u32 s60, s60, s61")
        e(f"s_add_u32 s60, s60, {QV}\nv_lshl_add_u32 v14, v1, 1, s60")
        e(f"v_lshl_add_u32 v15, v3, 4, v{vM}\nv_add_u32 v13, v5, v{vM}")
        e(f"s_mul_i32 s40, s49, {448*4}\ns_lshl_b32 s60, s48, 8\ns_add_u32 s40, s40, s60")
        e(f"s_lshl_b32 s60, s30, 6\ns_add_u32 s40, s40, {WS_Y}")
        if self.ymerge:
            e(f"v_lshl_add_u32 v29, v4, 2, v{vM}\nv_add_u32 v29, s60, v29\nv_add_u32 v28, v9, v{vM}")
        else:
            e("s_add_u32 s40, s40, s60")
        vYM, vYT = 253, 254
        e(f"v_and_b32 v1, 3, v0\nv_cmp_eq_u32 vcc, 0, v1\nv_mov_b32 v1, 0xffffff00\ns_mov_b32 s43, 0xffffff00")
        e(f"v_cndmask_b32 v{vYM}, -1, v1, vcc\nv_cndmask_b32 v{vYT}, 0, v{vT8}, vcc")
        e(f"s_lshl_b32 s60, s30, 5\ns_add_u32 s60, s60, {RED}\nv_lshl_add_u32 v30, v4, 1, s60")
        ZB = 1792 << self.zpad
        e(f"s_mul_i32 s41, s54, {28*ZB}\ns_mul_i32 s60, s30, {ZB}\ns_add_u32 s41, s41, s60")
        e(f"s_lshl_b32 s60, s55, {6+self.zpad}\ns_add_u32 s41, s41, s60\ns_add_u32 s41, s41, {WS_Z}\ns_add_u32 s42, s41, {16*ZB}")
        e(f"v_mul_u32_u24 v31, {4*ZB}, v3\nv_lshl_add_u32 v31, v4, 2, v31")
        for k in range(4):
            e(f"v_mov_b32 v{248+k}, 0")
        ol = [(4, 20 + 4 * k, 255, f"s{58+k}", 0) for k in range(2)]
        e("s_mov_b32 s47, 0\ns_mov_b32 s46, 0")
        self.lds_wait(vM, FULL - MISC, 47, self.pstart - 40, 64)
        self.lds_wait(vM, FS + 12 - MISC, 46, 1, 2)
        if self.talign is not None:
            e("s_branch L_closing")
            self.L.append(".p2align 12")
            if self.talign:
                self.L.append(f".fill {self.talign//4}, 4, 0xbf800000")
            e("L_closing:")
        self.lds_wait(vM, FULL - MISC, 47, self.pstart, 3)
        e("s_setprio 2")
        self.L.append("@WARM_BEGIN")

        self.gather8(ol, vT8, ["-1", "-1"], False)
        self.pk("add", 22, 22, 26)
        self.pk("add", 20, 20, 24)
        e("s_nop 1\nv_permlane32_swap_b32 v20, v22\nv_permlane32_swap_b32 v21, v23")
        self.pk("add", 20, 20, 22)
        e("s_nop 1\nv_permlane16_swap_b32 v20, v21\nv_add_f32 v20, v20, v21")
        e("v_cvt_pk_bf16_f32 v20, v20, v20\nds_write_b16 v14, v20")
        stamp_s(1)
        e("s_waitcnt lgkmcnt(0)\ns_barrier")
        self.unit_mfma_lds(WO, RAW, 15, 8, DD, QV - MISC)
        e(f"v_and_or_b32 v{DD}, v{DD}, v{vYM}, v{vYT}")
        if self.ymerge:
            e(f"ds_write_b32 v29, v{DD} offset:{RED+128-MISC}\ns_waitcnt lgkmcnt(0)\ns_barrier")
            e(f"s_cmp_lg_u32 s30, 1\ns_cbranch_scc1 L_ydone\nds_read_b32 v{DD}, v28 offset:{RED+128-MISC}\ns_waitcnt lgkmcnt(0)")
            e(f"buffer_store_dword v{DD}, v9, s[32:35], s40 offen sc1\nL_ydone:")
        else:
            e(f"s_mov_b64 exec, 0xffff\nbuffer_store_dword v{DD}, v9, s[32:35], s40 offen {self.ypol}")
        stamp_s(2)
        if self.stamps:
            e("s_cmp_lt_u32 s101, 64\ns_cbranch_scc1 L_noack\ns_waitcnt vmcnt(0)")
            self.stamp(6)
            e("L_noack:")
        e(f"s_cmp_ge_u32 s101, 64\ns_cbranch_scc1 L_fin\ns_mov_b64 exec, {LM}\ns_barrier")

        e(f"ds_read_b128 v[248:251], v13 offset:{AIM-MISC}\ns_mov_b64 exec, -1")
        stamp_s(3)
        e("s_waitcnt lgkmcnt(0)")
        X = list(range(WO, WO + 8))
        self.unpack([248, 249, 250, 251], X)
        self.layernorm(X, list(range(16, 26)), rounded=not self.lnfast)
        self.modulate(X, list(range(OCB, OCB + 8)), list(range(SB, SB + 8)), [248, 249, 250, 251], list(range(16, 20)),
                      rounded=not self.lnfast)
        self.unit_mfma_dpp(W1, 248, AD, DD)
        self.rbf1(DD)
        self.silu([DD], [16])
        e(f"v_cvt_pk_bf16_f32 v{DD}, v{DD}, v{DD}\nds_write_b16 v30, v{DD}\ns_waitcnt lgkmcnt(0)\ns_barrier")
        e(f"ds_read_b128 v[{AD}:{AD+3}], v15 offset:{RED-MISC}\nds_read_b128 v[{AD+4}:{AD+7}], v15 offset:{RED-MISC+64}")
        stamp_s(4)
        def mm(rho, st):
            d, b = RAW + 4 * rho, W2 + 8 * rho + 4 * st
            c = "0" if st == 0 else f"v[{d}:{d+3}]"
            e(f"v_mfma_f32_16x16x32_bf16 v[{d}:{d+3}], v[{AD+4*st}:{AD+4*st+3}], v[{b}:{b+3}], {c}")

        def sel(dst, g):
            e(f"v_mov_b32_dpp v{dst}, v{dst+4*g} quad_perm:[0,1,2,3] row_mask:{hex(1<<g)} bank_mask:0xf")
        e("s_waitcnt lgkmcnt(1)")
        for rho in range(4):
            mm(rho, 0)
        e("s_waitcnt lgkmcnt(0)")
        for rho in range(4):
            mm(rho, 1)
        for st in range(2):
            for rho in range(4, 7):
                mm(rho, st)
        sel(RAW, 1)
        e("s_nop 1")
        sel(RAW, 2)
        e("s_nop 1")
        sel(RAW, 3)
        e(f"v_and_or_b32 v{RAW}, v{RAW}, v{vYM}, v{vYT}")
        sel(RAW + 16, 1)
        near = self.fast and self.xm
        if near:
            e("s_cmp_lg_u32 s46, 2\ns_cbranch_scc1 L_zfar")
        for pol in ([self.npol, "sc1"] if near else ["sc1"]):
            e(f"buffer_store_dword v{RAW}, v31, s[32:35], s41 offen {pol}\ns_nop 0")
            e(f"v_mov_b32_dpp v{RAW+16}, v{RAW+24} quad_perm:[0,1,2,3] row_mask:0x4 bank_mask:0xf")
            e(f"v_and_or_b32 v{RAW+16}, v{RAW+16}, v{vYM}, v{vYT}\ns_mov_b32 exec_hi, 0xffff")
            e(f"buffer_store_dword v{RAW+16}, v31, s[32:35], s42 offen {pol}")
            if self.stamps and not self.bgst:
                e("s_cmp_eq_u32 s30, 0\ns_cbranch_scc1 L_fin")
                self.stamp(5)
            e("s_branch L_fin")
            if pol != "sc1":
                e("L_zfar:")

    def gtail(self):
        e = self.e
        vM, vT8, GA, XP, GB, R = 12, 10, 4, 6, 8, 32
        HM = "s[52:53]"
        e("L_gtail:")
        self.mlp_ids()
        e("s_cbranch_scc1 L_leave")
        e(f"s_setprio 0\nv_mov_b32 v{vM}, {MISC}\nv_mov_b32 v2, 0\ns_mov_b32 s47, 0\ns_mov_b32 s31, 0x80000")
        self.srd(32, 28, WS_SIZE)
        e("s_mov_b32 s52, 0x0fffffff\ns_mov_b32 s53, 0x0fffffff")
        e(f"s_mul_i32 s40, s54, {16*448*4}\ns_add_u32 s40, s40, {WS_Y}")
        for k in range(1, 4):
            e(f"s_add_u32 s{40+k}, s40, {k*2*448*4}")
        e("v_and_b32 v1, 31, v0\nv_lshrrev_b32 v3, 5, v0\ns_mul_i32 s60, s3, 448\nv_lshl_add_u32 v9, v1, 4, s60")
        e(f"v_lshrrev_b32 v14, 1, v9\nv_lshl_add_u32 v14, v3, 2, v14\nv_add_u32 v14, {AIM}, v14")
        e(f"v_mul_u32_u24 v3, {8*448*4}, v3\nv_add_u32 v9, v9, v3")
        yl = [(4, R + 4 * k, 9, f"s{40+(k>>1)}", (k & 1) * 448 * 4) for k in range(8)]
        zl = [(4, 20 + 4 * k, 13, "s58", 1024 * k) for k in range(2)]
        self.lds_wait(vM, FS + 12 - MISC, 47, 1, 2)
        e(f"ds_read_b32 v11, v{vM} offset:{TAG-MISC}")
        e(f"s_lshl_b32 s60, s3, 10\ns_add_u32 s60, s60, {GX}\nv_lshl_add_u32 v1, v0, 4, s60\nds_read_b128 v[{GA}:{GA+3}], v1")
        e("v_and_b32 v15, 3, v0\nv_lshrrev_b32 v1, 4, v0\nv_lshl_add_u32 v15, v15, 2, v1")
        e(f"v_lshlrev_b32 v13, 4, v0\nv_lshlrev_b32 v1, 2, v15\nv_add_u32 v1, {GBL}, v1\nds_read_b32 v{GB}, v1")
        e(f"s_waitcnt lgkmcnt(0)\nv_and_b32 v{vT8}, 0xff, v11")
        e(f"s_mov_b64 exec, {HM}")
        for ld in yl if self.prewarm & 1 else []:
            self.issue(ld)
        e("s_barrier")
        if self.ymerge:
            e("s_barrier")
        if self.ystage:
            top = self.lab("ys")
            e(f"{top}:")
            self.budget()
            self.issue(yl[self.ystage - 1])
            e(f"s_waitcnt vmcnt(0)\nv_cmp_ne_u32_sdwa vcc, v{yl[self.ystage-1][1]}, v{vT8} src0_sel:BYTE_0 src1_sel:DWORD")
            e(f"s_cmp_lg_u64 vcc, 0\ns_cbranch_scc1 {top}")
        self.gather8(yl, vT8, [HM] * 8, True)
        if self.stamps and not self.prog:
            e("s_cmp_lg_u32 s3, 0\ns_cbranch_scc1 L_sg3")
            self.stamp(3)
            e("L_sg3:")
        for st in (16, 8, 4):
            for k in range(0, st, 2):
                e(f"v_pk_add_f32 v[{R+k}:{R+k+1}], v[{R+k}:{R+k+1}], v[{R+st+k}:{R+st+k+1}]")
        e(f"s_nop 1\nv_permlane32_swap_b32 v{R}, v{R+2}\nv_permlane32_swap_b32 v{R+1}, v{R+3}")
        e(f"v_pk_add_f32 v[{R}:{R+1}], v[{R}:{R+1}], v[{R+2}:{R+3}]")
        self.rbf_pairs([R, R + 1], [16])
        e(f"v_pk_mul_f32 v[{R}:{R+1}], v[{R}:{R+1}], v[{GA}:{GA+1}]")
        self.rbf_pairs([R, R + 1], [16])
        e(f"v_pk_add_f32 v[{R}:{R+1}], v[{R}:{R+1}], v[{XP}:{XP+1}]")
        e(f"v_cvt_pk_bf16_f32 v16, v{R}, v{R+1}")
        e(f"s_mov_b64 exec, {HM}\nds_write_b32 v14, v16\ns_waitcnt lgkmcnt(0)\ns_barrier")
        e("s_cmp_lg_u32 s3, 0\ns_cbranch_scc1 L_epoch\ns_mov_b64 exec, -1")
        e(f"s_mul_i32 s58, s54, 28\ns_add_u32 s58, s58, s55\ns_mul_i32 s58, s58, {1792 << self.zpad}\ns_add_u32 s58, s58, {WS_Z}")
        ZM = "s[50:51]"
        e("s_mov_b32 s50, -1\ns_mov_b32 s51, 0xffff")
        for k in range(4):
            e(f"v_mov_b32 v{24+k}, 0")
        if self.prewarm & 2:
            self.issue(zl[0])
            e(f"s_mov_b64 exec, {ZM}")
            self.issue(zl[1])
            e("s_mov_b64 exec, -1")
        e(f"s_lshl_b32 s60, s55, 5\ns_add_u32 s41, s60, {AIM}\nv_lshl_add_u32 v1, v15, 1, s41\nds_read_u16 v31, v1")
        self.srd(36, 24, 1792)
        e("s_mul_i32 s41, s54, 896\ns_add_u32 s41, s41, s60\nv_lshlrev_b32 v14, 1, v15")
        e("s_mov_b32 s42, 0x000f000f\ns_mov_b32 s43, 0x000f000f")
        e("s_waitcnt lgkmcnt(0)\nv_lshlrev_b32 v31, 16, v31\ns_barrier")
        self.gather8(zl, vT8, ["-1", ZM], False)
        if not self.prog:
            self.stamp(4)
        self.pk("add", 22, 22, 26)
        self.pk("add", 20, 20, 24)
        e("s_nop 1\nv_permlane32_swap_b32 v20, v22\nv_permlane32_swap_b32 v21, v23")
        self.pk("add", 20, 20, 22)
        e("s_nop 1\nv_permlane16_swap_b32 v20, v21\nv_add_f32 v16, v20, v21")
        for rr in (4, 8):
            e(f"s_nop 1\nv_add_f32_dpp v16, v16, v16 row_ror:{rr} {DPPF}")
        self.rbf1(16)
        e(f"v_mul_f32 v16, v16, v{GB}")
        self.rbf1(16)
        e("v_add_f32 v16, v16, v31\nv_cvt_pk_bf16_f32 v16, v16, v16")
        e("s_mov_b64 exec, s[42:43]\nbuffer_store_short v16, v14, s[36:39], s41 offen")
        if not self.prog:
            self.stamp(5)
        if False:
            e("s_cmp_lg_u32 s101, 0\ns_cbranch_scc1 L_fin\ns_mov_b64 exec, 1")
            self.srd(44, 26, 256)
            for ti, ptr in enumerate((6, 8)):
                self.srd(36, ptr, 0x20000000)
                e(f"s_mov_b32 s40, 0\ns_mov_b32 s41, 0\nL_dm{ti}:\ns_lshl_b32 s42, s40, 21")
                e("buffer_load_dword v16, v2, s[36:39], s42 offen offset:2048 nt\ns_waitcnt vmcnt(0)\ns_mov_b32 s43, 0")
                for rep in range(3):
                    for half in range(2):
                        e(f"s_add_u32 s48, s42, {half*8192 + rep*32768}\ns_memtime s[60:61]\ns_waitcnt lgkmcnt(0)")
                        e("buffer_load_dword v16, v2, s[36:39], s48 offen nt\ns_waitcnt vmcnt(0)\ns_memtime s[62:63]\ns_waitcnt lgkmcnt(0)")
                        e(f"s_sub_u32 s{64+half}, s62, s60")
                    e("s_cmp_lt_u32 s64, s65\ns_addc_u32 s43, s43, 0")
                e("s_lshr_b32 s43, s43, 1\ns_and_b32 s48, s40, 31\ns_lshl_b32 s43, s43, s48\ns_or_b32 s41, s41, s43")
                e(f"s_lshr_b32 s48, s40, 5\ns_lshl_b32 s48, s48, 2\nv_mov_b32 v17, s41\nbuffer_store_dword v17, v2, s[44:47], s48 offen offset:{32*ti}")
                e(f"s_add_u32 s40, s40, 1\ns_and_b32 s48, s40, 31\ns_cselect_b32 s41, s41, 0\ns_cmp_lt_u32 s40, 256\ns_cbranch_scc1 L_dm{ti}")
        self.L.append("@WARM_END")
        e("L_fin:")
        self.end()
        e("L_epoch:\ns_add_u32 s60, s101, s3\ns_cmp_lg_u32 s60, 1\ns_cbranch_scc1 L_leave")
        e("s_mov_b64 exec, 1\nbuffer_store_dword v11, v2, s[32:35], 0 offen sc1")
        e("L_leave:\ns_barrier\ns_branch L_fin")

    def build(self, header):
        e = self.e
        K = NAME + "_kernel"
        self.L.append(header.rstrip("\n"))
        self.L.append(f"; @launch grid=(256,1,1) block=(512,1,1) lds={LDS_BYTES}")
        self.L.append('.amdgcn_target "amdgcn-amd-amdhsa--gfx950"\n.text')
        self.L.append(f".globl {K}\n.p2align 8\n.type {K},@function\n{K}:")
        e("s_cmp_ge_u32 s2, 256\ns_cbranch_scc1 L_end")
        e("s_load_dwordx16 s[4:19], s[0:1], 0\ns_load_dwordx8 s[20:27], s[0:1], 64\ns_load_dwordx2 s[28:29], s[0:1], 96")
        e("v_lshrrev_b32 v1, 6, v0\nv_and_b32 v0, 63, v0\nv_readfirstlane_b32 s3, v1")
        if self.xl == 2:
            e("s_and_b32 s100, s2, 7\ns_lshl_b32 s100, s100, 3\ns_bfe_u32 s101, s2, 0x30003\ns_or_b32 s100, s100, s101")
            e("s_and_b32 s101, s2, 192\ns_or_b32 s100, s100, s101")
            if self.xf:
                e(f"s_bitcmp1_b32 s2, 6\ns_cselect_b32 s101, {self.xf << 3}, 0\ns_xor_b32 s100, s100, s101")
            if self.xg:
                e(f"s_bitcmp1_b32 s2, 7\ns_cselect_b32 s101, {self.xg << 3}, 0\ns_xor_b32 s100, s100, s101")
        elif self.xl:
            e("s_and_b32 s100, s2, 7\ns_lshl_b32 s100, s100, 4\ns_bfe_u32 s101, s2, 0x40003\ns_or_b32 s100, s100, s101")
            e("s_and_b32 s101, s2, 128\ns_or_b32 s100, s100, s101")
        else:
            e("s_mov_b32 s100, s2")
        self.stamp_init()
        e("s_cmp_eq_u32 s3, 0\ns_cbranch_scc1 L_loader")
        e(f"v_lshlrev_b32 v1, 3, v0\nv_add_u32 v1, {MISC}, v1\nv_mov_b32 v2, 0\nv_mov_b32 v3, 0\nds_write_b64 v1, v[2:3]")
        e("s_cmp_ge_u32 s3, 4\ns_cbranch_scc1 L_service")
        if self.l2warm == 2:
            self.code_prefetch()
        e("s_branch L_consumer")
        self.loader()
        e("L_end:\ns_endpgm")
        self.consumer()
        self.service()
        self.gtail()
        self.stage_subs(12)
        e("L_last:")
        self.L.append(f""".section .rodata,"a"
.p2align 6
.amdhsa_kernel {K}
  .amdhsa_next_free_vgpr 256
  .amdhsa_next_free_sgpr 102
  .amdhsa_accum_offset 256
  .amdhsa_group_segment_fixed_size 0
  .amdhsa_kernarg_size 104
  .amdhsa_user_sgpr_count 2
  .amdhsa_user_sgpr_kernarg_segment_ptr 1
  .amdhsa_system_sgpr_workgroup_id_x 1
  .amdhsa_float_denorm_mode_32 3
.end_amdhsa_kernel""")
        return "\n".join(self.place_pads()) + "\n"

    def place_pads(self):
        out, inside, count, npad, masked = [], False, 0, 0, False
        def pad(op):
            nonlocal npad, count
            out.append(f"L_pad{npad}:\n    {op} @PAD{npad+1}@")
            npad += 1
            count = 0
        for line in self.L:
            if line == "@WARM_BEGIN":
                inside = bool(self.warm)
                if inside:
                    pad("s_cbranch_execz")
                continue
            if line == "@SPOT":
                if self.warm:
                    pad("s_branch")
                continue
            if line == "@WARM_END":
                inside = False
                continue
            out.append(line)
            if inside and line.startswith("    "):
                count += 1
                if "s_cselect_b64 exec" in line:
                    masked = True
                elif "s_mov_b64 exec" in line:
                    masked = False
                if line.strip().startswith("s_branch "):
                    pad("s_branch")
                elif count >= self.warm and not masked:
                    pad("s_cbranch_execz")
        text = "\n".join(out)
        for k in range(1, npad + 1):
            text = text.replace(f"@PAD{k}@", f"L_pad{k}" if k < npad else "L_padret")
        return text.split("\n")


HEADER = """; Fused adaLN-conditioned block for one decode step (gfx950): modulation, layernorm, q projection,
;
"""


def generate(**kw):
    return Gen(**kw).build(HEADER)


if __name__ == "__main__":
    import json
    kw = json.loads(sys.argv[2]) if len(sys.argv) > 2 else {}
    open(sys.argv[1], "w").write(generate(**kw))
```
